```python
import torch

def _softmax(x, axis=-1):
    return torch.softmax(x, dim=axis)
def _gelu(x):
    return torch.nn.functional.gelu(x, approximate="tanh")
def _silu(x):
    return torch.nn.functional.silu(x)
def _sigmoid(x):
    return torch.sigmoid(x)
def _layernorm(x, axis=-1, eps=1e-5):
    m = x.mean(dim=axis, keepdim=True)
    v = x.var(dim=axis, keepdim=True, unbiased=False)
    return (x - m) / torch.sqrt(v + eps)
def _scatter_add(tgt, idx, src, axis=0):
    return tgt.clone().index_add_(axis, idx, src)
def _segment_sum(src, seg, n):
    out = torch.zeros((n,) + src.shape[1:], dtype=src.dtype)
    return out.index_add_(0, seg, src)
def _pad(x, pw):
    flat = tuple(v for pair in reversed(pw) for v in pair)
    return torch.nn.functional.pad(x, flat)

kernel_name = 'parallel_sum__sliding_block_cached__glu_gated_glu__decode'

def setup_inputs():

    _w = (lambda a: (lambda t: t.to(torch.bfloat16) if t.is_floating_point() else t)(torch.as_tensor(a)))
    def _A_setup():
        B, Sq, D = 2, 1, 512
        Hq, Hkv, Sk, Dh = 32, 8, 32768, 128
        assert Hq % Hkv == 0, (Hq, Hkv)
        return {
            "x": _w((lambda *s: torch.randn(*s, dtype=torch.bfloat16) * 0.05)(B, Sq, D)),
            "k_cache": _w((lambda *s: torch.randn(*s, dtype=torch.bfloat16) * 3.2)(B, Hkv, Sk, Dh)),
            "v_cache": _w((lambda *s: torch.randn(*s, dtype=torch.bfloat16) * 1.6)(B, Hkv, Sk, Dh)),
            "wq": _w((lambda *s: torch.randn(*s, dtype=torch.bfloat16) * 3.2)(D, Hq * Dh) * (D ** -0.5)),
            "wo": _w((lambda *s: torch.randn(*s, dtype=torch.bfloat16) * 1.6)(Hq * Dh, D) * ((Hq * Dh) ** -0.5)),
        }
    _A_in = _A_setup()

    def _B_setup():
        B, S, D, F = 2, 1, 512, 1792
        return {
            "x": _w((lambda *s: torch.randn(*s, dtype=torch.bfloat16) * 0.05)(B, S, D)),
            "w_gate": _w((lambda *s: torch.randn(*s, dtype=torch.bfloat16) * 1.6)(D, F)),
            "w_up": _w((lambda *s: torch.randn(*s, dtype=torch.bfloat16) * 0.05)(D, F)),
            "w_down": _w((lambda *s: torch.randn(*s, dtype=torch.bfloat16) * 0.05)(F, D)),
        }
    _B_in = _B_setup()

    return {
        "A_x": _A_in["x"],
        "A_k_cache": _A_in["k_cache"],
        "A_v_cache": _A_in["v_cache"],
        "A_wq": _A_in["wq"],
        "A_wo": _A_in["wo"],
        "B_x": _B_in["x"],
        "B_w_gate": _B_in["w_gate"],
        "B_w_up": _B_in["w_up"],
        "B_w_down": _B_in["w_down"],
    }

def reference(A_x, A_k_cache, A_v_cache, A_wq, A_wo, B_x, B_w_gate, B_w_up, B_w_down):
    def _A_ref(x, k_cache, v_cache, wq, wo):
        B, Sq, D = x.shape
        Hq, Dh = 32, 128
        Hkv, Sk = k_cache.shape[1], k_cache.shape[2]
        W = min(4096, max(256, Sk // 4))
        rep = Hq // Hkv
        q = (lambda x, *d: x.permute(*d))((x @ wq).reshape(B, Sq, Hq, Dh), 0, 2, 1, 3)
        k = (lambda x, n, axis: torch.repeat_interleave(x, n, dim=axis))(k_cache[:, :, Sk - W:, :], rep, axis=1)
        v = (lambda x, n, axis: torch.repeat_interleave(x, n, dim=axis))(v_cache[:, :, Sk - W:, :], rep, axis=1)
        scores = torch.einsum("bhqd,bhkd->bhqk", q, k) * (Dh ** -0.5)
        p = _softmax(scores, axis=-1)
        o = torch.einsum("bhqk,bhkd->bhqd", p, v)
        return (lambda x, *d: x.permute(*d))(o, 0, 2, 1, 3).reshape(B, Sq, Hq * Dh) @ wo

    def _B_ref(x, w_gate, w_up, w_down):
        g = torch.einsum("bsd,df->bsf", x, w_gate)
        u = torch.einsum("bsd,df->bsf", x, w_up)
        h = _sigmoid(g) * u
        return torch.einsum("bsf,fd->bsd", h, w_down)

    x = A_x
    xn = _layernorm(x, axis=-1)
    return x + _A_ref(xn, A_k_cache, A_v_cache, A_wq, A_wo) + _B_ref(xn, B_w_gate, B_w_up, B_w_down)
```

```python
import sys

NAME = "parallel_sum__sliding_block_cached__glu_gated_glu__decode_kernel"

class Asm:
    def __init__(self):
        self.lines = []
        self.uid = 0
    def __call__(self, s):
        for ln in s.strip("\n").split("\n"):
            self.lines.append("  " + ln.strip() if not ln.strip().endswith(":") else ln.strip())
    def label(self, base):
        self.uid += 1
        return f"L{base}_{self.uid}"
    def nop(self, n):
        while n > 0:
            k = min(n, 16)
            self(f"s_nop {k-1}")
            n -= k
    def text(self):
        return "\n".join(self.lines) + "\n"

def v(i, n=1):
    return f"v{i}" if n == 1 else f"v[{i}:{i+n-1}]"
def s(i, n=1):
    return f"s{i}" if n == 1 else f"s[{i}:{i+n-1}]"

WS_EPOCH = 0
WS_QG = 0x1000
WS_SG = 0x10000
WS_OG = 0x100000
WS_PG = 0x200000
WS_TS = 0x800000
TAG_DELTA = 0x9E3779B9

L_XN = 0
L_QP = 16384
L_QB = 17408
L_MX = 18432
L_LS = 18496
L_OP = 20480
L_GU = 28672
L_OV = 30720
L_FN = 30848
LDS_BYTES = 32768

def gen(opt):
    A = Asm()
    TS = opt.get("ts", False)
    NT = " nt" if opt.get("nt", False) else ""
    POLLPOS = opt.get("pollpos", 16)
    SPIN = opt.get("spin", 20000)
    ts_slots = []
    def ts(name):
        if TS:
            k = len(ts_slots)
            ts_slots.append(name)
            A(f"s_memrealtime {s(64 + 2*k, 2)}")

    sX, sK, sV, sWQ, sWO, sBX, sG, sU = 4, 6, 8, 10, 12, 14, 16, 18
    sWD, sOUT, sDBG, sWS = 20, 22, 24, 26
    sKVH, sA, sB, sS, sTAG, sWAVE, sPHI = 28, 29, 30, 31, 32, 33, 34
    sT0, sT1, sT2, sT3 = 35, 36, 37, 38
    sSPIN = 39
    sKb, sVb, sWQb, sGb, sUb, sWOb, sWDb = 40, 42, 44, 46, 48, 50, 52
    sC0 = 54
    sEX = 56
    sHASB = 58
    sJ = sA
    vTID, vL, vN, vGq = 0, 1, 2, 3
    vT0, vT1, vT2, vT3, vT4, vT5, vT6, vT7 = 4, 5, 6, 7, 8, 9, 10, 11
    vM0, vM1 = 12, 13
    vMK = 14
    vEP = 18
    vXR = 19
    vOA = 20
    vD3 = 28
    vQ = 32
    vS = 48
    vK = 64
    vV = 128
    vW = 192
    vWO = 208
    vP = 232
    vU = 248
    NV = 256

    A(f"s_cmp_ge_u32 s2, 256")
    A(f"s_cbranch_scc1 Lexit")
    A(f"s_load_dwordx16 {s(4,16)}, s[0:1], 0")
    A(f"s_load_dwordx8 {s(20,8)}, s[0:1], 64")
    ts("start")
    A(f"""
      v_and_b32 {v(vL)}, 63, v0
      v_lshrrev_b32 {v(vT0)}, 6, v0
      v_and_b32 {v(vN)}, 15, v0
      v_bfe_u32 {v(vGq)}, v0, 4, 2
      v_readfirstlane_b32 {s(sWAVE)}, {v(vT0)}
      s_and_b32 {s(sKVH)}, s2, 7
      s_lshr_b32 {s(sA)}, s2, 3
      s_lshr_b32 {s(sB)}, {s(sA)}, 4
      s_and_b32 {s(sS)}, {s(sA)}, 15
      s_mul_i32 {s(sPHI)}, {s(sKVH)}, 28
      s_add_u32 {s(sPHI)}, {s(sPHI)}, {s(sA)}
      s_cmp_lt_u32 {s(sA)}, 28
      s_cselect_b32 {s(sHASB)}, 1, 0
      s_cselect_b32 {s(sT0)}, 0, 28
      s_sub_u32 {s(sPHI)}, {s(sPHI)}, {s(sT0)}
    """)
    A(f"v_lshlrev_b32 {v(vT1)}, 4, {v(vL)}")
    A(f"""
      v_lshrrev_b32 {v(vT2)}, 1, {v(vL)}
      v_lshlrev_b32 {v(vT2)}, 13, {v(vT2)}
      v_and_b32 {v(vT3)}, 1, {v(vL)}
      v_lshl_add_u32 {v(vT2)}, {v(vT3)}, 4, {v(vT2)}
    """)
    A(f"""
      v_and_b32 {v(vT3)}, 3, {v(vN)}
      v_lshlrev_b32 {v(vT3)}, 10, {v(vT3)}
      v_lshrrev_b32 {v(vT4)}, 2, {v(vN)}
      v_lshl_add_u32 {v(vT3)}, {v(vT4)}, 8, {v(vT3)}
      v_lshl_add_u32 {v(vT3)}, {v(vGq)}, 4, {v(vT3)}
    """)
    A("s_waitcnt lgkmcnt(0)")
    A(f"""
      s_lshl_b32 {s(sT0)}, {s(sB)}, 3
      s_add_u32 {s(sT0)}, {s(sT0)}, {s(sKVH)}
      s_lshl_b32 {s(sT0)}, {s(sT0)}, 23
      s_lshl_b32 {s(sT1)}, {s(sS)}, 16
      s_add_u32 {s(sT0)}, {s(sT0)}, {s(sT1)}
      s_lshl_b32 {s(sT1)}, {s(sWAVE)}, 14
      s_add_u32 {s(sT0)}, {s(sT0)}, {s(sT1)}
      s_add_u32 {s(sT0)}, {s(sT0)}, 0x700000
      s_add_u32 {s(sKb)}, {s(sK)}, {s(sT0)}
      s_addc_u32 {s(sKb+1)}, {s(sK+1)}, 0
      s_add_u32 {s(sVb)}, {s(sV)}, {s(sT0)}
      s_addc_u32 {s(sVb+1)}, {s(sV+1)}, 0
    """)
    A(f"""
      s_lshl_b32 {s(sT0)}, {s(sKVH)}, 10
      s_lshl_b32 {s(sT1)}, {s(sJ)}, 5
      s_add_u32 {s(sT0)}, {s(sT0)}, {s(sT1)}
      s_lshl_b32 {s(sT1)}, {s(sWAVE)}, 20
      s_add_u32 {s(sT0)}, {s(sT0)}, {s(sT1)}
      s_add_u32 {s(sWQb)}, {s(sWQ)}, {s(sT0)}
      s_addc_u32 {s(sWQb+1)}, {s(sWQ+1)}, 0
    """)
    A(f"v_mov_b32 {v(vT0)}, 0")
    A(f"global_load_dword {v(vEP)}, {v(vT0)}, {s(sWS,2)} sc1")
    A(f"global_load_dwordx4 {v(vU,4)}, {v(vT1)}, {s(sX,2)}")
    A(f"global_load_dwordx4 {v(vU+4,4)}, {v(vT1)}, {s(sX,2)} offset:1024")
    for i in range(4):
        A(f"global_load_dwordx4 {v(vW+4*i,4)}, {v(vT2)}, {s(sWQb,2)}")
        if i < 3:
            A(f"v_add_u32 {v(vT2)}, 0x40000, {v(vT2)}")
    for t in range(4):
        for jj in range(4):
            A(f"global_load_dwordx4 {v(vK+16*t+4*jj,4)}, {v(vT3)}, {s(sKb,2)} offset:{64*jj}{NT}")
        if t < 3:
            A(f"v_add_u32 {v(vT3)}, 0x1000, {v(vT3)}")
    ts("issued1")
    A(f"""
      s_lshl_b32 {s(sT0)}, {s(sPHI)}, 4
      s_mul_i32 {s(sT1)}, {s(sWAVE)}, {128*3584}
      s_add_u32 {s(sT0)}, {s(sT0)}, {s(sT1)}
      s_add_u32 {s(sGb)}, {s(sG)}, {s(sT0)}
      s_addc_u32 {s(sGb+1)}, {s(sG+1)}, 0
      s_add_u32 {s(sUb)}, {s(sU)}, {s(sT0)}
      s_addc_u32 {s(sUb+1)}, {s(sU+1)}, 0
    """)
    A(f"""
      s_lshl_b32 {s(sT0)}, {s(sKVH)}, 19
      s_lshl_b32 {s(sT1)}, {s(sJ)}, 14
      s_add_u32 {s(sT0)}, {s(sT0)}, {s(sT1)}
      s_lshl_b32 {s(sT1)}, {s(sWAVE)}, 8
      s_add_u32 {s(sT0)}, {s(sT0)}, {s(sT1)}
      s_add_u32 {s(sWOb)}, {s(sWO)}, {s(sT0)}
      s_addc_u32 {s(sWOb+1)}, {s(sWO+1)}, 0
      s_lshl_b32 {s(sT0)}, {s(sPHI)}, 13
      s_add_u32 {s(sT0)}, {s(sT0)}, {s(sT1)}
      s_add_u32 {s(sWDb)}, {s(sWD)}, {s(sT0)}
      s_addc_u32 {s(sWDb+1)}, {s(sWD+1)}, 0
    """)
    A(f"""
      s_mov_b32 {s(sT0)}, 0xffff
      s_mov_b32 {s(sT1)}, 0xffff0000
      v_and_b32 {v(vT4)}, 1, {v(vL)}
      v_cmp_eq_u32 vcc, 1, {v(vT4)}
      v_mov_b32 {v(vT5)}, {s(sT0)}
      v_mov_b32 {v(vT6)}, {s(sT1)}
      v_cndmask_b32 {v(vT5)}, {v(vT5)}, {v(vT6)}, vcc
      v_and_b32 {v(vT4)}, 2, {v(vL)}
      v_cmp_eq_u32 vcc, 0, {v(vT4)}
      s_nop 1
      v_cndmask_b32 {v(vM0)}, 0, {v(vT5)}, vcc
      v_cmp_ne_u32 vcc, 0, {v(vT4)}
      s_nop 1
      v_cndmask_b32 {v(vM1)}, 0, {v(vT5)}, vcc
      v_bfe_u32 {v(vT4)}, {v(vL)}, 1, 2
    """)
    for i in range(4):
        A(f"v_cmp_eq_u32 vcc, {i}, {v(vT4)}")
        A("s_nop 1")
        A(f"v_cndmask_b32 {v(vMK+i)}, 0, {v(vT5)}, vcc")
    A("s_waitcnt vmcnt(20)")
    ts("x_arrived")
    A(f"v_readfirstlane_b32 {s(sTAG)}, {v(vEP)}")
    for k in range(4):
        A(f"v_lshlrev_b32 {v(vP+4*k)}, 16, {v(vU+k)}")
        A(f"v_lshlrev_b32 {v(vP+4*k+1)}, 16, {v(vU+4+k)}")
        A(f"v_and_b32 {v(vP+4*k+2)}, 0xffff0000, {v(vU+k)}")
        A(f"v_and_b32 {v(vP+4*k+3)}, 0xffff0000, {v(vU+4+k)}")
    A(f"s_add_u32 {s(sTAG)}, {s(sTAG)}, 0x{TAG_DELTA:x}")
    def allreduce2(r0, r1, t0, t1, op="v_add_f32"):
        for sh in (8, 4, 2, 1):
            A.nop(1)
            A(f"{op}_dpp {v(r0)}, {v(r0)}, {v(r0)} row_ror:{sh} row_mask:0xf bank_mask:0xf")
            A(f"{op}_dpp {v(r1)}, {v(r1)}, {v(r1)} row_ror:{sh} row_mask:0xf bank_mask:0xf")
        for sw in ("v_permlane16_swap_b32", "v_permlane32_swap_b32"):
            A(f"v_mov_b32 {v(t0)}, {v(r0)}")
            A(f"v_mov_b32 {v(t1)}, {v(r1)}")
            A.nop(1)
            A(f"{sw} {v(r0)}, {v(t0)}")
            A(f"{sw} {v(r1)}, {v(t1)}")
            A(f"{op} {v(r0)}, {v(r0)}, {v(t0)}")
            A(f"{op} {v(r1)}, {v(r1)}, {v(t1)}")
    A(f"v_pk_add_f32 {v(vT0,2)}, {v(vP,2)}, {v(vP+2,2)}")
    for i in range(2, 8):
        A(f"v_pk_add_f32 {v(vT0,2)}, {v(vT0,2)}, {v(vP+2*i,2)}")
    A.nop(1)
    allreduce2(vT0, vT0+1, vT2, vT3)
    A(f"v_mul_f32 {v(vT0)}, 0x3b000000, {v(vT0)}")
    A(f"v_mul_f32 {v(vT0+1)}, 0x3b000000, {v(vT0+1)}")
    A(f"v_pk_add_f32 {v(vT4,2)}, {v(vP,2)}, {v(vT0,2)} neg_lo:[0,1] neg_hi:[0,1]")
    A(f"v_pk_mul_f32 {v(vT2,2)}, {v(vT4,2)}, {v(vT4,2)}")
    for i in range(1, 8):
        A(f"v_pk_add_f32 {v(vT4,2)}, {v(vP+2*i,2)}, {v(vT0,2)} neg_lo:[0,1] neg_hi:[0,1]")
        A(f"v_pk_fma_f32 {v(vT2,2)}, {v(vT4,2)}, {v(vT4,2)}, {v(vT2,2)}")
    A.nop(1)
    allreduce2(vT2, vT3, vT4, vT5)
    A(f"v_mul_f32 {v(vT2)}, 0x3b000000, {v(vT2)}")
    A(f"v_mul_f32 {v(vT3)}, 0x3b000000, {v(vT3)}")
    def rnd_pair(r):
        A(f"v_cvt_pk_bf16_f32 {v(vT6)}, {v(r)}, {v(r+1)}")
        A(f"v_lshlrev_b32 {v(r)}, 16, {v(vT6)}")
        A(f"v_and_b32 {v(r+1)}, 0xffff0000, {v(vT6)}")
    rnd_pair(vT0)
    rnd_pair(vT2)
    A(f"v_add_f32 {v(vT2)}, 0x3727c5ac, {v(vT2)}")
    A(f"v_add_f32 {v(vT3)}, 0x3727c5ac, {v(vT3)}")
    rnd_pair(vT2)
    A(f"v_sqrt_f32 {v(vT2)}, {v(vT2)}")
    A(f"v_sqrt_f32 {v(vT3)}, {v(vT3)}")
    A.nop(1)
    rnd_pair(vT2)
    A(f"v_rcp_f32 {v(vT2)}, {v(vT2)}")
    A(f"v_rcp_f32 {v(vT3)}, {v(vT3)}")
    A.nop(1)
    for i in range(8):
        r = vP + 2*i
        A(f"v_pk_add_f32 {v(r,2)}, {v(r,2)}, {v(vT0,2)} neg_lo:[0,1] neg_hi:[0,1]")
        rnd_pair(r)
        A(f"v_pk_mul_f32 {v(r,2)}, {v(r,2)}, {v(vT2,2)}")
        rnd_pair(r)
    A(f"""
      s_lshl_b32 {s(sT0)}, {s(sWAVE)}, 12
      v_lshlrev_b32 {v(vT4)}, 6, {v(vL)}
      v_add_u32 {v(vT4)}, {s(sT0)}, {v(vT4)}
    """)
    for k in range(4):
        A(f"ds_write_b128 {v(vT4)}, {v(vP+4*k,4)} offset:{L_XN + 16*k}")
    A(f"""
      s_mul_i32 {s(sT1)}, {s(sWAVE)}, {4096 + 1024}
      v_lshrrev_b32 {v(vT4)}, 1, {v(vL)}
      v_lshlrev_b32 {v(vT4)}, 3, {v(vT4)}
      v_add_u32 {v(vT4)}, {s(sT1)}, {v(vT4)}
    """)
    for i in range(4):
        A(f"ds_read_b64 {v(vP+2*i,2)}, {v(vT4)} offset:{L_XN + 256*i}")
    A(f"""
      v_lshlrev_b32 {v(vT5)}, 3, {v(vL)}
      v_add_u32 {v(vT5)}, {s(sT1)}, {v(vT5)}
    """)
    for i in range(2):
        A(f"ds_read_b64 {v(vP+8+2*i,2)}, {v(vT5)} offset:{L_XN + 512*i}")
    ts("ln_done")
    def gemv_piece(acc, wreg, xn, first):
        for k in range(4):
            A(f"v_lshlrev_b32 {v(vU+2*(k&1))}, 16, {v(wreg+k)}")
            A(f"v_and_b32 {v(vU+2*(k&1)+1)}, 0xffff0000, {v(wreg+k)}")
            u = vU + 2*(k&1)
            if first:
                A(f"v_pk_mul_f32 {v(acc+4*k,2)}, {v(xn,2)}, {v(u,2)} op_sel:[0,0] op_sel_hi:[1,0]")
                A(f"v_pk_mul_f32 {v(acc+4*k+2,2)}, {v(xn,2)}, {v(u,2)} op_sel:[0,1] op_sel_hi:[1,1]")
            else:
                A(f"v_pk_fma_f32 {v(acc+4*k,2)}, {v(xn,2)}, {v(u,2)}, {v(acc+4*k,2)} op_sel:[0,0,0] op_sel_hi:[1,0,1]")
                A(f"v_pk_fma_f32 {v(acc+4*k+2,2)}, {v(xn,2)}, {v(u,2)}, {v(acc+4*k+2,2)} op_sel:[0,1,0] op_sel_hi:[1,1,1]")
    def treduce16(acc, full):
        A.nop(1)
        for i in range(8):
            A(f"v_permlane32_swap_b32 {v(acc+i)}, {v(acc+i+8)}")
        for i in range(8):
            A(f"v_add_f32 {v(acc+i)}, {v(acc+i)}, {v(acc+i+8)}")
        A.nop(1)
        for i in range(4):
            A(f"v_permlane16_swap_b32 {v(acc+i)}, {v(acc+i+4)}")
        for i in range(4):
            A(f"v_add_f32 {v(acc+i)}, {v(acc+i)}, {v(acc+i+4)}")
        A.nop(1)
        for i in range(2):
            A(f"v_add_f32_dpp {v(acc+4+i)}, {v(acc+i)}, {v(acc+i)} row_ror:8 row_mask:0xf bank_mask:0x3")
            A(f"v_add_f32_dpp {v(acc+4+i)}, {v(acc+i+2)}, {v(acc+i+2)} row_ror:8 row_mask:0xf bank_mask:0xc")
        A.nop(2)
        A(f"v_add_f32_dpp {v(acc)}, {v(acc+4)}, {v(acc+4)} row_shl:4 row_mask:0xf bank_mask:0x5")
        A(f"v_add_f32_dpp {v(acc)}, {v(acc+5)}, {v(acc+5)} row_shr:4 row_mask:0xf bank_mask:0xa")
        A.nop(2)
        A(f"v_add_f32_dpp {v(acc)}, {v(acc)}, {v(acc)} quad_perm:[2,3,0,1] row_mask:0xf bank_mask:0xf")
        if full:
            A.nop(2)
            A(f"v_add_f32_dpp {v(acc)}, {v(acc)}, {v(acc)} quad_perm:[1,0,3,2] row_mask:0xf bank_mask:0xf")
    A("s_waitcnt vmcnt(16) lgkmcnt(0)")
    ts("wq_arrived")
    for i in range(4):
        gemv_piece(vS, vW+4*i, vP+2*i, i == 0)
    treduce16(vS, False)
    A(f"""
      s_lshl_b32 {s(sT0)}, {s(sWAVE)}, 8
      v_lshlrev_b32 {v(vT4)}, 2, {v(vL)}
      v_add_u32 {v(vT4)}, {s(sT0)}, {v(vT4)}
      ds_write_b32 {v(vT4)}, {v(vS)} offset:{L_QP}
      s_waitcnt lgkmcnt(0)
      s_barrier
    """)
    Lq = A.label("qpub")
    A(f"""
      s_cmp_lg_u32 {s(sWAVE)}, 0
      s_cbranch_scc1 {Lq}
      v_cmp_gt_u32 vcc, 16, {v(vL)}
      s_and_saveexec_b64 {s(sEX,2)}, vcc
      v_bfe_u32 {v(vT4)}, {v(vL)}, 1, 1
      v_lshlrev_b32 {v(vT4)}, 5, {v(vT4)}
      v_and_b32 {v(vT5)}, 1, {v(vL)}
      v_lshl_add_u32 {v(vT4)}, {v(vT5)}, 4, {v(vT4)}
      v_bfe_u32 {v(vT5)}, {v(vL)}, 3, 1
      v_lshl_add_u32 {v(vT4)}, {v(vT5)}, 2, {v(vT4)}
      v_bfe_u32 {v(vT6)}, {v(vL)}, 2, 1
      v_add_u32 {v(vT4)}, {v(vT4)}, {v(vT6)}
      v_lshlrev_b32 {v(vT4)}, 2, {v(vT4)}
    """)
    for u in range(4):
        A(f"ds_read_b32 {v(vU+2*u)}, {v(vT4)} offset:{L_QP + u*256}")
        A(f"ds_read_b32 {v(vU+2*u+1)}, {v(vT4)} offset:{L_QP + u*256 + 32}")
    A(f"""
      s_lshl_b32 {s(sT0)}, {s(sKVH)}, 12
      s_lshl_b32 {s(sT1)}, {s(sJ)}, 6
      s_add_u32 {s(sT0)}, {s(sT0)}, {s(sT1)}
      s_add_u32 {s(sT0)}, {s(sT0)}, {WS_QG}
      v_lshlrev_b32 {v(vT5)}, 11, {v(vT5)}
      v_and_b32 {v(vT6)}, 7, {v(vL)}
      v_lshl_add_u32 {v(vT5)}, {v(vT6)}, 3, {v(vT5)}
      v_add_u32 {v(vT5)}, {s(sT0)}, {v(vT5)}
      s_waitcnt lgkmcnt(0)
      v_pk_add_f32 {v(vU,2)}, {v(vU,2)}, {v(vU+2,2)}
      v_pk_add_f32 {v(vU+4,2)}, {v(vU+4,2)}, {v(vU+6,2)}
      v_pk_add_f32 {v(vU,2)}, {v(vU,2)}, {v(vU+4,2)}
      v_cvt_pk_bf16_f32 {v(vT6)}, {v(vU)}, {v(vU+1)}
      v_mov_b32 {v(vT7)}, {s(sTAG)}
      global_store_dwordx2 {v(vT5)}, {v(vT6,2)}, {s(sWS,2)} sc1
      s_mov_b64 exec, {s(sEX,2)}
    """)
    A(f"{Lq}:")
    ts("q_published")
    A(f"""
      v_lshlrev_b32 {v(vT3)}, 8, {v(vGq)}
      v_lshl_add_u32 {v(vT3)}, {v(vN)}, 4, {v(vT3)}
    """)
    A(f"""
      s_lshl_b32 {s(sT0)}, {s(sKVH)}, 1
      s_add_u32 {s(sT0)}, {s(sT0)}, {s(sB)}
      s_lshl_b32 {s(sT0)}, {s(sT0)}, 11
      s_add_u32 {s(sT0)}, {s(sT0)}, {WS_QG}
      v_lshlrev_b32 {v(vT2)}, 3, v0
      v_add_u32 {v(vT2)}, {s(sT0)}, {v(vT2)}
    """)
    nv = 0
    n_after_poll = 0
    polled = False
    def issue_poll():
        A(f"global_load_dwordx2 {v(vT6,2)}, {v(vT2)}, {s(sWS,2)} sc1")
    later = []
    for t in range(4):
        for r in range(4):
            if nv == POLLPOS:
                issue_poll(); polled = True
            A(f"global_load_dwordx4 {v(vV+16*t+4*r,4)}, {v(vT3)}, {s(sVb,2)} offset:{1024*r}{NT}")
            nv += 1
            if polled: n_after_poll += 1
        if t < 3:
            A(f"v_add_u32 {v(vT3)}, 0x1000, {v(vT3)}")
    if not polled:
        issue_poll(); polled = True
    A(f"""
      s_movk_i32 {s(sT0)}, 3584
      v_mul_lo_u32 {v(vT4)}, {v(vL)}, {s(sT0)}
      global_load_dwordx4 {v(vW,4)}, {v(vT4)}, {s(sGb,2)}{NT}
      global_load_dwordx4 {v(vW+8,4)}, {v(vT4)}, {s(sUb,2)}{NT}
      v_add_u32 {v(vT4)}, {64*3584}, {v(vT4)}
      global_load_dwordx4 {v(vW+4,4)}, {v(vT4)}, {s(sGb,2)}{NT}
      global_load_dwordx4 {v(vW+12,4)}, {v(vT4)}, {s(sUb,2)}{NT}
      v_lshlrev_b32 {v(vT4)}, 10, {v(vGq)}
      v_lshl_add_u32 {v(vT4)}, {v(vN)}, 4, {v(vT4)}
      global_load_dwordx4 {v(vWO+16,4)}, {v(vT4)}, {s(sWDb,2)}{NT}
      v_add_u32 {v(vT4)}, 0x1000, {v(vT4)}
      global_load_dwordx4 {v(vWO+20,4)}, {v(vT4)}, {s(sWDb,2)}{NT}
    """)
    A(f"""
      v_lshlrev_b32 {v(vT4)}, 10, {v(vGq)}
      v_lshl_add_u32 {v(vT4)}, {v(vN)}, 4, {v(vT4)}
    """)
    for i in range(4):
        A(f"global_load_dwordx4 {v(vWO+4*i,4)}, {v(vT4)}, {s(sWOb,2)}{NT}")
        if i < 3:
            A(f"v_add_u32 {v(vT4)}, 0x1000, {v(vT4)}")
    ts("issued2")
    n_min_after_poll = n_after_poll + 10
    Lretry = A.label("qretry")
    Lok = A.label("qok")
    A(f"s_waitcnt vmcnt({n_min_after_poll})")
    A(f"""
      v_cmp_ne_u32 vcc, {s(sTAG)}, {v(vT7)}
      s_cbranch_vccz {Lok}
      s_mov_b32 {s(sSPIN)}, {SPIN}
    """)
    A(f"{Lretry}:")
    issue_poll()
    A(f"""
      s_waitcnt vmcnt(0)
      v_cmp_ne_u32 vcc, {s(sTAG)}, {v(vT7)}
      s_cbranch_vccz {Lok}
      s_sub_u32 {s(sSPIN)}, {s(sSPIN)}, 1
      s_cmp_lg_u32 {s(sSPIN)}, 0
      s_cbranch_scc1 {Lretry}
    """)
    A(f"{Lok}:")
    ts("q_polled")
    A(f"""
      v_lshlrev_b32 {v(vT4)}, 2, v0
      ds_write_b32 {v(vT4)}, {v(vT6)} offset:{L_QB}
      s_waitcnt lgkmcnt(0)
      s_barrier
    """)
    A(f"""
      v_lshrrev_b32 {v(vT4)}, 2, {v(vN)}
      v_lshlrev_b32 {v(vT4)}, 8, {v(vT4)}
      v_lshl_add_u32 {v(vT4)}, {v(vGq)}, 4, {v(vT4)}
    """)
    for jj in range(4):
        A(f"ds_read_b128 {v(vQ+4*jj,4)}, {v(vT4)} offset:{L_QB + 64*jj}")
    A("s_waitcnt lgkmcnt(0)")
    for jj in range(4):
        for t in range(4):
            c = "0" if jj == 0 else v(vS+4*t,4)
            A(f"v_mfma_f32_16x16x32_bf16 {v(vS+4*t,4)}, {v(vK+16*t+4*jj,4)}, {v(vQ+4*jj,4)}, {c}")
    A.nop(8)
    A(f"s_mov_b32 {s(sC0)}, 0x3db504f3")
    A(f"s_mov_b32 {s(sC0+1)}, 0x3db504f3")
    for i in range(8):
        r = vS + 2*i
        t = vU + (i & 3)
        A(f"v_cvt_pk_bf16_f32 {v(t)}, {v(r)}, {v(r+1)}")
        A(f"v_lshlrev_b32 {v(r)}, 16, {v(t)}")
        A(f"v_and_b32 {v(r+1)}, 0xffff0000, {v(t)}")
        A(f"v_pk_mul_f32 {v(r,2)}, {v(r,2)}, {s(sC0,2)}")
        A(f"v_cvt_pk_bf16_f32 {v(t)}, {v(r)}, {v(r+1)}")
        A(f"v_lshlrev_b32 {v(r)}, 16, {v(t)}")
        A(f"v_and_b32 {v(r+1)}, 0xffff0000, {v(t)}")
    A(f"v_max3_f32 {v(vT0)}, {v(vS)}, {v(vS+1)}, {v(vS+2)}")
    for i in range(3, 15, 2):
        A(f"v_max3_f32 {v(vT0)}, {v(vT0)}, {v(vS+i)}, {v(vS+i+1)}")
    A(f"v_max_f32 {v(vT0)}, {v(vT0)}, {v(vS+15)}")
    def xrow(r, t, op):
        for sw in ("v_permlane16_swap_b32", "v_permlane32_swap_b32"):
            A(f"v_mov_b32 {v(t)}, {v(r)}")
            A.nop(2)
            A(f"{sw} {v(r)}, {v(t)}")
            A(f"{op} {v(r)}, {v(r)}, {v(t)}")
    xrow(vT0, vT1, "v_max_f32")
    A(f"""
      v_lshrrev_b32 {v(vT2)}, 2, {v(vN)}
      v_lshlrev_b32 {v(vT2)}, 4, {v(vT2)}
      s_lshl_b32 {s(sT0)}, {s(sWAVE)}, 2
      v_add_u32 {v(vT3)}, {s(sT0)}, {v(vT2)}
      ds_write_b32 {v(vT3)}, {v(vT0)} offset:{L_MX}
      s_waitcnt lgkmcnt(0)
      s_barrier
      ds_read_b128 {v(vU,4)}, {v(vT2)} offset:{L_MX}
      s_mov_b32 {s(sC0)}, 0x3fb8aa3b
      s_waitcnt lgkmcnt(0)
      v_max3_f32 {v(vT0)}, {v(vU)}, {v(vU+1)}, {v(vU+2)}
      v_max_f32 {v(vT0)}, {v(vT0)}, {v(vU+3)}
      v_mul_f32 {v(vT0)}, {s(sC0)}, {v(vT0)}
    """)
    for i in range(16):
        A(f"v_fma_f32 {v(vS+i)}, {v(vS+i)}, {s(sC0)}, -{v(vT0)}")
    for i in range(16):
        A(f"v_exp_f32 {v(vS+i)}, {v(vS+i)}")
    A.nop(1)
    A(f"v_add_f32 {v(vT1)}, {v(vS)}, {v(vS+1)}")
    for i in range(2, 16):
        A(f"v_add_f32 {v(vT1)}, {v(vT1)}, {v(vS+i)}")
    xrow(vT1, vT4, "v_add_f32")
    A(f"ds_write_b32 {v(vT3)}, {v(vT1)} offset:{L_LS}")
    vM2 = vQ
    A(f"v_mov_b32 {v(vM2)}, {v(vT0)}")
    for i in range(16):
        A(f"v_cvt_pk_bf16_f32 {v(vS+i)}, {v(vS+i)}, {v(vS+i)}")
    for i in range(16):
        A(f"v_and_b32 {v(vK+2*i)}, {v(vS+i)}, {v(vM0)}")
        A(f"v_and_b32 {v(vK+2*i+1)}, {v(vS+i)}, {v(vM1)}")
    ts("p_done")
    for i in range(16):
        younger = (15 - i) + 10
        if POLLPOS <= i:
            pass
        else:
            pass
        A(f"s_waitcnt vmcnt({younger})")
        c0 = "0" if i == 0 else v(vOA,4)
        c1 = "0" if i == 0 else v(vOA+4,4)
        A(f"v_mfma_f32_16x16x16_bf16 {v(vOA,4)}, {v(vK+2*i,2)}, {v(vV+4*i,2)}, {c0}")
        A(f"v_mfma_f32_16x16x16_bf16 {v(vOA+4,4)}, {v(vK+2*i,2)}, {v(vV+4*i+2,2)}, {c1}")
    ts("pv_done")
    A(f"""
      s_lshl_b32 {s(sT0)}, {s(sWAVE)}, 11
      v_lshlrev_b32 {v(vT4)}, 9, {v(vGq)}
      v_lshl_add_u32 {v(vT4)}, {v(vN)}, 5, {v(vT4)}
      v_add_u32 {v(vT4)}, {s(sT0)}, {v(vT4)}
    """)
    A.nop(6)
    A(f"""
      ds_write_b128 {v(vT4)}, {v(vOA,4)} offset:{L_OP}
      ds_write_b128 {v(vT4)}, {v(vOA+4,4)} offset:{L_OP+16}
      s_waitcnt lgkmcnt(0)
      s_barrier
    """)
    A(f"""
      s_lshl_b32 {s(sT0)}, {s(sWAVE)}, 9
      v_lshlrev_b32 {v(vT4)}, 3, {v(vL)}
      v_add_u32 {v(vT4)}, {s(sT0)}, {v(vT4)}
    """)
    for u in range(4):
        A(f"ds_read_b64 {v(vU+2*u,2)}, {v(vT4)} offset:{L_OP + 2048*u}")
    A(f"""
      s_lshl_b32 {s(sT0)}, {s(sWAVE)}, 4
      v_mov_b32 {v(vT5)}, {s(sT0)}
      ds_read_b128 {v(vP,4)}, {v(vT5)} offset:{L_LS}
      ds_read_b128 {v(vP+4,4)}, {v(vT5)} offset:{L_MX}
    """)
    A(f"""
      s_lshl_b32 {s(sT0)}, {s(sKVH)}, 17
      s_lshl_b32 {s(sT1)}, {s(sA)}, 7
      s_add_u32 {s(sT0)}, {s(sT0)}, {s(sT1)}
      s_add_u32 {s(sT0)}, {s(sT0)}, {WS_OG}
      v_lshrrev_b32 {v(vT5)}, 3, v0
      v_lshlrev_b32 {v(vT5)}, 12, {v(vT5)}
      v_and_b32 {v(vT6)}, 7, v0
      v_lshl_add_u32 {v(vT5)}, {v(vT6)}, 4, {v(vT5)}
      v_add_u32 {v(vT5)}, {s(sT0)}, {v(vT5)}
      s_waitcnt lgkmcnt(0)
      v_pk_add_f32 {v(vU,2)}, {v(vU,2)}, {v(vU+2,2)}
      v_pk_add_f32 {v(vU+4,2)}, {v(vU+4,2)}, {v(vU+6,2)}
      v_pk_add_f32 {v(vU,2)}, {v(vU,2)}, {v(vU+4,2)}
      v_mov_b32 {v(vU+3)}, {s(sTAG)}
      v_mov_b32 {v(vU+2)}, {v(vU+1)}
      v_mov_b32 {v(vU+1)}, {s(sTAG)}
      global_store_dwordx4 {v(vT5)}, {v(vU,4)}, {s(sWS,2)} sc1
    """)
    A(f"""
      v_add_f32 {v(vP)}, {v(vP)}, {v(vP+1)}
      v_add_f32 {v(vP+2)}, {v(vP+2)}, {v(vP+3)}
      v_add_f32 {v(vP+2)}, {v(vP)}, {v(vP+2)}
      v_max3_f32 {v(vP)}, {v(vP+4)}, {v(vP+5)}, {v(vP+6)}
      v_max_f32 {v(vP)}, {v(vP)}, {v(vP+7)}
      s_mov_b32 {s(sC0)}, 0x3fb8aa3b
      v_mul_f32 {v(vP)}, {s(sC0)}, {v(vP)}
      v_mov_b32 {v(vP+1)}, {s(sTAG)}
      v_mov_b32 {v(vP+3)}, {s(sTAG)}
      s_lshl_b32 {s(sT0)}, {s(sKVH)}, 2
      s_add_u32 {s(sT0)}, {s(sT0)}, {s(sWAVE)}
      s_lshl_b32 {s(sT0)}, {s(sT0)}, 9
      s_lshl_b32 {s(sT1)}, {s(sA)}, 4
      s_add_u32 {s(sT0)}, {s(sT0)}, {s(sT1)}
      s_add_u32 {s(sT0)}, {s(sT0)}, {WS_SG}
      v_mov_b32 {v(vT5)}, {s(sT0)}
      v_cmp_eq_u32 vcc, 0, {v(vL)}
      s_and_saveexec_b64 {s(sEX,2)}, vcc
      global_store_dwordx4 {v(vT5)}, {v(vP,4)}, {s(sWS,2)} sc1
      s_mov_b64 exec, {s(sEX,2)}
    """)
    ts("o_published")
    A(f"v_mov_b32 {v(vD3)}, 0")
    A(f"v_mov_b32 {v(vD3+1)}, 0")
    A(f"v_mov_b32 {v(vD3+2)}, 0")
    A(f"v_mov_b32 {v(vD3+3)}, 0")
    LskipB = A.label("skipB")
    A(f"""
      s_cmp_eq_u32 {s(sHASB)}, 0
      s_cbranch_scc1 {LskipB}
    """)
    A(f"""
      s_mul_i32 {s(sT1)}, {s(sWAVE)}, {4096 + 1024}
      v_lshlrev_b32 {v(vT5)}, 3, {v(vL)}
      v_add_u32 {v(vT5)}, {s(sT1)}, {v(vT5)}
      ds_read_b64 {v(vP+8,2)}, {v(vT5)} offset:{L_XN}
      ds_read_b64 {v(vP+10,2)}, {v(vT5)} offset:{L_XN+512}
      s_waitcnt vmcnt(8) lgkmcnt(0)
    """)
    vG_, vU_ = vS, vQ
    gemv_piece(vG_, vW, vP+8, True)
    gemv_piece(vG_, vW+4, vP+10, False)
    gemv_piece(vU_, vW+8, vP+8, True)
    gemv_piece(vU_, vW+12, vP+10, False)
    treduce16(vG_, True)
    treduce16(vU_, True)
    A(f"""
      s_lshl_b32 {s(sT0)}, {s(sWAVE)}, 8
      v_lshlrev_b32 {v(vT4)}, 2, {v(vL)}
      v_add_u32 {v(vT4)}, {s(sT0)}, {v(vT4)}
      ds_write_b32 {v(vT4)}, {v(vG_)} offset:{L_GU}
      ds_write_b32 {v(vT4)}, {v(vU_)} offset:{L_GU+1024}
      s_waitcnt lgkmcnt(0)
      s_barrier
    """)
    A(f"""
      v_lshrrev_b32 {v(vT4)}, 1, {v(vGq)}
      v_lshlrev_b32 {v(vT4)}, 4, {v(vT4)}
      v_and_b32 {v(vT5)}, 1, {v(vGq)}
      v_lshl_add_u32 {v(vT4)}, {v(vT5)}, 3, {v(vT4)}
      v_bfe_u32 {v(vT5)}, {v(vL)}, 3, 1
      v_lshl_add_u32 {v(vT4)}, {v(vT5)}, 2, {v(vT4)}
      v_lshlrev_b32 {v(vT4)}, 2, {v(vT4)}
    """)
    for mat in range(2):
        for i in range(2):
            for u in range(4):
                A(f"ds_read_b32 {v(vS + mat*8 + i*4 + u)}, {v(vT4)} offset:{L_GU + mat*1024 + u*256 + i*128}")
    A("s_waitcnt lgkmcnt(0)")
    for k in range(4):
        r = vS + 4*k
        A(f"v_add_f32 {v(r)}, {v(r)}, {v(r+1)}")
        A(f"v_add_f32 {v(r+2)}, {v(r+2)}, {v(r+3)}")
        A(f"v_add_f32 {v(r)}, {v(r)}, {v(r+2)}")
    A(f"""
      v_cvt_pk_bf16_f32 {v(vT6)}, {v(vS)}, {v(vS+4)}
      v_cvt_pk_bf16_f32 {v(vT7)}, {v(vS+8)}, {v(vS+12)}
      v_lshlrev_b32 {v(vS)}, 16, {v(vT6)}
      v_and_b32 {v(vS+1)}, 0xffff0000, {v(vT6)}
      v_lshlrev_b32 {v(vS+2)}, 16, {v(vT7)}
      v_and_b32 {v(vS+3)}, 0xffff0000, {v(vT7)}
      s_mov_b32 {s(sC0)}, 0xbfb8aa3b
      v_mul_f32 {v(vS)}, {s(sC0)}, {v(vS)}
      v_mul_f32 {v(vS+1)}, {s(sC0)}, {v(vS+1)}
      v_exp_f32 {v(vS)}, {v(vS)}
      v_exp_f32 {v(vS+1)}, {v(vS+1)}
      s_nop 0
      v_add_f32 {v(vS)}, 1.0, {v(vS)}
      v_add_f32 {v(vS+1)}, 1.0, {v(vS+1)}
      v_rcp_f32 {v(vS)}, {v(vS)}
      v_rcp_f32 {v(vS+1)}, {v(vS+1)}
      s_nop 0
      v_cvt_pk_bf16_f32 {v(vT6)}, {v(vS)}, {v(vS+1)}
      v_lshlrev_b32 {v(vS)}, 16, {v(vT6)}
      v_and_b32 {v(vS+1)}, 0xffff0000, {v(vT6)}
      v_pk_mul_f32 {v(vS,2)}, {v(vS,2)}, {v(vS+2,2)}
      v_cvt_pk_bf16_f32 {v(vS+4)}, {v(vS)}, {v(vS)}
      v_cvt_pk_bf16_f32 {v(vS+5)}, {v(vS+1)}, {v(vS+1)}
    """)
    for i in range(2):
        for k in range(4):
            A(f"v_and_b32 {v(vQ+4*i+k)}, {v(vS+4+i)}, {v(vMK+k)}")
    A("s_waitcnt vmcnt(6)")
    A.nop(1)
    for i in range(2):
        A(f"v_mfma_f32_16x16x32_bf16 {v(vD3,4)}, {v(vQ+4*i,4)}, {v(vWO+16+4*i,4)}, {v(vD3,4)}")
    A(f"{LskipB}:")
    ts("b_done")
    A(f"""
      s_lshl_b32 {s(sT0)}, {s(sKVH)}, 5
      s_add_u32 {s(sT0)}, {s(sT0)}, {s(sJ)}
      s_lshl_b32 {s(sT0)}, {s(sT0)}, 12
      s_lshr_b32 {s(sT1)}, {s(sWAVE)}, 1
      s_lshl_b32 {s(sT1)}, {s(sT1)}, 11
      s_add_u32 {s(sT0)}, {s(sT0)}, {s(sT1)}
      s_and_b32 {s(sT2)}, {s(sWAVE)}, 1
      s_lshl_b32 {s(sT2)}, {s(sT2)}, 6
      s_add_u32 {s(sT0)}, {s(sT0)}, {s(sT2)}
      s_add_u32 {s(sT0)}, {s(sT0)}, {WS_OG}
      v_lshrrev_b32 {v(vT4)}, 2, {v(vL)}
      v_lshlrev_b32 {v(vT5)}, 7, {v(vT4)}
      v_and_b32 {v(vT6)}, 3, {v(vL)}
      v_lshl_add_u32 {v(vT5)}, {v(vT6)}, 4, {v(vT5)}
      v_add_u32 {v(vT5)}, {s(sT0)}, {v(vT5)}
    """)
    A(f"""
      s_lshl_b32 {s(sT0)}, {s(sKVH)}, 2
      s_lshr_b32 {s(sT2)}, {s(sJ)}, 3
      s_add_u32 {s(sT0)}, {s(sT0)}, {s(sT2)}
      s_lshl_b32 {s(sT0)}, {s(sT0)}, 9
      s_lshr_b32 {s(sT1)}, {s(sWAVE)}, 1
      s_lshl_b32 {s(sT1)}, {s(sT1)}, 8
      s_add_u32 {s(sT0)}, {s(sT0)}, {s(sT1)}
      s_add_u32 {s(sT0)}, {s(sT0)}, {WS_SG}
      v_lshlrev_b32 {v(vT4)}, 4, {v(vT4)}
      v_add_u32 {v(vT4)}, {s(sT0)}, {v(vT4)}
      s_mov_b32 {s(sSPIN)}, {SPIN}
    """)
    Lr1 = A.label("h1retry"); Lk1 = A.label("h1ok")
    A(f"{Lr1}:")
    A(f"""
      global_load_dwordx4 {v(vU,4)}, {v(vT5)}, {s(sWS,2)} sc1
      global_load_dwordx4 {v(vU+4,4)}, {v(vT4)}, {s(sWS,2)} sc1
      s_waitcnt vmcnt(0)
      v_xor_b32 {v(vT6)}, {s(sTAG)}, {v(vU+1)}
      v_xor_b32 {v(vT7)}, {s(sTAG)}, {v(vU+3)}
      v_or_b32 {v(vT6)}, {v(vT6)}, {v(vT7)}
      v_xor_b32 {v(vT7)}, {s(sTAG)}, {v(vU+5)}
      v_or_b32 {v(vT6)}, {v(vT6)}, {v(vT7)}
      v_xor_b32 {v(vT7)}, {s(sTAG)}, {v(vU+7)}
      v_or_b32 {v(vT6)}, {v(vT6)}, {v(vT7)}
      v_cmp_ne_u32 vcc, 0, {v(vT6)}
      s_cbranch_vccz {Lk1}
      s_sub_u32 {s(sSPIN)}, {s(sSPIN)}, 1
      s_cmp_lg_u32 {s(sSPIN)}, 0
      s_cbranch_scc1 {Lr1}
    """)
    A(f"{Lk1}:")
    ts("h1_done")
    def red_s(r, t, op):
        A.nop(2)
        A(f"{op}_dpp {v(r)}, {v(r)}, {v(r)} row_ror:4 row_mask:0xf bank_mask:0xf")
        A.nop(2)
        A(f"{op}_dpp {v(r)}, {v(r)}, {v(r)} row_ror:8 row_mask:0xf bank_mask:0xf")
        xrow(r, t, op)
    A(f"v_mov_b32 {v(vT0)}, {v(vU+4)}")
    red_s(vT0, vT1, "v_max_f32")
    A(f"""
      v_sub_f32 {v(vT0)}, {v(vU+4)}, {v(vT0)}
      v_exp_f32 {v(vT0)}, {v(vT0)}
      s_nop 0
      v_mul_f32 {v(vU)}, {v(vU)}, {v(vT0)}
      v_mul_f32 {v(vU+2)}, {v(vU+2)}, {v(vT0)}
      v_mul_f32 {v(vU+6)}, {v(vU+6)}, {v(vT0)}
    """)
    red_s(vU, vT1, "v_add_f32")
    red_s(vU+2, vT1, "v_add_f32")
    red_s(vU+6, vT1, "v_add_f32")
    A(f"""
      v_rcp_f32 {v(vU+6)}, {v(vU+6)}
      s_nop 0
      v_mul_f32 {v(vU)}, {v(vU)}, {v(vU+6)}
      v_mul_f32 {v(vU+2)}, {v(vU+2)}, {v(vU+6)}
      v_cvt_pk_bf16_f32 {v(vU)}, {v(vU)}, {v(vU)}
      v_cvt_pk_bf16_f32 {v(vU+2)}, {v(vU+2)}, {v(vU+2)}
    """)
    A(f"""
      s_lshr_b32 {s(sT1)}, {s(sWAVE)}, 1
      s_lshl_b32 {s(sT1)}, {s(sT1)}, 6
      s_and_b32 {s(sT2)}, {s(sWAVE)}, 1
      s_lshl_b32 {s(sT2)}, {s(sT2)}, 3
      s_add_u32 {s(sT1)}, {s(sT1)}, {s(sT2)}
      v_and_b32 {v(vT4)}, 1, {v(vL)}
      v_lshlrev_b32 {v(vT4)}, 5, {v(vT4)}
      v_bfe_u32 {v(vT5)}, {v(vL)}, 1, 1
      v_lshl_add_u32 {v(vT4)}, {v(vT5)}, 2, {v(vT4)}
      v_add_u32 {v(vT4)}, {s(sT1)}, {v(vT4)}
      ds_write_b32 {v(vT4)}, {v(vU)} offset:{L_OV}
      ds_write_b32 {v(vT4)}, {v(vU+2)} offset:{L_OV+16}
      s_waitcnt lgkmcnt(0)
      s_barrier
    """)
    A(f"""
      v_bfe_u32 {v(vT4)}, {v(vL)}, 3, 1
      v_lshlrev_b32 {v(vT4)}, 6, {v(vT4)}
      v_lshl_add_u32 {v(vT4)}, {v(vGq)}, 4, {v(vT4)}
      ds_read_b128 {v(vU,4)}, {v(vT4)} offset:{L_OV}
      s_waitcnt lgkmcnt(0)
    """)
    for i in range(4):
        for k in range(4):
            A(f"v_and_b32 {v(vQ+4*i+k)}, {v(vU+i)}, {v(vMK+k)}")
    A.nop(1)
    for i in range(4):
        A(f"v_mfma_f32_16x16x32_bf16 {v(vD3,4)}, {v(vQ+4*i,4)}, {v(vWO+4*i,4)}, {v(vD3,4)}")
    A(f"""
      s_lshl_b32 {s(sT0)}, s2, 13
      s_lshl_b32 {s(sT1)}, {s(sWAVE)}, 10
      s_add_u32 {s(sT0)}, {s(sT0)}, {s(sT1)}
      s_add_u32 {s(sT0)}, {s(sT0)}, {WS_PG}
      v_lshrrev_b32 {v(vT4)}, 1, {v(vGq)}
      v_lshlrev_b32 {v(vT4)}, 12, {v(vT4)}
      v_lshl_add_u32 {v(vT4)}, {v(vN)}, 6, {v(vT4)}
      v_and_b32 {v(vT5)}, 1, {v(vGq)}
      v_lshl_add_u32 {v(vT4)}, {v(vT5)}, 5, {v(vT4)}
      v_add_u32 {v(vT4)}, {s(sT0)}, {v(vT4)}
      v_mov_b32 {v(vU+1)}, {s(sTAG)}
      v_mov_b32 {v(vU+3)}, {s(sTAG)}
      v_mov_b32 {v(vU+5)}, {s(sTAG)}
      v_mov_b32 {v(vU+7)}, {s(sTAG)}
    """)
    A.nop(4)
    A(f"""
      v_mov_b32 {v(vU)}, {v(vD3)}
      v_mov_b32 {v(vU+2)}, {v(vD3+1)}
      v_mov_b32 {v(vU+4)}, {v(vD3+2)}
      v_mov_b32 {v(vU+6)}, {v(vD3+3)}
      global_store_dwordx4 {v(vT4)}, {v(vU,4)}, {s(sWS,2)} sc1
      global_store_dwordx4 {v(vT4)}, {v(vU+4,4)}, {s(sWS,2)} offset:16 sc1
    """)
    ts("p_published")
    Lend = "Lend"
    A(f"""
      s_cmp_lt_u32 {s(sA)}, 24
      s_cbranch_scc1 {Lend}
      s_sub_u32 {s(sT0)}, {s(sA)}, 24
      s_lshl_b32 {s(sT0)}, {s(sT0)}, 3
      s_add_u32 {s(sT3)}, {s(sT0)}, {s(sKVH)}
    """)
    A(f"""
      s_lshl_b32 {s(sT0)}, {s(sT3)}, 5
      v_and_b32 {v(vT6)}, 7, {v(vL)}
      v_lshlrev_b32 {v(vT4)}, 2, {v(vT6)}
      v_add_u32 {v(vT4)}, {s(sT0)}, {v(vT4)}
      global_load_dword {v(vXR)}, {v(vT4)}, {s(sX,2)}
      s_lshl_b32 {s(sT0)}, {s(sT3)}, 7
      s_add_u32 {s(sT0)}, {s(sT0)}, {WS_PG}
      v_lshrrev_b32 {v(vT5)}, 3, v0
      v_lshlrev_b32 {v(vT5)}, 13, {v(vT5)}
      v_lshl_add_u32 {v(vT5)}, {v(vT6)}, 4, {v(vT5)}
      v_add_u32 {v(vT5)}, {s(sT0)}, {v(vT5)}
      s_mov_b32 {s(sSPIN)}, {SPIN}
    """)
    Lr2 = A.label("h2retry"); Lk2 = A.label("h2ok")
    A(f"{Lr2}:")
    A(f"v_mov_b32 {v(vT7)}, {v(vT5)}")
    for i in range(8):
        A(f"global_load_dwordx4 {v(vK+4*i,4)}, {v(vT7)}, {s(sWS,2)} sc1")
        if i < 7:
            A(f"v_add_u32 {v(vT7)}, 0x40000, {v(vT7)}")
    A("s_waitcnt vmcnt(0)")
    A(f"v_xor_b32 {v(vT6)}, {s(sTAG)}, {v(vK+1)}")
    for i in range(8):
        for k in (1, 3):
            if i == 0 and k == 1: continue
            A(f"v_xor_b32 {v(vT7)}, {s(sTAG)}, {v(vK+4*i+k)}")
            A(f"v_or_b32 {v(vT6)}, {v(vT6)}, {v(vT7)}")
    A(f"""
      v_cmp_ne_u32 vcc, 0, {v(vT6)}
      s_cbranch_vccz {Lk2}
      s_sub_u32 {s(sSPIN)}, {s(sSPIN)}, 1
      s_cmp_lg_u32 {s(sSPIN)}, 0
      s_cbranch_scc1 {Lr2}
    """)
    A(f"{Lk2}:")
    ts("h2_done")
    for i in range(1, 8):
        A(f"v_add_f32 {v(vK)}, {v(vK)}, {v(vK+4*i)}")
        A(f"v_add_f32 {v(vK+2)}, {v(vK+2)}, {v(vK+4*i+2)}")
    for r in (vK, vK+2):
        A.nop(1)
        A(f"v_add_f32_dpp {v(r)}, {v(r)}, {v(r)} row_ror:8 row_mask:0xf bank_mask:0xf")
    xrow(vK, vT0, "v_add_f32")
    xrow(vK+2, vT0, "v_add_f32")
    A(f"""
      v_mov_b32 {v(vK+1)}, {v(vK+2)}
      s_lshl_b32 {s(sT0)}, {s(sWAVE)}, 6
      v_and_b32 {v(vT6)}, 7, {v(vL)}
      v_lshlrev_b32 {v(vT4)}, 3, {v(vT6)}
      v_add_u32 {v(vT5)}, {s(sT0)}, {v(vT4)}
      ds_write_b64 {v(vT5)}, {v(vK,2)} offset:{L_FN}
      s_waitcnt lgkmcnt(0)
      s_barrier
      s_cmp_lg_u32 {s(sWAVE)}, 0
      s_cbranch_scc1 {Lend}
    """)
    for u in range(4):
        A(f"ds_read_b64 {v(vU+2*u,2)}, {v(vT4)} offset:{L_FN + 64*u}")
    A(f"""
      v_lshlrev_b32 {v(vT0)}, 16, {v(vXR)}
      v_and_b32 {v(vT1)}, 0xffff0000, {v(vXR)}
      s_waitcnt lgkmcnt(0)
      v_pk_add_f32 {v(vU,2)}, {v(vU,2)}, {v(vU+2,2)}
      v_pk_add_f32 {v(vU+4,2)}, {v(vU+4,2)}, {v(vU+6,2)}
      v_pk_add_f32 {v(vU,2)}, {v(vU,2)}, {v(vU+4,2)}
      v_pk_add_f32 {v(vU,2)}, {v(vU,2)}, {v(vT0,2)}
      v_cvt_pk_bf16_f32 {v(vU)}, {v(vU)}, {v(vU+1)}
      s_lshl_b32 {s(sT0)}, {s(sT3)}, 5
      v_lshlrev_b32 {v(vT4)}, 2, {v(vT6)}
      v_add_u32 {v(vT4)}, {s(sT0)}, {v(vT4)}
      v_cmp_gt_u32 vcc, 8, {v(vL)}
      s_and_saveexec_b64 {s(sEX,2)}, vcc
      global_store_dword {v(vT4)}, {v(vU)}, {s(sOUT,2)}
      s_mov_b64 exec, {s(sEX,2)}
    """)
    A(f"""
      s_cmp_lg_u32 {s(sT3)}, 0
      s_cbranch_scc1 {Lend}
      v_mov_b32 {v(vT4)}, 0
      v_mov_b32 {v(vT5)}, {s(sTAG)}
      v_cmp_eq_u32 vcc, 0, {v(vL)}
      s_and_saveexec_b64 {s(sEX,2)}, vcc
      global_store_dword {v(vT4)}, {v(vT5)}, {s(sWS,2)} sc1
      s_mov_b64 exec, {s(sEX,2)}
    """)
    A(f"{Lend}:")
    if TS:
        ts("end")
        A("s_waitcnt lgkmcnt(0)")
        n = len(ts_slots)
        A(f"""
          s_lshl_b32 {s(sT0)}, s2, 2
          s_add_u32 {s(sT0)}, {s(sT0)}, {s(sWAVE)}
          s_lshl_b32 {s(sT0)}, {s(sT0)}, 7
          s_add_u32 {s(sT0)}, {s(sT0)}, {WS_TS}
          v_mov_b32 {v(vT4)}, {s(sT0)}
        """)
        for k in range(n):
            A(f"v_mov_b32 {v(vT5)}, {s(64+2*k)}")
            A(f"v_cmp_eq_u32 vcc, 0, {v(vL)}")
            A(f"s_and_saveexec_b64 {s(sEX,2)}, vcc")
            A(f"global_store_dword {v(vT4)}, {v(vT5)}, {s(sWS,2)} offset:{4*k}")
            A(f"s_mov_b64 exec, {s(sEX,2)}")
    A("Lexit:")
    A("s_endpgm")
    hdr = f"""; fused decode kernel: layernorm -> {{windowed GQA attention + out proj}} + {{sigmoid GLU}} + residual
; @launch grid=(256,1,1) block=(256,1,1) lds={LDS_BYTES}
.amdgcn_target "amdgcn-amd-amdhsa--gfx950"
.text
.globl {NAME}
.p2align 8
.type {NAME},@function
{NAME}:
"""
    ftr = f"""
.section .rodata,"a"
.p2align 6
.amdhsa_kernel {NAME}
  .amdhsa_next_free_vgpr {NV}
  .amdhsa_next_free_sgpr 102
  .amdhsa_accum_offset {NV}
  .amdhsa_group_segment_fixed_size 0
  .amdhsa_kernarg_size 96
  .amdhsa_user_sgpr_count 2
  .amdhsa_user_sgpr_kernarg_segment_ptr 1
  .amdhsa_system_sgpr_workgroup_id_x 1
.end_amdhsa_kernel
"""
    return hdr + A.text() + ftr, ts_slots

if __name__ == "__main__":
    out = sys.argv[1]
    opt = {}
    for a in sys.argv[2:]:
        k, val = a.split("=")
        opt[k] = int(val)
    txt, slots = gen(opt)
    open(out, "w").write(txt)
    print("wrote", out, "ts slots:", slots)
```

```python
import sys

NAME = "parallel_sum__sliding_block_cached__glu_gated_glu__decode_kernel"

class Asm:
    def __init__(self):
        self.lines = []
        self.uid = 0
    def __call__(self, s):
        for ln in s.strip("\n").split("\n"):
            t = ln.strip()
            if not t: continue
            self.lines.append(t if t.endswith(":") else "  " + t)
    def label(self, base):
        self.uid += 1
        return f"L{base}_{self.uid}"
    def nop(self, n):
        while n > 0:
            k = min(n, 16)
            self(f"s_nop {k-1}")
            n -= k
    def text(self):
        return "\n".join(self.lines) + "\n"

def v(i, n=1):
    return f"v{i}" if n == 1 else f"v[{i}:{i+n-1}]"
def s(i, n=1):
    return f"s{i}" if n == 1 else f"s[{i}:{i+n-1}]"

WS_EPOCH = 0
WS_SG = 0x10000
WS_QG = 0x40000
WS_GG = 0x80000
WS_OG = 0x100000
WS_PG = 0x200000
WS_TS = 0x800000
TAG_DELTA = 0x9E3779B9

L_XN = 0
L_TR = 8192
L_QB = 9216
L_MX = 10240
L_LS = 10304
L_OV = 10368
L_HV = 11264
L_FN = 10624
L_OP = 12288
LDS_BYTES = 20480

def gen(opt):
    A = Asm()
    TS = opt.get("ts", 0)
    NT = " nt" if opt.get("nt", 1) else ""
    BAR0 = opt.get("bar0", 1)
    PRIO = opt.get("prio", 1)
    ROT = opt.get("rot", 1)
    SPIN = opt.get("spin", 20000)
    WIN = opt.get("win", 0)
    NTH = opt.get("nth", 25)
    WDFIRST = opt.get("wdfirst", 0)
    QPOS = opt.get("qpos", 4)
    SLEEP = opt.get("sleep", 2)
    PBAR = opt.get("pbar", 1)
    FAST = opt.get("fast", 0)
    FS = "" if FAST else " sc1"
    LATEW = opt.get("latew", 1)
    role = ["A"]
    ts_map = {"A": ["start"], "X": ["start"]}
    def slot(name):
        if name == "start": return 0
        if name == "end": return 18
        l = ts_map[role[0]]
        if name not in l: l.append(name)
        assert len(l) <= 18
        return l.index(name)
    SKIP = {"A": {"issK", "h_done", "g_n", "barX", "issW", "issQ", "q_n", "q_done"}, "X": set()}
    def ts(name):
        if TS and name not in SKIP[role[0]]:
            k = slot(name)
            A(f"s_memrealtime {s(64 + 2*k, 2)}")

    sX, sK, sV, sWQ, sWO, sBX, sG, sU = 4, 6, 8, 10, 12, 14, 16, 18
    sWD, sOUT, sDBG, sWS = 20, 22, 24, 26
    sKVH, sA, sB, sTAG, sWAVE = 28, 29, 30, 31, 32
    sT0, sT1, sT2, sT3 = 33, 34, 35, 36
    sSPIN = 37
    sC0 = 38
    sEX = 40
    sSRK = 44
    sSRV = 48
    sWb = 52
    sWDb = 54
    sSTR = 56
    sKS = 57
    sTILE = 58
    sROLE = 62
    vL, vN, vGq = 1, 2, 3
    vT0, vT1, vT2, vT3, vT4, vT5, vT6, vT7 = 4, 5, 6, 7, 8, 9, 10, 11
    vM0, vM1 = 12, 13
    vMK = 14
    vEP = 18
    vXR = 19
    vOA = 20
    vD3 = 28
    vQ = 32
    vS = 48
    vK = 64
    vV = 128
    vWO = 192
    vP = 216
    vU = 232
    vAX = 240
    NV = 248

    def xrow(r, t, op):
        for sw in ("v_permlane16_swap_b32", "v_permlane32_swap_b32"):
            A(f"v_mov_b32 {v(t)}, {v(r)}")
            A.nop(2)
            A(f"{sw} {v(r)}, {v(t)}")
            A(f"{op} {v(r)}, {v(r)}, {v(t)}")
    def rnd_pair(r, t):
        A(f"v_cvt_pk_bf16_f32 {v(t)}, {v(r)}, {v(r+1)}")
        A(f"v_lshlrev_b32 {v(r)}, 16, {v(t)}")
        A(f"v_and_b32 {v(r+1)}, 0xffff0000, {v(t)}")
    def poll_loop(issue, tagregs, name, first_issued=False, waitn=0):
        Lr = A.label(name + "_retry"); Lk = A.label(name + "_ok")
        if TS and (name + "_n") not in SKIP[role[0]]:
            A(f"s_mov_b32 {s(64+2*slot(name + '_n'))}, 0")
        if not first_issued:
            issue()
        A(f"s_waitcnt vmcnt({waitn})")
        poll_check(tagregs, vT6, vT7)
        A(f"""
          s_cbranch_vccz {Lk}
          s_mov_b32 {s(sSPIN)}, {SPIN}
        """)
        A(f"{Lr}:")
        A("s_mov_b64 exec, vcc")
        if SLEEP: A(f"s_sleep {SLEEP}")
        issue()
        A("s_waitcnt vmcnt(0)")
        poll_check(tagregs, vT6, vT7)
        A(f"""
          s_cbranch_vccz {Lk}_x
          s_sub_u32 {s(sSPIN)}, {s(sSPIN)}, 1
          s_cmp_lg_u32 {s(sSPIN)}, 0
          s_cbranch_scc1 {Lr}
        """)
        A(f"{Lk}_x:")
        A("s_mov_b64 exec, -1")
        if TS and (name + "_n") not in SKIP[role[0]]:
            k = slot(name + "_n")
            A(f"s_sub_u32 {s(64+2*k)}, {SPIN+1}, {s(sSPIN)}")
        A(f"{Lk}:")
    def poll_check(regs, acc, tmp):
        A(f"v_xor_b32 {v(acc)}, {s(sTAG)}, {v(regs[0])}")
        for r in regs[1:]:
            A(f"v_xor_b32 {v(tmp)}, {s(sTAG)}, {v(r)}")
            A(f"v_or_b32 {v(acc)}, {v(acc)}, {v(tmp)}")
        A(f"v_cmp_ne_u32 vcc, 0, {v(acc)}")

    A("s_cmp_ge_u32 s2, 256")
    A("s_cbranch_scc1 Lexit")
    A(f"s_load_dwordx16 {s(4,16)}, s[0:1], 0")
    A(f"s_load_dwordx8 {s(20,8)}, s[0:1], 64")
    ts("start")
    A(f"""
      v_and_b32 {v(vL)}, 63, v0
      v_lshrrev_b32 {v(vT0)}, 6, v0
      v_and_b32 {v(vN)}, 15, v0
      v_bfe_u32 {v(vGq)}, v0, 4, 2
      v_readfirstlane_b32 {s(sWAVE)}, {v(vT0)}
      s_and_b32 {s(sKVH)}, s2, 7
      s_lshr_b32 {s(sA)}, s2, 3
      s_lshr_b32 {s(sB)}, {s(sA)}, 4
      v_mov_b32 {v(vT7)}, 0
      s_cmp_ge_u32 {s(sWAVE)}, 4
      s_cbranch_scc1 Laux
    """)
    A(f"""
      v_and_b32 {v(vT3)}, 3, {v(vN)}
      v_lshlrev_b32 {v(vT3)}, 10, {v(vT3)}
      v_lshrrev_b32 {v(vT4)}, 2, {v(vN)}
      v_lshl_add_u32 {v(vT3)}, {v(vT4)}, 8, {v(vT3)}
      v_lshl_add_u32 {v(vT3)}, {v(vGq)}, 4, {v(vT3)}
      v_lshlrev_b32 {v(vT2)}, 8, {v(vGq)}
      v_lshl_add_u32 {v(vT2)}, {v(vN)}, 4, {v(vT2)}
      v_lshlrev_b32 {v(vAX+5)}, 10, {v(vGq)}
      v_lshl_add_u32 {v(vAX+5)}, {v(vN)}, 4, {v(vAX+5)}
      v_add_u32 {v(vAX+6)}, 0x1000, {v(vAX+5)}
    """)
    for tau in range(4):
        if ROT:
            A(f"s_add_u32 {s(sT0)}, {s(sWAVE)}, {4*tau}")
            A(f"s_add_u32 {s(sT0)}, {s(sT0)}, {s(sA)}")
        else:
            A(f"s_lshl_b32 {s(sT0)}, {s(sWAVE)}, 2")
            A(f"s_add_u32 {s(sT0)}, {s(sT0)}, {tau}")
        A(f"s_and_b32 {s(sT0)}, {s(sT0)}, 15")
        A(f"s_lshl_b32 {s(sTILE+tau)}, {s(sT0)}, 12")
    A(f"""
      s_mov_b32 {s(sT0)}, 0xffff
      s_mov_b32 {s(sT1)}, 0xffff0000
      v_and_b32 {v(vT4)}, 1, {v(vL)}
      v_cmp_eq_u32 vcc, 1, {v(vT4)}
      v_mov_b32 {v(vT5)}, {s(sT0)}
      v_mov_b32 {v(vT6)}, {s(sT1)}
      v_cndmask_b32 {v(vT5)}, {v(vT5)}, {v(vT6)}, vcc
      v_and_b32 {v(vT4)}, 2, {v(vL)}
      v_cmp_eq_u32 vcc, 0, {v(vT4)}
      s_nop 1
      v_cndmask_b32 {v(vM0)}, 0, {v(vT5)}, vcc
      v_cmp_ne_u32 vcc, 0, {v(vT4)}
      s_nop 1
      v_cndmask_b32 {v(vM1)}, 0, {v(vT5)}, vcc
      v_bfe_u32 {v(vT4)}, {v(vL)}, 1, 2
    """)
    for i in range(4):
        A(f"v_cmp_eq_u32 vcc, {i}, {v(vT4)}")
        A("s_nop 1")
        A(f"v_cndmask_b32 {v(vMK+i)}, 0, {v(vT5)}, vcc")
    A(f"""
      s_lshl_b32 {s(sT0)}, {s(sB)}, 3
      s_add_u32 {s(sT0)}, {s(sT0)}, {s(sKVH)}
      s_lshl_b32 {s(sT0)}, {s(sT0)}, 23
      s_and_b32 {s(sT1)}, {s(sA)}, 15
      s_lshl_b32 {s(sT1)}, {s(sT1)}, 16
      s_add_u32 {s(sT0)}, {s(sT0)}, {s(sT1)}
      s_add_u32 {s(sT0)}, {s(sT0)}, 0x700000
      s_waitcnt lgkmcnt(0)
      s_add_u32 {s(sSRK)}, {s(sK)}, {s(sT0)}
      s_addc_u32 {s(sSRK+1)}, {s(sK+1)}, 0
      s_and_b32 {s(sSRK+1)}, {s(sSRK+1)}, 0xffff
      s_mov_b32 {s(sSRK+2)}, 0x10000
      s_mov_b32 {s(sSRK+3)}, 0x20000
      s_add_u32 {s(sSRV)}, {s(sV)}, {s(sT0)}
      s_addc_u32 {s(sSRV+1)}, {s(sV+1)}, 0
      s_and_b32 {s(sSRV+1)}, {s(sSRV+1)}, 0xffff
      s_mov_b32 {s(sSRV+2)}, 0x10000
      s_mov_b32 {s(sSRV+3)}, 0x20000
      s_lshl_b32 {s(sT0)}, {s(sKVH)}, 19
      s_lshl_b32 {s(sT1)}, {s(sA)}, 14
      s_add_u32 {s(sT0)}, {s(sT0)}, {s(sT1)}
      s_lshl_b32 {s(sT1)}, {s(sWAVE)}, 8
      s_add_u32 {s(sT0)}, {s(sT0)}, {s(sT1)}
      s_add_u32 {s(sWb)}, {s(sWO)}, {s(sT0)}
      s_addc_u32 {s(sWb+1)}, {s(sWO+1)}, 0
      s_cmp_lt_u32 s2, 224
      s_cselect_b32 {s(sT0)}, s2, 0
      s_lshl_b32 {s(sT0)}, {s(sT0)}, 13
      s_add_u32 {s(sT0)}, {s(sT0)}, {s(sT1)}
      s_add_u32 {s(sWDb)}, {s(sWD)}, {s(sT0)}
      s_addc_u32 {s(sWDb+1)}, {s(sWD+1)}, 0
    """)
    vAq, vAg = vAX, vAX+4
    A(f"""
      s_lshl_b32 {s(sT0)}, {s(sKVH)}, 1
      s_add_u32 {s(sT0)}, {s(sT0)}, {s(sB)}
      s_lshl_b32 {s(sT0)}, {s(sT0)}, 14
      s_lshl_b32 {s(sT1)}, {s(sWAVE)}, 10
      s_add_u32 {s(sT0)}, {s(sT0)}, {s(sT1)}
      s_add_u32 {s(sT0)}, {s(sT0)}, {WS_QG}
      v_lshlrev_b32 {v(vT4)}, 4, {v(vL)}
      v_add_u32 {v(vAq)}, {s(sT0)}, {v(vT4)}
      s_cmp_lt_u32 s2, 224
      s_cselect_b32 {s(sT0)}, s2, 0
      s_lshl_b32 {s(sT0)}, {s(sT0)}, 10
      s_add_u32 {s(sT0)}, {s(sT0)}, {WS_GG}
      v_add_u32 {v(vAg)}, {s(sT0)}, {v(vT4)}
      v_add_u32 {v(vAX+1)}, 0x1000, {v(vAq)}
      v_add_u32 {v(vAX+2)}, 0x2000, {v(vAq)}
      v_add_u32 {v(vAX+3)}, 0x3000, {v(vAq)}
    """)
    vQP = vQ
    vGP = vOA
    def issue_q():
        for ks, r in enumerate((vAq, vAX+1, vAX+2, vAX+3)):
            A(f"global_load_dwordx4 {v(vQP+4*ks,4)}, {v(r)}, {s(sWS,2)} sc1")
    def issue_g():
        A(f"global_load_dwordx4 {v(vGP,4)}, {v(vAg)}, {s(sWS,2)} sc1")
    if BAR0:
        A("s_barrier")
    nload = [0]
    def ld(txt):
        if WIN and WIN <= nload[0] < NTH:
            A(f"s_waitcnt vmcnt({WIN-1})")
        A(txt); nload[0] += 1
    ld(f"global_load_dword {v(vEP)}, {v(vT7)}, {s(sWS,2)} sc1")
    for tau in range(4):
        for jj in range(4):
            ld(f"buffer_load_dwordx4 {v(vK+16*tau+4*jj,4)}, {v(vT3)}, {s(sSRK,4)}, {s(sTILE+tau)} offen offset:{64*jj}{NT}")
    ts("issK")
    if PBAR: A("s_barrier")
    def ld_wd():
        ld(f"global_load_dwordx4 {v(vWO+16,4)}, {v(vAX+5)}, {s(sWDb,2)}{NT}")
        ld(f"global_load_dwordx4 {v(vWO+20,4)}, {v(vAX+6)}, {s(sWDb,2)}{NT}")
    def ld_wo():
        for i in range(4):
            if i == 0:
                ld(f"global_load_dwordx4 {v(vWO,4)}, {v(vAX+5)}, {s(sWb,2)}{NT}")
            elif i == 1:
                ld(f"global_load_dwordx4 {v(vWO+4,4)}, {v(vAX+6)}, {s(sWb,2)}{NT}")
            else:
                A(f"v_add_u32 {v(vAX+7)}, {0x1000*i}, {v(vAX+5)}")
                ld(f"global_load_dwordx4 {v(vWO+4*i,4)}, {v(vAX+7)}, {s(sWb,2)}{NT}")
    nv = 0
    for tau in range(4):
        for r in range(4):
            if nv == QPOS:
                if PBAR and QPOS > 0: A("s_barrier")
                issue_q(); issue_g(); ts("issQ")
                if PBAR: A("s_barrier")
            ld(f"buffer_load_dwordx4 {v(vV+16*tau+4*r,4)}, {v(vT2)}, {s(sSRV,4)}, {s(sTILE+tau)} offen offset:{1024*r}{NT}")
            nv += 1
    ts("issV")
    if not LATEW:
        if PBAR: A("s_barrier")
        ld_wd(); ld_wo()
    ts("issW")
    AFTER_V0 = 0 if LATEW else 6
    AFTER_V = 6
    AFTER_Q = (16 - QPOS) + AFTER_V0
    A(f"""
      s_waitcnt vmcnt({AFTER_Q + 5})
      v_readfirstlane_b32 {s(sTAG)}, {v(vEP)}
      s_add_u32 {s(sTAG)}, {s(sTAG)}, 0x{TAG_DELTA:x}
    """)
    poll_loop(issue_q, [vQP+4*i+k for i in range(4) for k in (1, 3)], "q", first_issued=True, waitn=AFTER_Q + 1)
    ts("q_done")
    A(f"""
      v_add_f32 {v(vQP)}, {v(vQP)}, {v(vQP+4)}
      v_add_f32 {v(vQP+2)}, {v(vQP+2)}, {v(vQP+6)}
      v_add_f32 {v(vQP+8)}, {v(vQP+8)}, {v(vQP+12)}
      v_add_f32 {v(vQP+10)}, {v(vQP+10)}, {v(vQP+14)}
      v_add_f32 {v(vQP)}, {v(vQP)}, {v(vQP+8)}
      v_add_f32 {v(vQP+2)}, {v(vQP+2)}, {v(vQP+10)}
      v_cvt_pk_bf16_f32 {v(vQP)}, {v(vQP)}, {v(vQP+2)}
      v_lshlrev_b32 {v(vT4)}, 2, v0
      ds_write_b32 {v(vT4)}, {v(vQP)} offset:{L_QB}
      v_lshrrev_b32 {v(vT4)}, 2, {v(vN)}
      v_lshlrev_b32 {v(vT4)}, 8, {v(vT4)}
      v_lshl_add_u32 {v(vT4)}, {v(vGq)}, 4, {v(vT4)}
      s_waitcnt lgkmcnt(0)
      s_barrier
    """)
    ts("barX")
    for jj in range(4):
        A(f"ds_read_b128 {v(vQ+4*jj,4)}, {v(vT4)} offset:{L_QB + 64*jj}")
    A("s_waitcnt lgkmcnt(0)")
    for jj in range(4):
        for t in range(4):
            c = "0" if jj == 0 else v(vS+4*t,4)
            A(f"v_mfma_f32_16x16x32_bf16 {v(vS+4*t,4)}, {v(vK+16*t+4*jj,4)}, {v(vQ+4*jj,4)}, {c}")
    A(f"s_mov_b32 {s(sC0)}, 0x3db504f3")
    A(f"s_mov_b32 {s(sC0+1)}, 0x3db504f3")
    A.nop(6)
    for i in range(8):
        r = vS + 2*i
        t = vU + (i & 3)
        A(f"v_cvt_pk_bf16_f32 {v(t)}, {v(r)}, {v(r+1)}")
        A(f"v_lshlrev_b32 {v(r)}, 16, {v(t)}")
        A(f"v_and_b32 {v(r+1)}, 0xffff0000, {v(t)}")
        A(f"v_pk_mul_f32 {v(r,2)}, {v(r,2)}, {s(sC0,2)}")
        A(f"v_cvt_pk_bf16_f32 {v(t)}, {v(r)}, {v(r+1)}")
        A(f"v_lshlrev_b32 {v(r)}, 16, {v(t)}")
        A(f"v_and_b32 {v(r+1)}, 0xffff0000, {v(t)}")
    A(f"v_max3_f32 {v(vT0)}, {v(vS)}, {v(vS+1)}, {v(vS+2)}")
    for i in range(3, 15, 2):
        A(f"v_max3_f32 {v(vT0)}, {v(vT0)}, {v(vS+i)}, {v(vS+i+1)}")
    A(f"v_max_f32 {v(vT0)}, {v(vT0)}, {v(vS+15)}")
    xrow(vT0, vT1, "v_max_f32")
    A(f"""
      v_lshrrev_b32 {v(vT2)}, 2, {v(vN)}
      v_lshlrev_b32 {v(vT2)}, 4, {v(vT2)}
      s_lshl_b32 {s(sT0)}, {s(sWAVE)}, 2
      v_add_u32 {v(vT3)}, {s(sT0)}, {v(vT2)}
      ds_write_b32 {v(vT3)}, {v(vT0)} offset:{L_MX}
      s_waitcnt lgkmcnt(0)
      s_barrier
      ds_read_b128 {v(vU,4)}, {v(vT2)} offset:{L_MX}
      s_mov_b32 {s(sC0)}, 0x3fb8aa3b
      s_waitcnt lgkmcnt(0)
      v_max3_f32 {v(vT0)}, {v(vU)}, {v(vU+1)}, {v(vU+2)}
      v_max_f32 {v(vT0)}, {v(vT0)}, {v(vU+3)}
      v_mul_f32 {v(vT0)}, {s(sC0)}, {v(vT0)}
    """)
    for i in range(16):
        A(f"v_fma_f32 {v(vS+i)}, {v(vS+i)}, {s(sC0)}, -{v(vT0)}")
    for i in range(16):
        A(f"v_exp_f32 {v(vS+i)}, {v(vS+i)}")
    A.nop(1)
    A(f"v_add_f32 {v(vT1)}, {v(vS)}, {v(vS+1)}")
    for i in range(2, 16):
        A(f"v_add_f32 {v(vT1)}, {v(vT1)}, {v(vS+i)}")
    xrow(vT1, vT4, "v_add_f32")
    A(f"ds_write_b32 {v(vT3)}, {v(vT1)} offset:{L_LS}")
    for i in range(16):
        A(f"v_cvt_pk_bf16_f32 {v(vS+i)}, {v(vS+i)}, {v(vS+i)}")
    for i in range(16):
        A(f"v_and_b32 {v(vK+2*i)}, {v(vS+i)}, {v(vM0)}")
        A(f"v_and_b32 {v(vK+2*i+1)}, {v(vS+i)}, {v(vM1)}")
    A(f"""
      s_waitcnt lgkmcnt(0)
      s_barrier
      s_lshl_b32 {s(sT0)}, {s(sWAVE)}, 4
      v_mov_b32 {v(vT6)}, {s(sT0)}
      ds_read_b128 {v(vP+4,4)}, {v(vT6)} offset:{L_LS}
      ds_read_b128 {v(vP+8,4)}, {v(vT6)} offset:{L_MX}
      s_lshl_b32 {s(sT0)}, {s(sKVH)}, 2
      s_add_u32 {s(sT0)}, {s(sT0)}, {s(sWAVE)}
      s_lshl_b32 {s(sT0)}, {s(sT0)}, 9
      s_lshl_b32 {s(sT1)}, {s(sA)}, 4
      s_add_u32 {s(sT0)}, {s(sT0)}, {s(sT1)}
      s_add_u32 {s(sT0)}, {s(sT0)}, {WS_SG}
      v_mov_b32 {v(vT5)}, {s(sT0)}
      s_waitcnt lgkmcnt(0)
      v_add_f32 {v(vP+4)}, {v(vP+4)}, {v(vP+5)}
      v_add_f32 {v(vP+6)}, {v(vP+6)}, {v(vP+7)}
      v_add_f32 {v(vP+6)}, {v(vP+4)}, {v(vP+6)}
      v_max3_f32 {v(vP+4)}, {v(vP+8)}, {v(vP+9)}, {v(vP+10)}
      v_max_f32 {v(vP+4)}, {v(vP+4)}, {v(vP+11)}
      v_mul_f32 {v(vP+4)}, {s(sC0)}, {v(vP+4)}
      v_mov_b32 {v(vP+5)}, {s(sTAG)}
      v_mov_b32 {v(vP+7)}, {s(sTAG)}
      v_cmp_eq_u32 vcc, 0, {v(vL)}
      s_and_saveexec_b64 {s(sEX,2)}, vcc
      global_store_dwordx4 {v(vT5)}, {v(vP+4,4)}, {s(sWS,2)}{FS}
      s_mov_b64 exec, {s(sEX,2)}
    """)
    ts("p_done")
    if LATEW:
        ld_wd(); ld_wo()
    LnoG = A.label("noG")
    A(f"""
      s_cmp_ge_u32 s2, 224
      s_cbranch_scc1 {LnoG}
    """)
    poll_loop(issue_g, [vGP+1, vGP+3], "g", first_issued=True, waitn=(16 - QPOS) + 6 + 1)
    for r in (vGP, vGP+2):
        A.nop(2)
        A(f"v_add_f32_dpp {v(r)}, {v(r)}, {v(r)} row_ror:8 row_mask:0xf bank_mask:0xf")
        A(f"v_mov_b32 {v(vT0)}, {v(r)}")
        A.nop(2)
        A(f"v_permlane16_swap_b32 {v(r)}, {v(vT0)}")
        A(f"v_add_f32 {v(r)}, {v(r)}, {v(vT0)}")
    for r, tt in ((vGP, vGP+1), (vGP+2, vGP+3)):
        A(f"v_mov_b32 {v(tt)}, {v(r)}")
        A.nop(2)
        A(f"v_permlane32_swap_b32 {v(r)}, {v(tt)}")
    A(f"""
      v_cvt_pk_bf16_f32 {v(vT6)}, {v(vGP)}, {v(vGP+2)}
      v_cvt_pk_bf16_f32 {v(vT7)}, {v(vGP+1)}, {v(vGP+3)}
      v_lshlrev_b32 {v(vS+8)}, 16, {v(vT6)}
      v_and_b32 {v(vS+9)}, 0xffff0000, {v(vT6)}
      v_lshlrev_b32 {v(vS+10)}, 16, {v(vT7)}
      v_and_b32 {v(vS+11)}, 0xffff0000, {v(vT7)}
      s_mov_b32 {s(sC0)}, 0xbfb8aa3b
      v_mul_f32 {v(vS+8)}, {s(sC0)}, {v(vS+8)}
      v_mul_f32 {v(vS+9)}, {s(sC0)}, {v(vS+9)}
      v_exp_f32 {v(vS+8)}, {v(vS+8)}
      v_exp_f32 {v(vS+9)}, {v(vS+9)}
      s_nop 0
      v_add_f32 {v(vS+8)}, 1.0, {v(vS+8)}
      v_add_f32 {v(vS+9)}, 1.0, {v(vS+9)}
      v_rcp_f32 {v(vS+8)}, {v(vS+8)}
      v_rcp_f32 {v(vS+9)}, {v(vS+9)}
      s_nop 0
      v_cvt_pk_bf16_f32 {v(vT6)}, {v(vS+8)}, {v(vS+9)}
      v_lshlrev_b32 {v(vS+8)}, 16, {v(vT6)}
      v_and_b32 {v(vS+9)}, 0xffff0000, {v(vT6)}
      v_pk_mul_f32 {v(vS+8,2)}, {v(vS+8,2)}, {v(vS+10,2)}
      v_cvt_pk_bf16_f32 {v(vS+12)}, {v(vS+8)}, {v(vS+8)}
      v_cvt_pk_bf16_f32 {v(vS+13)}, {v(vS+9)}, {v(vS+9)}
    """)
    A(f"""
      s_lshl_b32 {s(sT0)}, {s(sWAVE)}, 7
      v_bfe_u32 {v(vT4)}, {v(vL)}, 2, 1
      v_lshlrev_b32 {v(vT4)}, 6, {v(vT4)}
      v_and_b32 {v(vT5)}, 1, {v(vL)}
      v_lshl_add_u32 {v(vT4)}, {v(vT5)}, 5, {v(vT4)}
      v_bfe_u32 {v(vT5)}, {v(vL)}, 1, 1
      v_lshl_add_u32 {v(vT4)}, {v(vT5)}, 2, {v(vT4)}
      v_add_u32 {v(vT4)}, {s(sT0)}, {v(vT4)}
      ds_write_b32 {v(vT4)}, {v(vS+12)} offset:{L_HV}
      ds_write_b32 {v(vT4)}, {v(vS+13)} offset:{L_HV+16}
      v_bfe_u32 {v(vT5)}, {v(vL)}, 3, 1
      v_lshlrev_b32 {v(vT5)}, 6, {v(vT5)}
      v_lshl_add_u32 {v(vT5)}, {v(vGq)}, 4, {v(vT5)}
      v_add_u32 {v(vT5)}, {s(sT0)}, {v(vT5)}
      ds_read_b64 {v(vP,2)}, {v(vT5)} offset:{L_HV}
      s_waitcnt lgkmcnt(0)
    """)
    for i in range(2):
        for k in range(4):
            A(f"v_and_b32 {v(vQ+4*i+k)}, {v(vP+i)}, {v(vMK+k)}")
    A(f"{LnoG}:")
    ts("h_done")
    vAo, vAr0, vAr1, vAog, vAst, vApo, vApg = vP+12, vP+13, vP+14, vP+15, vXR+0, vEP, vS
    vApo, vApg = vS, vS+1
    A(f"""
      s_lshl_b32 {s(sT0)}, {s(sWAVE)}, 11
      v_lshlrev_b32 {v(vAo)}, 9, {v(vGq)}
      v_lshl_add_u32 {v(vAo)}, {v(vN)}, 5, {v(vAo)}
      v_add_u32 {v(vAo)}, {s(sT0)}, {v(vAo)}
    """)
    A(f"""
      v_lshrrev_b32 {v(vT4)}, 3, {v(vL)}
      v_lshlrev_b32 {v(vT4)}, 4, {v(vT4)}
      v_and_b32 {v(vT5)}, 1, {v(vL)}
      v_lshl_add_u32 {v(vT4)}, {v(vT5)}, 3, {v(vT4)}
      v_bfe_u32 {v(vT5)}, {v(vL)}, 1, 2
      v_add_u32 {v(vT4)}, {v(vT4)}, {v(vT5)}
      v_lshlrev_b32 {v(vT4)}, 2, {v(vT4)}
      s_lshl_b32 {s(sT0)}, {s(sWAVE)}, 9
      s_add_u32 {s(sT0)}, {s(sT0)}, {L_OP}
      v_add_u32 {v(vAr0)}, {s(sT0)}, {v(vT4)}
      v_add_u32 {v(vAr1)}, 16, {v(vAr0)}
    """)
    A(f"""
      s_lshl_b32 {s(sT0)}, {s(sKVH)}, 16
      s_lshl_b32 {s(sT1)}, {s(sWAVE)}, 14
      s_add_u32 {s(sT0)}, {s(sT0)}, {s(sT1)}
      s_lshl_b32 {s(sT1)}, {s(sA)}, 6
      s_add_u32 {s(sT0)}, {s(sT0)}, {s(sT1)}
      s_add_u32 {s(sT0)}, {s(sT0)}, {WS_OG}
      v_lshrrev_b32 {v(vT4)}, 3, {v(vL)}
      v_lshlrev_b32 {v(vT4)}, 11, {v(vT4)}
      v_and_b32 {v(vT5)}, 7, {v(vL)}
      v_lshl_add_u32 {v(vT4)}, {v(vT5)}, 3, {v(vT4)}
      v_add_u32 {v(vAog)}, {s(sT0)}, {v(vT4)}
    """)
    A(f"""
      s_lshl_b32 {s(sT0)}, {s(sKVH)}, 2
      s_lshr_b32 {s(sT1)}, {s(sA)}, 3
      s_add_u32 {s(sT0)}, {s(sT0)}, {s(sT1)}
      s_lshl_b32 {s(sT0)}, {s(sT0)}, 9
      s_add_u32 {s(sT0)}, {s(sT0)}, {WS_SG}
      v_bfe_u32 {v(vT4)}, {v(vL)}, 3, 1
      v_lshlrev_b32 {v(vAst)}, 8, {v(vT4)}
      v_lshl_add_u32 {v(vAst)}, {v(vT5)}, 4, {v(vAst)}
      v_add_u32 {v(vAst)}, {s(sT0)}, {v(vAst)}
      s_lshl_b32 {s(sT0)}, {s(sKVH)}, 5
      s_add_u32 {s(sT0)}, {s(sT0)}, {s(sA)}
      s_lshl_b32 {s(sT0)}, {s(sT0)}, 11
      s_add_u32 {s(sT0)}, {s(sT0)}, {WS_OG}
      v_lshlrev_b32 {v(vApo)}, 10, {v(vT4)}
      v_lshl_add_u32 {v(vApo)}, {v(vT5)}, 6, {v(vApo)}
      v_lshl_add_u32 {v(vApo)}, {v(vGq)}, 4, {v(vApo)}
      v_add_u32 {v(vApo)}, {s(sT0)}, {v(vApo)}
    """)
    A(f"""
      s_lshl_b32 {s(sT0)}, s2, 12
      s_lshl_b32 {s(sT1)}, {s(sWAVE)}, 9
      s_add_u32 {s(sT0)}, {s(sT0)}, {s(sT1)}
      s_add_u32 {s(sT0)}, {s(sT0)}, {WS_PG}
      v_lshrrev_b32 {v(vT4)}, 1, {v(vGq)}
      v_lshlrev_b32 {v(vT4)}, 11, {v(vT4)}
      v_lshl_add_u32 {v(vT4)}, {v(vN)}, 5, {v(vT4)}
      v_and_b32 {v(vT5)}, 1, {v(vGq)}
      v_lshl_add_u32 {v(vT4)}, {v(vT5)}, 4, {v(vT4)}
      v_add_u32 {v(vApg)}, {s(sT0)}, {v(vT4)}
      v_mov_b32 {v(vD3)}, 0
      v_mov_b32 {v(vD3+1)}, 0
      v_mov_b32 {v(vD3+2)}, 0
      v_mov_b32 {v(vD3+3)}, 0
      v_mov_b32 {v(vT1)}, {s(sTAG)}
    """)
    for i in range(16):
        A(f"s_waitcnt vmcnt({(15 - i) + AFTER_V + 1})")
        c0 = "0" if i == 0 else v(vOA,4)
        c1 = "0" if i == 0 else v(vOA+4,4)
        A(f"v_mfma_f32_16x16x16_bf16 {v(vOA,4)}, {v(vK+2*i,2)}, {v(vV+4*i,2)}, {c0}")
        A(f"v_mfma_f32_16x16x16_bf16 {v(vOA+4,4)}, {v(vK+2*i,2)}, {v(vV+4*i+2,2)}, {c1}")
    ts("pv_done")
    A.nop(8)
    A(f"""
      ds_write_b128 {v(vAo)}, {v(vOA,4)} offset:{L_OP}
      ds_write_b128 {v(vAo)}, {v(vOA+4,4)} offset:{L_OP+16}
      s_waitcnt lgkmcnt(0)
      s_barrier
      ds_read2st64_b32 {v(vU,2)}, {v(vAr0)} offset0:0 offset1:8
      ds_read2st64_b32 {v(vU+2,2)}, {v(vAr0)} offset0:16 offset1:24
      ds_read2st64_b32 {v(vU+4,2)}, {v(vAr1)} offset0:0 offset1:8
      ds_read2st64_b32 {v(vU+6,2)}, {v(vAr1)} offset0:16 offset1:24
      s_waitcnt lgkmcnt(2)
      v_pk_add_f32 {v(vU,2)}, {v(vU,2)}, {v(vU+2,2)}
      s_waitcnt lgkmcnt(0)
      v_pk_add_f32 {v(vU+4,2)}, {v(vU+4,2)}, {v(vU+6,2)}
      v_add_f32 {v(vU)}, {v(vU)}, {v(vU+1)}
      v_add_f32 {v(vU+4)}, {v(vU+4)}, {v(vU+5)}
      v_cvt_pk_bf16_f32 {v(vT0)}, {v(vU)}, {v(vU+4)}
      global_store_dwordx2 {v(vAog)}, {v(vT0,2)}, {s(sWS,2)}{FS}
    """)
    ts("o_published")
    vST = vV
    vOO = vV + 8
    def issue_st():
        A(f"global_load_dwordx4 {v(vST,4)}, {v(vAst)}, {s(sWS,2)} sc1")
        A(f"global_load_dwordx4 {v(vST+4,4)}, {v(vAst)}, {s(sWS,2)} offset:128 sc1")
    def issue_o():
        A(f"global_load_dwordx4 {v(vOO,4)}, {v(vApo)}, {s(sWS,2)} sc1")
        A(f"global_load_dwordx4 {v(vOO+4,4)}, {v(vApo)}, {s(sWS,2)} offset:512 sc1")
    issue_st()
    issue_o()
    if TS:
        A("s_waitcnt vmcnt(5)")
        ts("w_arr")
        A("s_waitcnt vmcnt(4)")
        ts("o_ack")
        A("s_waitcnt vmcnt(2)")
        ts("st_ret")
        A("s_waitcnt vmcnt(0)")
        ts("o_ret")
    poll_loop(issue_st, [vST+1, vST+3, vST+5, vST+7], "st", first_issued=True, waitn=2)
    ts("st_done")
    LskipB = A.label("skipB")
    A(f"""
      s_cmp_ge_u32 s2, 224
      s_cbranch_scc1 {LskipB}
    """)
    for i in range(2):
        A(f"v_mfma_f32_16x16x32_bf16 {v(vD3,4)}, {v(vQ+4*i,4)}, {v(vWO+16+4*i,4)}, {v(vD3,4)}")
    A(f"{LskipB}:")
    def red8(regs, op):
        n = len(regs)
        for ctrl in ("quad_perm:[1,0,3,2]", "quad_perm:[2,3,0,1]", "row_half_mirror"):
            if n < 3: A.nop(3 - n)
            for r in regs:
                A(f"{op}_dpp {v(r)}, {v(r)}, {v(r)} {ctrl} row_mask:0xf bank_mask:0xf")
    A(f"v_max_f32 {v(vT2)}, {v(vST)}, {v(vST+4)}")
    A.nop(1)
    red8([vT2], "v_max_f32")
    A(f"""
      v_sub_f32 {v(vT3)}, {v(vST)}, {v(vT2)}
      v_sub_f32 {v(vT4)}, {v(vST+4)}, {v(vT2)}
      v_exp_f32 {v(vT3)}, {v(vT3)}
      v_exp_f32 {v(vT4)}, {v(vT4)}
      s_nop 0
      v_mul_f32 {v(vT2)}, {v(vT3)}, {v(vST+2)}
      v_fma_f32 {v(vT2)}, {v(vT4)}, {v(vST+6)}, {v(vT2)}
      s_nop 1
    """)
    red8([vT2], "v_add_f32")
    A(f"""
      v_rcp_f32 {v(vT2)}, {v(vT2)}
      s_nop 0
      v_mul_f32 {v(vT3)}, {v(vT3)}, {v(vT2)}
      v_mul_f32 {v(vT4)}, {v(vT4)}, {v(vT2)}
    """)
    poll_loop(issue_o, [vOO+1, vOO+3, vOO+5, vOO+7], "h1", first_issued=True, waitn=0)
    ts("h1_done")
    A(f"""
      v_lshlrev_b32 {v(vU)}, 16, {v(vOO)}
      v_and_b32 {v(vU+1)}, 0xffff0000, {v(vOO)}
      v_lshlrev_b32 {v(vU+2)}, 16, {v(vOO+2)}
      v_and_b32 {v(vU+3)}, 0xffff0000, {v(vOO+2)}
      v_lshlrev_b32 {v(vU+4)}, 16, {v(vOO+4)}
      v_and_b32 {v(vU+5)}, 0xffff0000, {v(vOO+4)}
      v_lshlrev_b32 {v(vU+6)}, 16, {v(vOO+6)}
      v_and_b32 {v(vU+7)}, 0xffff0000, {v(vOO+6)}
    """)
    for i in range(4):
        A(f"v_mul_f32 {v(vU+i)}, {v(vU+i)}, {v(vT3)}")
    for i in range(4):
        A(f"v_fma_f32 {v(vU+i)}, {v(vU+4+i)}, {v(vT4)}, {v(vU+i)}")
    red8([vU, vU+1, vU+2, vU+3], "v_add_f32")
    for i in range(4):
        A(f"v_cvt_pk_bf16_f32 {v(vU+i)}, {v(vU+i)}, {v(vU+i)}")
    for i in range(4):
        for k in range(4):
            A(f"v_and_b32 {v(vQ+4*i+k)}, {v(vU+i)}, {v(vMK+k)}")
    A.nop(1)
    for i in range(4):
        A(f"v_mfma_f32_16x16x32_bf16 {v(vD3,4)}, {v(vQ+4*i,4)}, {v(vWO+4*i,4)}, {v(vD3,4)}")
    A(f"""
      v_mov_b32 {v(vU+1)}, {s(sTAG)}
      v_mov_b32 {v(vU+3)}, {s(sTAG)}
    """)
    A.nop(6)
    A(f"""
      v_cvt_pk_bf16_f32 {v(vU)}, {v(vD3)}, {v(vD3+1)}
      v_cvt_pk_bf16_f32 {v(vU+2)}, {v(vD3+2)}, {v(vD3+3)}
      global_store_dwordx4 {v(vApg)}, {v(vU,4)}, {s(sWS,2)} sc1
    """)
    ts("p_published")
    A(f"""
      s_cmp_lt_u32 {s(sA)}, 24
      s_cbranch_scc1 Lend
      s_sub_u32 {s(sT0)}, {s(sA)}, 24
      s_lshl_b32 {s(sT0)}, {s(sT0)}, 3
      s_add_u32 {s(sT3)}, {s(sT0)}, {s(sKVH)}
      s_lshl_b32 {s(sT0)}, {s(sT3)}, 5
      v_lshlrev_b32 {v(vT4)}, 1, {v(vN)}
      v_add_u32 {v(vT4)}, {s(sT0)}, {v(vT4)}
      global_load_ushort {v(vXR)}, {v(vT4)}, {s(sX,2)}
      s_lshl_b32 {s(sT0)}, {s(sT3)}, 6
      s_add_u32 {s(sT0)}, {s(sT0)}, {WS_PG}
      v_lshrrev_b32 {v(vT5)}, 2, v0
      v_lshlrev_b32 {v(vT5)}, 12, {v(vT5)}
      v_and_b32 {v(vT0)}, 3, {v(vL)}
      v_lshl_add_u32 {v(vT5)}, {v(vT0)}, 4, {v(vT5)}
      v_add_u32 {v(vT5)}, {s(sT0)}, {v(vT5)}
      v_add_u32 {v(vT1)}, 0x40000, {v(vT5)}
      v_add_u32 {v(vT2)}, 0x80000, {v(vT5)}
      v_add_u32 {v(vT3)}, 0xc0000, {v(vT5)}
    """)
    def issue_p():
        for i, r in enumerate((vT5, vT1, vT2, vT3)):
            A(f"global_load_dwordx4 {v(vK+4*i,4)}, {v(r)}, {s(sWS,2)} sc1")
    poll_loop(issue_p, [vK+4*i+k for i in range(4) for k in (1, 3)], "h2")
    ts("h2_done")
    for i in range(4):
        A(f"v_lshlrev_b32 {v(vV+4*i)}, 16, {v(vK+4*i)}")
        A(f"v_and_b32 {v(vV+4*i+1)}, 0xffff0000, {v(vK+4*i)}")
        A(f"v_lshlrev_b32 {v(vV+4*i+2)}, 16, {v(vK+4*i+2)}")
        A(f"v_and_b32 {v(vV+4*i+3)}, 0xffff0000, {v(vK+4*i+2)}")
    for h in range(2):
        A(f"v_pk_add_f32 {v(vV+2*h,2)}, {v(vV+2*h,2)}, {v(vV+4+2*h,2)}")
        A(f"v_pk_add_f32 {v(vV+8+2*h,2)}, {v(vV+8+2*h,2)}, {v(vV+12+2*h,2)}")
    for h in range(2):
        A(f"v_pk_add_f32 {v(vV+2*h,2)}, {v(vV+2*h,2)}, {v(vV+8+2*h,2)}")
    A.nop(2)
    A(f"v_permlane32_swap_b32 {v(vV)}, {v(vV+2)}")
    A(f"v_permlane32_swap_b32 {v(vV+1)}, {v(vV+3)}")
    A(f"v_add_f32 {v(vV)}, {v(vV)}, {v(vV+2)}")
    A(f"v_add_f32 {v(vV+1)}, {v(vV+1)}, {v(vV+3)}")
    A.nop(2)
    A(f"v_permlane16_swap_b32 {v(vV)}, {v(vV+1)}")
    A(f"v_add_f32 {v(vV)}, {v(vV)}, {v(vV+1)}")
    A.nop(2)
    A(f"v_add_f32_dpp {v(vV)}, {v(vV)}, {v(vV)} row_ror:4 row_mask:0xf bank_mask:0xf")
    A.nop(2)
    A(f"v_add_f32_dpp {v(vV)}, {v(vV)}, {v(vV)} row_ror:8 row_mask:0xf bank_mask:0xf")
    A(f"""
      s_lshl_b32 {s(sT0)}, {s(sWAVE)}, 6
      v_lshlrev_b32 {v(vT4)}, 4, {v(vT0)}
      v_lshl_add_u32 {v(vT4)}, {v(vGq)}, 2, {v(vT4)}
      v_add_u32 {v(vT4)}, {s(sT0)}, {v(vT4)}
      ds_write_b32 {v(vT4)}, {v(vV)} offset:{L_FN}
      v_lshlrev_b32 {v(vT4)}, 2, {v(vN)}
      s_waitcnt lgkmcnt(0)
      s_barrier
      s_cmp_lg_u32 {s(sWAVE)}, 0
      s_cbranch_scc1 Lend
    """)
    for u in range(4):
        A(f"ds_read_b32 {v(vU+u)}, {v(vT4)} offset:{L_FN + 64*u}")
    A(f"""
      v_lshlrev_b32 {v(vT0)}, 16, {v(vXR)}
      s_lshl_b32 {s(sT0)}, {s(sT3)}, 5
      v_lshlrev_b32 {v(vT4)}, 1, {v(vN)}
      v_add_u32 {v(vT4)}, {s(sT0)}, {v(vT4)}
      s_waitcnt lgkmcnt(0)
      v_add_f32 {v(vU)}, {v(vU)}, {v(vU+1)}
      v_add_f32 {v(vU+2)}, {v(vU+2)}, {v(vU+3)}
      v_add_f32 {v(vU)}, {v(vU)}, {v(vU+2)}
      v_add_f32 {v(vU)}, {v(vU)}, {v(vT0)}
      v_cvt_pk_bf16_f32 {v(vU)}, {v(vU)}, {v(vU)}
      v_cmp_gt_u32 vcc, 16, {v(vL)}
      s_and_saveexec_b64 {s(sEX,2)}, vcc
      global_store_short {v(vT4)}, {v(vU)}, {s(sOUT,2)}
      s_mov_b64 exec, {s(sEX,2)}
      s_cmp_lg_u32 {s(sT3)}, 0
      s_cbranch_scc1 Lend
      v_mov_b32 {v(vT4)}, 0
      v_mov_b32 {v(vT5)}, {s(sTAG)}
      v_cmp_eq_u32 vcc, 0, {v(vL)}
      s_and_saveexec_b64 {s(sEX,2)}, vcc
      global_store_dword {v(vT4)}, {v(vT5)}, {s(sWS,2)} sc1
      s_mov_b64 exec, {s(sEX,2)}
      s_branch Lend
    """)
    A("Laux:")
    role[0] = "X"
    if PRIO:
        A("s_setprio 3")
    A(f"""
      s_sub_u32 {s(sROLE)}, {s(sWAVE)}, 4
      v_lshlrev_b32 {v(vT1)}, 4, {v(vL)}
      v_lshrrev_b32 {v(vT2)}, 3, {v(vL)}
      v_and_b32 {v(vT3)}, 7, {v(vL)}
      s_and_b32 {s(sKS)}, {s(sA)}, 3
      s_lshr_b32 {s(sT0)}, {s(sA)}, 2
      s_lshl_b32 {s(sT1)}, {s(sKVH)}, 3
      s_add_u32 {s(sT0)}, {s(sT0)}, {s(sT1)}
      s_lshl_b32 {s(sT0)}, {s(sT0)}, 7
      s_lshl_b32 {s(sT1)}, {s(sKS)}, 20
      s_add_u32 {s(sT2)}, {s(sT0)}, {s(sT1)}
      s_movk_i32 {s(sSTR)}, 0x2000
      s_cmp_eq_u32 {s(sROLE)}, 0
      s_cbranch_scc1 Laux_w
      s_and_b32 {s(sKS)}, s2, 3
      s_lshr_b32 {s(sT0)}, s2, 2
      s_cmp_ge_u32 {s(sT0)}, 28
      s_cselect_b32 {s(sT3)}, 1, 0
      s_cselect_b32 {s(sT1)}, 28, 0
      s_sub_u32 {s(sT0)}, {s(sT0)}, {s(sT1)}
      s_cmp_ge_u32 s2, 224
      s_cselect_b32 {s(sT0)}, 0, {s(sT0)}
      s_lshl_b32 {s(sT2)}, {s(sT0)}, 7
      s_mul_i32 {s(sT1)}, {s(sKS)}, {128*3584}
      s_add_u32 {s(sT2)}, {s(sT2)}, {s(sT1)}
      s_movk_i32 {s(sSTR)}, 3584
      s_mov_b32 {s(sTILE)}, {s(sT0)}
      s_mov_b32 {s(sTILE+1)}, {s(sT3)}
      s_waitcnt lgkmcnt(0)
      s_cmp_eq_u32 {s(sT3)}, 0
      s_cselect_b32 {s(sWQ)}, {s(sG)}, {s(sU)}
      s_cselect_b32 {s(sWQ+1)}, {s(sG+1)}, {s(sU+1)}
    """)
    A("Laux_w:")
    A(f"""
      s_waitcnt lgkmcnt(0)
      s_add_u32 {s(sWb)}, {s(sWQ)}, {s(sT2)}
      s_addc_u32 {s(sWb+1)}, {s(sWQ+1)}, 0
      v_mul_lo_u32 {v(vT2)}, {v(vT2)}, {s(sSTR)}
      v_lshl_add_u32 {v(vT2)}, {v(vT3)}, 4, {v(vT2)}
      s_lshl_b32 {s(sT0)}, {s(sSTR)}, 3
      global_load_dword {v(vEP)}, {v(vT7)}, {s(sWS,2)} sc1
      global_load_dwordx4 {v(vU,4)}, {v(vT1)}, {s(sX,2)}
      global_load_dwordx4 {v(vU+4,4)}, {v(vT1)}, {s(sX,2)} offset:1024
    """)
    for i in range(16):
        A(f"global_load_dwordx4 {v(vK+4*i,4)}, {v(vT2)}, {s(sWb,2)}{NT}")
        if i < 15:
            A(f"v_add_u32 {v(vT2)}, {s(sT0)}, {v(vT2)}")
    ts("issK")
    if BAR0:
        A("s_barrier")
    A("s_waitcnt vmcnt(16)")
    ts("issV")
    A(f"v_readfirstlane_b32 {s(sTAG)}, {v(vEP)}")
    for k in range(4):
        A(f"v_lshlrev_b32 {v(vP+4*k)}, 16, {v(vU+k)}")
        A(f"v_lshlrev_b32 {v(vP+4*k+1)}, 16, {v(vU+4+k)}")
        A(f"v_and_b32 {v(vP+4*k+2)}, 0xffff0000, {v(vU+k)}")
        A(f"v_and_b32 {v(vP+4*k+3)}, 0xffff0000, {v(vU+4+k)}")
    A(f"s_add_u32 {s(sTAG)}, {s(sTAG)}, 0x{TAG_DELTA:x}")
    def allreduce2(r0, r1, t0, t1, op="v_add_f32"):
        for sh in (8, 4, 2, 1):
            A.nop(1)
            A(f"{op}_dpp {v(r0)}, {v(r0)}, {v(r0)} row_ror:{sh} row_mask:0xf bank_mask:0xf")
            A(f"{op}_dpp {v(r1)}, {v(r1)}, {v(r1)} row_ror:{sh} row_mask:0xf bank_mask:0xf")
        for sw in ("v_permlane16_swap_b32", "v_permlane32_swap_b32"):
            A(f"v_mov_b32 {v(t0)}, {v(r0)}")
            A(f"v_mov_b32 {v(t1)}, {v(r1)}")
            A.nop(1)
            A(f"{sw} {v(r0)}, {v(t0)}")
            A(f"{sw} {v(r1)}, {v(t1)}")
            A(f"{op} {v(r0)}, {v(r0)}, {v(t0)}")
            A(f"{op} {v(r1)}, {v(r1)}, {v(t1)}")
    A(f"v_pk_add_f32 {v(vT0,2)}, {v(vP,2)}, {v(vP+2,2)}")
    for i in range(2, 8):
        A(f"v_pk_add_f32 {v(vT0,2)}, {v(vT0,2)}, {v(vP+2*i,2)}")
    A.nop(1)
    allreduce2(vT0, vT0+1, vT2, vT3)
    A(f"v_mul_f32 {v(vT0)}, 0x3b000000, {v(vT0)}")
    A(f"v_mul_f32 {v(vT0+1)}, 0x3b000000, {v(vT0+1)}")
    A(f"v_pk_add_f32 {v(vT4,2)}, {v(vP,2)}, {v(vT0,2)} neg_lo:[0,1] neg_hi:[0,1]")
    A(f"v_pk_mul_f32 {v(vT2,2)}, {v(vT4,2)}, {v(vT4,2)}")
    for i in range(1, 8):
        A(f"v_pk_add_f32 {v(vT4,2)}, {v(vP+2*i,2)}, {v(vT0,2)} neg_lo:[0,1] neg_hi:[0,1]")
        A(f"v_pk_fma_f32 {v(vT2,2)}, {v(vT4,2)}, {v(vT4,2)}, {v(vT2,2)}")
    A.nop(1)
    allreduce2(vT2, vT3, vT4, vT5)
    A(f"v_mul_f32 {v(vT2)}, 0x3b000000, {v(vT2)}")
    A(f"v_mul_f32 {v(vT3)}, 0x3b000000, {v(vT3)}")
    rnd_pair(vT0, vT6)
    rnd_pair(vT2, vT6)
    A(f"v_add_f32 {v(vT2)}, 0x3727c5ac, {v(vT2)}")
    A(f"v_add_f32 {v(vT3)}, 0x3727c5ac, {v(vT3)}")
    rnd_pair(vT2, vT6)
    A(f"v_sqrt_f32 {v(vT2)}, {v(vT2)}")
    A(f"v_sqrt_f32 {v(vT3)}, {v(vT3)}")
    A.nop(1)
    rnd_pair(vT2, vT6)
    A(f"v_rcp_f32 {v(vT2)}, {v(vT2)}")
    A(f"v_rcp_f32 {v(vT3)}, {v(vT3)}")
    A.nop(1)
    for i in range(8):
        r = vP + 2*i
        A(f"v_pk_add_f32 {v(r,2)}, {v(r,2)}, {v(vT0,2)} neg_lo:[0,1] neg_hi:[0,1]")
        rnd_pair(r, vT6)
        A(f"v_pk_mul_f32 {v(r,2)}, {v(r,2)}, {v(vT2,2)}")
        rnd_pair(r, vT6)
    A(f"""
      s_lshl_b32 {s(sT0)}, {s(sROLE)}, 12
      v_lshlrev_b32 {v(vT4)}, 6, {v(vL)}
      v_add_u32 {v(vT4)}, {s(sT0)}, {v(vT4)}
    """)
    for k in range(4):
        A(f"ds_write_b128 {v(vT4)}, {v(vP+4*k,4)} offset:{L_XN + 16*k}")
    A(f"""
      s_lshl_b32 {s(sT1)}, {s(sKS)}, 10
      s_add_u32 {s(sT0)}, {s(sT0)}, {s(sT1)}
      v_lshrrev_b32 {v(vT4)}, 3, {v(vL)}
      v_lshlrev_b32 {v(vT4)}, 3, {v(vT4)}
      v_add_u32 {v(vT4)}, {s(sT0)}, {v(vT4)}
    """)
    for i in range(16):
        A(f"ds_read_b64 {v(vV+2*i,2)}, {v(vT4)} offset:{L_XN + 64*i}")
    ts("issW")
    def gemv_piece(acc, wreg, xn, first):
        for k in range(4):
            u = vU + 2*(k & 1)
            A(f"v_lshlrev_b32 {v(u)}, 16, {v(wreg+k)}")
            A(f"v_and_b32 {v(u+1)}, 0xffff0000, {v(wreg+k)}")
            if first:
                A(f"v_pk_mul_f32 {v(acc+4*k,2)}, {v(xn,2)}, {v(u,2)} op_sel:[0,0] op_sel_hi:[1,0]")
                A(f"v_pk_mul_f32 {v(acc+4*k+2,2)}, {v(xn,2)}, {v(u,2)} op_sel:[0,1] op_sel_hi:[1,1]")
            else:
                A(f"v_pk_fma_f32 {v(acc+4*k,2)}, {v(xn,2)}, {v(u,2)}, {v(acc+4*k,2)} op_sel:[0,0,0] op_sel_hi:[1,0,1]")
                A(f"v_pk_fma_f32 {v(acc+4*k+2,2)}, {v(xn,2)}, {v(u,2)}, {v(acc+4*k+2,2)} op_sel:[0,1,0] op_sel_hi:[1,1,1]")
    A("s_waitcnt lgkmcnt(0)")
    for i in range(16):
        A(f"s_waitcnt vmcnt({15 - i})")
        gemv_piece(vS, vK+4*i, vV+2*i, i == 0)
    ts("Kdone")
    acc = vS
    A.nop(1)
    for i in range(8):
        A(f"v_permlane32_swap_b32 {v(acc+i)}, {v(acc+i+8)}")
    for i in range(8):
        A(f"v_add_f32 {v(acc+i)}, {v(acc+i)}, {v(acc+i+8)}")
    A.nop(1)
    for i in range(4):
        A(f"v_permlane16_swap_b32 {v(acc+i)}, {v(acc+i+4)}")
    for i in range(4):
        A(f"v_add_f32 {v(acc+i)}, {v(acc+i)}, {v(acc+i+4)}")
    A.nop(1)
    for i in range(2):
        A(f"v_add_f32_dpp {v(acc+4+i)}, {v(acc+i)}, {v(acc+i)} row_ror:8 row_mask:0xf bank_mask:0x3")
        A(f"v_add_f32_dpp {v(acc+4+i)}, {v(acc+i+2)}, {v(acc+i+2)} row_ror:8 row_mask:0xf bank_mask:0xc")
    A(f"""
      s_lshl_b32 {s(sT0)}, {s(sROLE)}, 9
      v_and_b32 {v(vT4)}, 7, {v(vL)}
      v_lshlrev_b32 {v(vT4)}, 3, {v(vT4)}
      v_lshrrev_b32 {v(vT5)}, 3, {v(vL)}
      v_add_u32 {v(vT4)}, {v(vT4)}, {v(vT5)}
      v_lshlrev_b32 {v(vT4)}, 3, {v(vT4)}
      v_add_u32 {v(vT4)}, {s(sT0)}, {v(vT4)}
      ds_write_b64 {v(vT4)}, {v(acc+4,2)} offset:{L_TR}
      s_cmp_eq_u32 {s(sROLE)}, 0
      s_cbranch_scc0 Laux_gst
    """)
    A(f"""
      v_and_b32 {v(vT5)}, 31, {v(vL)}
      v_lshrrev_b32 {v(vT6)}, 5, {v(vL)}
      v_lshlrev_b32 {v(vT4)}, 4, {v(vT5)}
      v_lshl_add_u32 {v(vT4)}, {v(vT6)}, 2, {v(vT4)}
      s_lshl_b32 {s(sT1)}, {s(sKVH)}, 15
      s_lshl_b32 {s(sT2)}, {s(sKS)}, 12
      s_add_u32 {s(sT1)}, {s(sT1)}, {s(sT2)}
      s_lshr_b32 {s(sT2)}, {s(sA)}, 2
      s_lshl_b32 {s(sT2)}, {s(sT2)}, 9
      s_add_u32 {s(sT1)}, {s(sT1)}, {s(sT2)}
      s_add_u32 {s(sT1)}, {s(sT1)}, {WS_QG}
      v_lshlrev_b32 {v(vT6)}, 14, {v(vT6)}
      v_lshl_add_u32 {v(vT5)}, {v(vT5)}, 4, {v(vT6)}
      v_add_u32 {v(vT5)}, {s(sT1)}, {v(vT5)}
      s_branch Laux_st
    """)
    A("Laux_gst:")
    A(f"""
      v_lshrrev_b32 {v(vT5)}, 3, {v(vL)}
      v_and_b32 {v(vT6)}, 3, {v(vL)}
      v_lshl_add_u32 {v(vT4)}, {v(vT5)}, 2, {v(vT6)}
      v_lshlrev_b32 {v(vT4)}, 4, {v(vT4)}
      v_bfe_u32 {v(vT6)}, {v(vL)}, 2, 1
      v_lshl_add_u32 {v(vT4)}, {v(vT6)}, 2, {v(vT4)}
      v_add_u32 {v(vT4)}, 512, {v(vT4)}
      s_lshl_b32 {s(sT1)}, {s(sTILE)}, 13
      s_lshl_b32 {s(sT2)}, {s(sTILE+1)}, 2
      s_add_u32 {s(sT2)}, {s(sT2)}, {s(sKS)}
      s_lshl_b32 {s(sT2)}, {s(sT2)}, 7
      s_add_u32 {s(sT1)}, {s(sT1)}, {s(sT2)}
      s_add_u32 {s(sT1)}, {s(sT1)}, {WS_GG}
      v_lshlrev_b32 {v(vT5)}, 10, {v(vT5)}
      v_and_b32 {v(vT6)}, 7, {v(vL)}
      v_lshl_add_u32 {v(vT5)}, {v(vT6)}, 4, {v(vT5)}
      v_add_u32 {v(vT5)}, {s(sT1)}, {v(vT5)}
    """)
    A("Laux_st:")
    Lnost = A.label("nost")
    A(f"""
      ds_read_b32 {v(vU)}, {v(vT4)} offset:{L_TR}
      ds_read_b32 {v(vU+2)}, {v(vT4)} offset:{L_TR+8}
      v_mov_b32 {v(vU+1)}, {s(sTAG)}
      v_mov_b32 {v(vU+3)}, {s(sTAG)}
      s_waitcnt lgkmcnt(0)
      s_cmp_eq_u32 {s(sROLE)}, 0
      s_cselect_b32 {s(sT0)}, 0, s2
      s_cmp_ge_u32 {s(sT0)}, 224
      s_cbranch_scc1 {Lnost}
      global_store_dwordx4 {v(vT5)}, {v(vU,4)}, {s(sWS,2)} sc1
    """)
    A(f"{Lnost}:")
    ts("p_done")
    A("Lend:")
    if TS:
        ts("end")
        A("s_waitcnt lgkmcnt(0)")
        n = 19
        A(f"""
          s_mul_i32 {s(sT0)}, s2, 6
          s_add_u32 {s(sT0)}, {s(sT0)}, {s(sWAVE)}
          s_lshl_b32 {s(sT0)}, {s(sT0)}, 7
          s_add_u32 {s(sT0)}, {s(sT0)}, {WS_TS}
          v_mov_b32 {v(vT4)}, {s(sT0)}
          v_cmp_eq_u32 vcc, 0, {v(vL)}
          s_and_saveexec_b64 {s(sEX,2)}, vcc
        """)
        for k in range(n):
            A(f"v_mov_b32 {v(vT5)}, {s(64+2*k)}")
            A(f"global_store_dword {v(vT4)}, {v(vT5)}, {s(sWS,2)} offset:{4*k}")
    A("Lexit:")
    A("s_endpgm")
    hdr = f"""; fused decode kernel: layernorm -> {{windowed GQA attention + out proj}} + {{sigmoid GLU}} + residual
; @launch grid=(256,1,1) block=(384,1,1) lds={LDS_BYTES}
.amdgcn_target "amdgcn-amd-amdhsa--gfx950"
.text
.globl {NAME}
.p2align 8
.type {NAME},@function
{NAME}:
"""
    ftr = f"""
.section .rodata,"a"
.p2align 6
.amdhsa_kernel {NAME}
  .amdhsa_next_free_vgpr {NV}
  .amdhsa_next_free_sgpr 102
  .amdhsa_accum_offset {NV}
  .amdhsa_group_segment_fixed_size 0
  .amdhsa_kernarg_size 96
  .amdhsa_user_sgpr_count 2
  .amdhsa_user_sgpr_kernarg_segment_ptr 1
  .amdhsa_system_sgpr_workgroup_id_x 1
.end_amdhsa_kernel
"""
    return hdr + A.text() + ftr, (ts_map if TS else None)

NWAVES = 6
if __name__ == "__main__":
    out = sys.argv[1]
    opt = {}
    for a in sys.argv[2:]:
        k, val = a.split("=")
        opt[k] = int(val)
    txt, slots = gen(opt)
    open(out, "w").write(txt)
    print("wrote", out, "ts slots:", slots)
```

```python
import sys

NAME = "parallel_sum__sliding_block_cached__glu_gated_glu__decode_kernel"

class Asm:
    def __init__(self):
        self.lines = []
        self.uid = 0
    def __call__(self, s):
        for ln in s.strip("\n").split("\n"):
            t = ln.strip()
            if not t: continue
            self.lines.append(t if t.endswith(":") else "  " + t)
    def label(self, base):
        self.uid += 1
        return f"L{base}_{self.uid}"
    def nop(self, n):
        while n > 0:
            k = min(n, 16)
            self(f"s_nop {k-1}")
            n -= k
    def text(self):
        return "\n".join(self.lines) + "\n"

def v(i, n=1):
    return f"v{i}" if n == 1 else f"v[{i}:{i+n-1}]"
def s(i, n=1):
    return f"s{i}" if n == 1 else f"s[{i}:{i+n-1}]"

WS_EPOCH = 0
WS_SG = 0x10000
WS_QG = 0x40000
WS_GG = 0x80000
WS_OG = 0x100000
WS_PG = 0x200000
WS_TS = 0x800000
TAG_DELTA = 0x9E3779B9

L_XN = 0
L_TR = 8192
L_QB = 9216
L_MX = 10240
L_LS = 10304
L_OV = 10368
L_HV = 11264
L_FN = 10624
L_OP = 12288
LDS_BYTES = 20480

def gen(opt):
    A = Asm()
    DBG = opt.get("dbg", 0)
    TS = opt.get("ts", 0) or DBG
    NT = " nt" if opt.get("nt", 1) else ""
    BAR0 = opt.get("bar0", 1)
    PRIO = opt.get("prio", 1)
    ROT = opt.get("rot", 1)
    SPIN = opt.get("spin", 20000)
    WIN = opt.get("win", 0)
    NTH = opt.get("nth", 25)
    WDFIRST = opt.get("wdfirst", 0)
    QPOS = opt.get("qpos", 4)
    SLEEP = opt.get("sleep", 2)
    PBAR = opt.get("pbar", 1)
    FAST = opt.get("fast", 0)
    FS = "" if FAST else " sc1"
    LATEW = opt.get("latew", 1)
    role = ["A"]
    ts_map = {"A": ["start"], "X": ["start"]}
    def slot(name):
        if name == "start": return 0
        if name == "end": return 18
        l = ts_map[role[0]]
        if name not in l: l.append(name)
        assert len(l) <= 18
        return l.index(name)
    SKIP = {"A": {"issK", "h_done", "g_n", "barX", "issW", "issQ", "q_n", "q_done"}, "X": set()}
    def ts(name):
        if TS and name not in SKIP[role[0]]:
            k = slot(name)
            A(f"s_memrealtime {s(64 + 2*k, 2)}")

    sX, sK, sV, sWQ, sWO, sBX, sG, sU = 4, 6, 8, 10, 12, 14, 16, 18
    sWD, sOUT, sDBG, sWS = 20, 22, 24, 26
    sKVH, sA, sB, sTAG, sWAVE = 28, 29, 30, 31, 32
    sT0, sT1, sT2, sT3 = 33, 34, 35, 36
    sSPIN = 37
    sC0 = 38
    sEX = 40
    sSRK = 44
    sSRV = 48
    sWb = 52
    sWDb = 54
    sSTR = 56
    sKS = 57
    sTILE = 58
    sROLE = 62
    vL, vN, vGq = 1, 2, 3
    vT0, vT1, vT2, vT3, vT4, vT5, vT6, vT7 = 4, 5, 6, 7, 8, 9, 10, 11
    vM0, vM1 = 12, 13
    vMK = 14
    vEP = 18
    vXR = 19
    vOA = 20
    vD3 = 28
    vQ = 32
    vS = 48
    vK = 64
    vV = 128
    vWO = 192
    vP = 216
    vU = 232
    vAX = 240
    NV = 248

    def xrow(r, t, op):
        for sw in ("v_permlane16_swap_b32", "v_permlane32_swap_b32"):
            A(f"v_mov_b32 {v(t)}, {v(r)}")
            A.nop(2)
            A(f"{sw} {v(r)}, {v(t)}")
            A(f"{op} {v(r)}, {v(r)}, {v(t)}")
    def rnd_pair(r, t):
        A(f"v_cvt_pk_bf16_f32 {v(t)}, {v(r)}, {v(r+1)}")
        A(f"v_lshlrev_b32 {v(r)}, 16, {v(t)}")
        A(f"v_and_b32 {v(r+1)}, 0xffff0000, {v(t)}")
    def poll_loop(issue, tagregs, name, first_issued=False, waitn=0):
        Lr = A.label(name + "_retry"); Lk = A.label(name + "_ok")
        if TS and (name + "_n") not in SKIP[role[0]]:
            A(f"s_mov_b32 {s(64+2*slot(name + '_n'))}, 0")
        if not first_issued:
            issue()
        A(f"s_waitcnt vmcnt({waitn})")
        poll_check(tagregs, vT6, vT7)
        A(f"""
          s_cbranch_vccz {Lk}
          s_mov_b32 {s(sSPIN)}, {SPIN}
        """)
        A(f"{Lr}:")
        A("s_mov_b64 exec, vcc")
        if SLEEP: A(f"s_sleep {SLEEP}")
        issue()
        A("s_waitcnt vmcnt(0)")
        poll_check(tagregs, vT6, vT7)
        A(f"""
          s_cbranch_vccz {Lk}_x
          s_sub_u32 {s(sSPIN)}, {s(sSPIN)}, 1
          s_cmp_lg_u32 {s(sSPIN)}, 0
          s_cbranch_scc1 {Lr}
        """)
        A(f"{Lk}_x:")
        A("s_mov_b64 exec, -1")
        if TS and (name + "_n") not in SKIP[role[0]]:
            k = slot(name + "_n")
            A(f"s_sub_u32 {s(64+2*k)}, {SPIN+1}, {s(sSPIN)}")
        A(f"{Lk}:")
    def poll_check(regs, acc, tmp):
        A(f"v_xor_b32 {v(acc)}, {s(sTAG)}, {v(regs[0])}")
        for r in regs[1:]:
            A(f"v_xor_b32 {v(tmp)}, {s(sTAG)}, {v(r)}")
            A(f"v_or_b32 {v(acc)}, {v(acc)}, {v(tmp)}")
        A(f"v_cmp_ne_u32 vcc, 0, {v(acc)}")

    A("s_cmp_ge_u32 s2, 256")
    A("s_cbranch_scc1 Lexit")
    A(f"s_load_dwordx16 {s(4,16)}, s[0:1], 0")
    A(f"s_load_dwordx8 {s(20,8)}, s[0:1], 64")
    ts("start")
    A(f"""
      v_and_b32 {v(vL)}, 63, v0
      v_lshrrev_b32 {v(vT0)}, 6, v0
      v_and_b32 {v(vN)}, 15, v0
      v_bfe_u32 {v(vGq)}, v0, 4, 2
      v_readfirstlane_b32 {s(sWAVE)}, {v(vT0)}
      s_and_b32 {s(sKVH)}, s2, 7
      s_lshr_b32 {s(sA)}, s2, 3
      s_lshr_b32 {s(sB)}, {s(sA)}, 4
      v_mov_b32 {v(vT7)}, 0
      s_cmp_ge_u32 {s(sWAVE)}, 4
      s_cbranch_scc1 Laux
    """)
    A(f"""
      v_and_b32 {v(vT3)}, 3, {v(vN)}
      v_lshlrev_b32 {v(vT3)}, 10, {v(vT3)}
      v_lshrrev_b32 {v(vT4)}, 2, {v(vN)}
      v_lshl_add_u32 {v(vT3)}, {v(vT4)}, 8, {v(vT3)}
      v_lshl_add_u32 {v(vT3)}, {v(vGq)}, 4, {v(vT3)}
      v_lshlrev_b32 {v(vT2)}, 8, {v(vGq)}
      v_lshl_add_u32 {v(vT2)}, {v(vN)}, 4, {v(vT2)}
      v_lshlrev_b32 {v(vAX+5)}, 10, {v(vGq)}
      v_lshl_add_u32 {v(vAX+5)}, {v(vN)}, 4, {v(vAX+5)}
      v_add_u32 {v(vAX+6)}, 0x1000, {v(vAX+5)}
    """)
    for tau in range(4):
        if ROT:
            A(f"s_add_u32 {s(sT0)}, {s(sWAVE)}, {4*tau}")
            A(f"s_add_u32 {s(sT0)}, {s(sT0)}, {s(sA)}")
        else:
            A(f"s_lshl_b32 {s(sT0)}, {s(sWAVE)}, 2")
            A(f"s_add_u32 {s(sT0)}, {s(sT0)}, {tau}")
        A(f"s_and_b32 {s(sT0)}, {s(sT0)}, 15")
        A(f"s_lshl_b32 {s(sTILE+tau)}, {s(sT0)}, 12")
    A(f"""
      s_mov_b32 {s(sT0)}, 0xffff
      s_mov_b32 {s(sT1)}, 0xffff0000
      v_and_b32 {v(vT4)}, 1, {v(vL)}
      v_cmp_eq_u32 vcc, 1, {v(vT4)}
      v_mov_b32 {v(vT5)}, {s(sT0)}
      v_mov_b32 {v(vT6)}, {s(sT1)}
      v_cndmask_b32 {v(vT5)}, {v(vT5)}, {v(vT6)}, vcc
      v_and_b32 {v(vT4)}, 2, {v(vL)}
      v_cmp_eq_u32 vcc, 0, {v(vT4)}
      s_nop 1
      v_cndmask_b32 {v(vM0)}, 0, {v(vT5)}, vcc
      v_cmp_ne_u32 vcc, 0, {v(vT4)}
      s_nop 1
      v_cndmask_b32 {v(vM1)}, 0, {v(vT5)}, vcc
      v_bfe_u32 {v(vT4)}, {v(vL)}, 1, 2
    """)
    for i in range(4):
        A(f"v_cmp_eq_u32 vcc, {i}, {v(vT4)}")
        A("s_nop 1")
        A(f"v_cndmask_b32 {v(vMK+i)}, 0, {v(vT5)}, vcc")
    A(f"""
      s_lshl_b32 {s(sT0)}, {s(sB)}, 3
      s_add_u32 {s(sT0)}, {s(sT0)}, {s(sKVH)}
      s_lshl_b32 {s(sT0)}, {s(sT0)}, 23
      s_and_b32 {s(sT1)}, {s(sA)}, 15
      s_lshl_b32 {s(sT1)}, {s(sT1)}, 16
      s_add_u32 {s(sT0)}, {s(sT0)}, {s(sT1)}
      s_add_u32 {s(sT0)}, {s(sT0)}, 0x700000
      s_waitcnt lgkmcnt(0)
      s_add_u32 {s(sSRK)}, {s(sK)}, {s(sT0)}
      s_addc_u32 {s(sSRK+1)}, {s(sK+1)}, 0
      s_and_b32 {s(sSRK+1)}, {s(sSRK+1)}, 0xffff
      s_mov_b32 {s(sSRK+2)}, 0x10000
      s_mov_b32 {s(sSRK+3)}, 0x20000
      s_add_u32 {s(sSRV)}, {s(sV)}, {s(sT0)}
      s_addc_u32 {s(sSRV+1)}, {s(sV+1)}, 0
      s_and_b32 {s(sSRV+1)}, {s(sSRV+1)}, 0xffff
      s_mov_b32 {s(sSRV+2)}, 0x10000
      s_mov_b32 {s(sSRV+3)}, 0x20000
      s_lshl_b32 {s(sT0)}, {s(sKVH)}, 19
      s_lshl_b32 {s(sT1)}, {s(sA)}, 14
      s_add_u32 {s(sT0)}, {s(sT0)}, {s(sT1)}
      s_lshl_b32 {s(sT1)}, {s(sWAVE)}, 8
      s_add_u32 {s(sT0)}, {s(sT0)}, {s(sT1)}
      s_add_u32 {s(sWb)}, {s(sWO)}, {s(sT0)}
      s_addc_u32 {s(sWb+1)}, {s(sWO+1)}, 0
      s_cmp_lt_u32 s2, 224
      s_cselect_b32 {s(sT0)}, s2, 0
      s_lshl_b32 {s(sT0)}, {s(sT0)}, 13
      s_add_u32 {s(sT0)}, {s(sT0)}, {s(sT1)}
      s_add_u32 {s(sWDb)}, {s(sWD)}, {s(sT0)}
      s_addc_u32 {s(sWDb+1)}, {s(sWD+1)}, 0
    """)
    vAq, vAg = vAX, vAX+4
    A(f"""
      s_lshl_b32 {s(sT0)}, {s(sKVH)}, 1
      s_add_u32 {s(sT0)}, {s(sT0)}, {s(sB)}
      s_lshl_b32 {s(sT0)}, {s(sT0)}, 14
      s_lshl_b32 {s(sT1)}, {s(sWAVE)}, 10
      s_add_u32 {s(sT0)}, {s(sT0)}, {s(sT1)}
      s_add_u32 {s(sT0)}, {s(sT0)}, {WS_QG}
      v_lshlrev_b32 {v(vT4)}, 4, {v(vL)}
      v_add_u32 {v(vAq)}, {s(sT0)}, {v(vT4)}
      s_cmp_lt_u32 s2, 224
      s_cselect_b32 {s(sT0)}, s2, 0
      s_lshl_b32 {s(sT0)}, {s(sT0)}, 10
      s_add_u32 {s(sT0)}, {s(sT0)}, {WS_GG}
      v_add_u32 {v(vAg)}, {s(sT0)}, {v(vT4)}
      v_add_u32 {v(vAX+1)}, 0x1000, {v(vAq)}
      v_add_u32 {v(vAX+2)}, 0x2000, {v(vAq)}
      v_add_u32 {v(vAX+3)}, 0x3000, {v(vAq)}
    """)
    vQP = vQ
    vGP = vOA
    def issue_q():
        for ks, r in enumerate((vAq, vAX+1, vAX+2, vAX+3)):
            A(f"global_load_dwordx4 {v(vQP+4*ks,4)}, {v(r)}, {s(sWS,2)} sc1")
    def issue_g():
        A(f"global_load_dwordx4 {v(vGP,4)}, {v(vAg)}, {s(sWS,2)} sc1")
    if BAR0:
        A("s_barrier")
    nload = [0]
    def ld(txt):
        if WIN and WIN <= nload[0] < NTH:
            A(f"s_waitcnt vmcnt({WIN-1})")
        A(txt); nload[0] += 1
    ld(f"global_load_dword {v(vEP)}, {v(vT7)}, {s(sWS,2)} sc1")
    for tau in range(4):
        for jj in range(4):
            ld(f"buffer_load_dwordx4 {v(vK+16*tau+4*jj,4)}, {v(vT3)}, {s(sSRK,4)}, {s(sTILE+tau)} offen offset:{64*jj}{NT}")
    ts("issK")
    if PBAR: A("s_barrier")
    def ld_wd():
        ld(f"global_load_dwordx4 {v(vWO+16,4)}, {v(vAX+5)}, {s(sWDb,2)}{NT}")
        ld(f"global_load_dwordx4 {v(vWO+20,4)}, {v(vAX+6)}, {s(sWDb,2)}{NT}")
    def ld_wo():
        for i in range(4):
            if i == 0:
                ld(f"global_load_dwordx4 {v(vWO,4)}, {v(vAX+5)}, {s(sWb,2)}{NT}")
            elif i == 1:
                ld(f"global_load_dwordx4 {v(vWO+4,4)}, {v(vAX+6)}, {s(sWb,2)}{NT}")
            else:
                A(f"v_add_u32 {v(vAX+7)}, {0x1000*i}, {v(vAX+5)}")
                ld(f"global_load_dwordx4 {v(vWO+4*i,4)}, {v(vAX+7)}, {s(sWb,2)}{NT}")
    nv = 0
    for tau in range(4):
        for r in range(4):
            if nv == QPOS:
                if PBAR and QPOS > 0: A("s_barrier")
                issue_q(); issue_g(); ts("issQ")
                if PBAR: A("s_barrier")
            ld(f"buffer_load_dwordx4 {v(vV+16*tau+4*r,4)}, {v(vT2)}, {s(sSRV,4)}, {s(sTILE+tau)} offen offset:{1024*r}{NT}")
            nv += 1
    ts("issV")
    if not LATEW:
        if PBAR: A("s_barrier")
        ld_wd(); ld_wo()
    ts("issW")
    AFTER_V0 = 0 if LATEW else 6
    AFTER_V = 6
    AFTER_Q = (16 - QPOS) + AFTER_V0
    A(f"""
      s_waitcnt vmcnt({AFTER_Q + 5})
      v_readfirstlane_b32 {s(sTAG)}, {v(vEP)}
      s_add_u32 {s(sTAG)}, {s(sTAG)}, 0x{TAG_DELTA:x}
    """)
    poll_loop(issue_q, [vQP+4*i+k for i in range(4) for k in (1, 3)], "q", first_issued=True, waitn=AFTER_Q + 1)
    ts("q_done")
    A(f"""
      v_add_f32 {v(vQP)}, {v(vQP)}, {v(vQP+4)}
      v_add_f32 {v(vQP+2)}, {v(vQP+2)}, {v(vQP+6)}
      v_add_f32 {v(vQP+8)}, {v(vQP+8)}, {v(vQP+12)}
      v_add_f32 {v(vQP+10)}, {v(vQP+10)}, {v(vQP+14)}
      v_add_f32 {v(vQP)}, {v(vQP)}, {v(vQP+8)}
      v_add_f32 {v(vQP+2)}, {v(vQP+2)}, {v(vQP+10)}
      v_cvt_pk_bf16_f32 {v(vQP)}, {v(vQP)}, {v(vQP+2)}
      v_lshlrev_b32 {v(vT4)}, 2, v0
      ds_write_b32 {v(vT4)}, {v(vQP)} offset:{L_QB}
      v_lshrrev_b32 {v(vT4)}, 2, {v(vN)}
      v_lshlrev_b32 {v(vT4)}, 8, {v(vT4)}
      v_lshl_add_u32 {v(vT4)}, {v(vGq)}, 4, {v(vT4)}
      s_waitcnt lgkmcnt(0)
      s_barrier
    """)
    ts("barX")
    for jj in range(4):
        A(f"ds_read_b128 {v(vQ+4*jj,4)}, {v(vT4)} offset:{L_QB + 64*jj}")
    A("s_waitcnt lgkmcnt(0)")
    for jj in range(4):
        for t in range(4):
            c = "0" if jj == 0 else v(vS+4*t,4)
            A(f"v_mfma_f32_16x16x32_bf16 {v(vS+4*t,4)}, {v(vK+16*t+4*jj,4)}, {v(vQ+4*jj,4)}, {c}")
    A(f"s_mov_b32 {s(sC0)}, 0x3db504f3")
    A(f"s_mov_b32 {s(sC0+1)}, 0x3db504f3")
    A.nop(6)
    for i in range(8):
        r = vS + 2*i
        t = vU + (i & 3)
        A(f"v_cvt_pk_bf16_f32 {v(t)}, {v(r)}, {v(r+1)}")
        A(f"v_lshlrev_b32 {v(r)}, 16, {v(t)}")
        A(f"v_and_b32 {v(r+1)}, 0xffff0000, {v(t)}")
        A(f"v_pk_mul_f32 {v(r,2)}, {v(r,2)}, {s(sC0,2)}")
        A(f"v_cvt_pk_bf16_f32 {v(t)}, {v(r)}, {v(r+1)}")
        A(f"v_lshlrev_b32 {v(r)}, 16, {v(t)}")
        A(f"v_and_b32 {v(r+1)}, 0xffff0000, {v(t)}")
    A(f"v_max3_f32 {v(vT0)}, {v(vS)}, {v(vS+1)}, {v(vS+2)}")
    for i in range(3, 15, 2):
        A(f"v_max3_f32 {v(vT0)}, {v(vT0)}, {v(vS+i)}, {v(vS+i+1)}")
    A(f"v_max_f32 {v(vT0)}, {v(vT0)}, {v(vS+15)}")
    xrow(vT0, vT1, "v_max_f32")
    A(f"""
      v_lshrrev_b32 {v(vT2)}, 2, {v(vN)}
      v_lshlrev_b32 {v(vT2)}, 4, {v(vT2)}
      s_lshl_b32 {s(sT0)}, {s(sWAVE)}, 2
      v_add_u32 {v(vT3)}, {s(sT0)}, {v(vT2)}
      ds_write_b32 {v(vT3)}, {v(vT0)} offset:{L_MX}
      s_waitcnt lgkmcnt(0)
      s_barrier
      ds_read_b128 {v(vU,4)}, {v(vT2)} offset:{L_MX}
      s_mov_b32 {s(sC0)}, 0x3fb8aa3b
      s_waitcnt lgkmcnt(0)
      v_max3_f32 {v(vT0)}, {v(vU)}, {v(vU+1)}, {v(vU+2)}
      v_max_f32 {v(vT0)}, {v(vT0)}, {v(vU+3)}
      v_mul_f32 {v(vT0)}, {s(sC0)}, {v(vT0)}
    """)
    for i in range(16):
        A(f"v_fma_f32 {v(vS+i)}, {v(vS+i)}, {s(sC0)}, -{v(vT0)}")
    for i in range(16):
        A(f"v_exp_f32 {v(vS+i)}, {v(vS+i)}")
    A.nop(1)
    A(f"v_add_f32 {v(vT1)}, {v(vS)}, {v(vS+1)}")
    for i in range(2, 16):
        A(f"v_add_f32 {v(vT1)}, {v(vT1)}, {v(vS+i)}")
    xrow(vT1, vT4, "v_add_f32")
    A(f"ds_write_b32 {v(vT3)}, {v(vT1)} offset:{L_LS}")
    for i in range(16):
        A(f"v_cvt_pk_bf16_f32 {v(vS+i)}, {v(vS+i)}, {v(vS+i)}")
    for i in range(16):
        A(f"v_and_b32 {v(vK+2*i)}, {v(vS+i)}, {v(vM0)}")
        A(f"v_and_b32 {v(vK+2*i+1)}, {v(vS+i)}, {v(vM1)}")
    A(f"""
      s_waitcnt lgkmcnt(0)
      s_barrier
      s_lshl_b32 {s(sT0)}, {s(sWAVE)}, 4
      v_mov_b32 {v(vT6)}, {s(sT0)}
      ds_read_b128 {v(vP+4,4)}, {v(vT6)} offset:{L_LS}
      ds_read_b128 {v(vP+8,4)}, {v(vT6)} offset:{L_MX}
      s_lshl_b32 {s(sT0)}, {s(sKVH)}, 2
      s_add_u32 {s(sT0)}, {s(sT0)}, {s(sWAVE)}
      s_lshl_b32 {s(sT0)}, {s(sT0)}, 9
      s_lshl_b32 {s(sT1)}, {s(sA)}, 4
      s_add_u32 {s(sT0)}, {s(sT0)}, {s(sT1)}
      s_add_u32 {s(sT0)}, {s(sT0)}, {WS_SG}
      v_mov_b32 {v(vT5)}, {s(sT0)}
      s_waitcnt lgkmcnt(0)
      v_add_f32 {v(vP+4)}, {v(vP+4)}, {v(vP+5)}
      v_add_f32 {v(vP+6)}, {v(vP+6)}, {v(vP+7)}
      v_add_f32 {v(vP+6)}, {v(vP+4)}, {v(vP+6)}
      v_max3_f32 {v(vP+4)}, {v(vP+8)}, {v(vP+9)}, {v(vP+10)}
      v_max_f32 {v(vP+4)}, {v(vP+4)}, {v(vP+11)}
      v_mul_f32 {v(vP+4)}, {s(sC0)}, {v(vP+4)}
      v_mov_b32 {v(vP+5)}, {s(sTAG)}
      v_mov_b32 {v(vP+7)}, {s(sTAG)}
      v_cmp_eq_u32 vcc, 0, {v(vL)}
      s_and_saveexec_b64 {s(sEX,2)}, vcc
      global_store_dwordx4 {v(vT5)}, {v(vP+4,4)}, {s(sWS,2)}{FS}
      s_mov_b64 exec, {s(sEX,2)}
    """)
    ts("p_done")
    if LATEW:
        ld_wd(); ld_wo()
    LnoG = A.label("noG")
    A(f"""
      s_cmp_ge_u32 s2, 224
      s_cbranch_scc1 {LnoG}
    """)
    poll_loop(issue_g, [vGP+1, vGP+3], "g", first_issued=True, waitn=(16 - QPOS) + 6 + 1)
    for r in (vGP, vGP+2):
        A.nop(2)
        A(f"v_add_f32_dpp {v(r)}, {v(r)}, {v(r)} row_ror:8 row_mask:0xf bank_mask:0xf")
        A(f"v_mov_b32 {v(vT0)}, {v(r)}")
        A.nop(2)
        A(f"v_permlane16_swap_b32 {v(r)}, {v(vT0)}")
        A(f"v_add_f32 {v(r)}, {v(r)}, {v(vT0)}")
    for r, tt in ((vGP, vGP+1), (vGP+2, vGP+3)):
        A(f"v_mov_b32 {v(tt)}, {v(r)}")
        A.nop(2)
        A(f"v_permlane32_swap_b32 {v(r)}, {v(tt)}")
    A(f"""
      v_cvt_pk_bf16_f32 {v(vT6)}, {v(vGP)}, {v(vGP+2)}
      v_cvt_pk_bf16_f32 {v(vT7)}, {v(vGP+1)}, {v(vGP+3)}
      v_lshlrev_b32 {v(vS+8)}, 16, {v(vT6)}
      v_and_b32 {v(vS+9)}, 0xffff0000, {v(vT6)}
      v_lshlrev_b32 {v(vS+10)}, 16, {v(vT7)}
      v_and_b32 {v(vS+11)}, 0xffff0000, {v(vT7)}
      s_mov_b32 {s(sC0)}, 0xbfb8aa3b
      v_mul_f32 {v(vS+8)}, {s(sC0)}, {v(vS+8)}
      v_mul_f32 {v(vS+9)}, {s(sC0)}, {v(vS+9)}
      v_exp_f32 {v(vS+8)}, {v(vS+8)}
      v_exp_f32 {v(vS+9)}, {v(vS+9)}
      s_nop 0
      v_add_f32 {v(vS+8)}, 1.0, {v(vS+8)}
      v_add_f32 {v(vS+9)}, 1.0, {v(vS+9)}
      v_rcp_f32 {v(vS+8)}, {v(vS+8)}
      v_rcp_f32 {v(vS+9)}, {v(vS+9)}
      s_nop 0
      v_cvt_pk_bf16_f32 {v(vT6)}, {v(vS+8)}, {v(vS+9)}
      v_lshlrev_b32 {v(vS+8)}, 16, {v(vT6)}
      v_and_b32 {v(vS+9)}, 0xffff0000, {v(vT6)}
      v_pk_mul_f32 {v(vS+8,2)}, {v(vS+8,2)}, {v(vS+10,2)}
      v_cvt_pk_bf16_f32 {v(vS+12)}, {v(vS+8)}, {v(vS+8)}
      v_cvt_pk_bf16_f32 {v(vS+13)}, {v(vS+9)}, {v(vS+9)}
    """)
    A(f"""
      s_lshl_b32 {s(sT0)}, {s(sWAVE)}, 7
      v_bfe_u32 {v(vT4)}, {v(vL)}, 2, 1
      v_lshlrev_b32 {v(vT4)}, 6, {v(vT4)}
      v_and_b32 {v(vT5)}, 1, {v(vL)}
      v_lshl_add_u32 {v(vT4)}, {v(vT5)}, 5, {v(vT4)}
      v_bfe_u32 {v(vT5)}, {v(vL)}, 1, 1
      v_lshl_add_u32 {v(vT4)}, {v(vT5)}, 2, {v(vT4)}
      v_add_u32 {v(vT4)}, {s(sT0)}, {v(vT4)}
      ds_write_b32 {v(vT4)}, {v(vS+12)} offset:{L_HV}
      ds_write_b32 {v(vT4)}, {v(vS+13)} offset:{L_HV+16}
      v_bfe_u32 {v(vT5)}, {v(vL)}, 3, 1
      v_lshlrev_b32 {v(vT5)}, 6, {v(vT5)}
      v_lshl_add_u32 {v(vT5)}, {v(vGq)}, 4, {v(vT5)}
      v_add_u32 {v(vT5)}, {s(sT0)}, {v(vT5)}
      ds_read_b64 {v(vP,2)}, {v(vT5)} offset:{L_HV}
      s_waitcnt lgkmcnt(0)
    """)
    for i in range(2):
        for k in range(4):
            A(f"v_and_b32 {v(vQ+4*i+k)}, {v(vP+i)}, {v(vMK+k)}")
    A(f"{LnoG}:")
    ts("h_done")
    vAo, vAr0, vAr1, vAog, vAst, vApo, vApg = vP+12, vP+13, vP+14, vP+15, vXR+0, vEP, vS
    vApo, vApg = vS, vS+1
    A(f"""
      s_lshl_b32 {s(sT0)}, {s(sWAVE)}, 11
      v_lshlrev_b32 {v(vAo)}, 9, {v(vGq)}
      v_lshl_add_u32 {v(vAo)}, {v(vN)}, 5, {v(vAo)}
      v_add_u32 {v(vAo)}, {s(sT0)}, {v(vAo)}
    """)
    A(f"""
      v_lshrrev_b32 {v(vT4)}, 3, {v(vL)}
      v_lshlrev_b32 {v(vT4)}, 4, {v(vT4)}
      v_and_b32 {v(vT5)}, 1, {v(vL)}
      v_lshl_add_u32 {v(vT4)}, {v(vT5)}, 3, {v(vT4)}
      v_bfe_u32 {v(vT5)}, {v(vL)}, 1, 2
      v_add_u32 {v(vT4)}, {v(vT4)}, {v(vT5)}
      v_lshlrev_b32 {v(vT4)}, 2, {v(vT4)}
      s_lshl_b32 {s(sT0)}, {s(sWAVE)}, 9
      s_add_u32 {s(sT0)}, {s(sT0)}, {L_OP}
      v_add_u32 {v(vAr0)}, {s(sT0)}, {v(vT4)}
      v_add_u32 {v(vAr1)}, 16, {v(vAr0)}
    """)
    A(f"""
      s_lshl_b32 {s(sT0)}, {s(sKVH)}, 16
      s_lshl_b32 {s(sT1)}, {s(sWAVE)}, 14
      s_add_u32 {s(sT0)}, {s(sT0)}, {s(sT1)}
      s_lshl_b32 {s(sT1)}, {s(sA)}, 6
      s_add_u32 {s(sT0)}, {s(sT0)}, {s(sT1)}
      s_add_u32 {s(sT0)}, {s(sT0)}, {WS_OG}
      v_lshrrev_b32 {v(vT4)}, 3, {v(vL)}
      v_lshlrev_b32 {v(vT4)}, 11, {v(vT4)}
      v_and_b32 {v(vT5)}, 7, {v(vL)}
      v_lshl_add_u32 {v(vT4)}, {v(vT5)}, 3, {v(vT4)}
      v_add_u32 {v(vAog)}, {s(sT0)}, {v(vT4)}
    """)
    A(f"""
      s_lshl_b32 {s(sT0)}, {s(sKVH)}, 2
      s_lshr_b32 {s(sT1)}, {s(sA)}, 3
      s_add_u32 {s(sT0)}, {s(sT0)}, {s(sT1)}
      s_lshl_b32 {s(sT0)}, {s(sT0)}, 9
      s_add_u32 {s(sT0)}, {s(sT0)}, {WS_SG}
      v_bfe_u32 {v(vT4)}, {v(vL)}, 3, 1
      v_lshlrev_b32 {v(vAst)}, 8, {v(vT4)}
      v_lshl_add_u32 {v(vAst)}, {v(vT5)}, 4, {v(vAst)}
      v_add_u32 {v(vAst)}, {s(sT0)}, {v(vAst)}
      s_lshl_b32 {s(sT0)}, {s(sKVH)}, 5
      s_add_u32 {s(sT0)}, {s(sT0)}, {s(sA)}
      s_lshl_b32 {s(sT0)}, {s(sT0)}, 11
      s_add_u32 {s(sT0)}, {s(sT0)}, {WS_OG}
      v_lshlrev_b32 {v(vApo)}, 10, {v(vT4)}
      v_lshl_add_u32 {v(vApo)}, {v(vT5)}, 6, {v(vApo)}
      v_lshl_add_u32 {v(vApo)}, {v(vGq)}, 4, {v(vApo)}
      v_add_u32 {v(vApo)}, {s(sT0)}, {v(vApo)}
    """)
    A(f"""
      s_lshl_b32 {s(sT0)}, s2, 12
      s_lshl_b32 {s(sT1)}, {s(sWAVE)}, 9
      s_add_u32 {s(sT0)}, {s(sT0)}, {s(sT1)}
      s_add_u32 {s(sT0)}, {s(sT0)}, {WS_PG}
      v_lshrrev_b32 {v(vT4)}, 1, {v(vGq)}
      v_lshlrev_b32 {v(vT4)}, 11, {v(vT4)}
      v_lshl_add_u32 {v(vT4)}, {v(vN)}, 5, {v(vT4)}
      v_and_b32 {v(vT5)}, 1, {v(vGq)}
      v_lshl_add_u32 {v(vT4)}, {v(vT5)}, 4, {v(vT4)}
      v_add_u32 {v(vApg)}, {s(sT0)}, {v(vT4)}
      v_mov_b32 {v(vD3)}, 0
      v_mov_b32 {v(vD3+1)}, 0
      v_mov_b32 {v(vD3+2)}, 0
      v_mov_b32 {v(vD3+3)}, 0
      v_mov_b32 {v(vT1)}, {s(sTAG)}
    """)
    for i in range(16):
        A(f"s_waitcnt vmcnt({(15 - i) + AFTER_V + 1})")
        c0 = "0" if i == 0 else v(vOA,4)
        c1 = "0" if i == 0 else v(vOA+4,4)
        A(f"v_mfma_f32_16x16x16_bf16 {v(vOA,4)}, {v(vK+2*i,2)}, {v(vV+4*i,2)}, {c0}")
        A(f"v_mfma_f32_16x16x16_bf16 {v(vOA+4,4)}, {v(vK+2*i,2)}, {v(vV+4*i+2,2)}, {c1}")
    ts("pv_done")
    A.nop(8)
    A(f"""
      ds_write_b128 {v(vAo)}, {v(vOA,4)} offset:{L_OP}
      ds_write_b128 {v(vAo)}, {v(vOA+4,4)} offset:{L_OP+16}
      s_waitcnt lgkmcnt(0)
      s_barrier
      ds_read2st64_b32 {v(vU,2)}, {v(vAr0)} offset0:0 offset1:8
      ds_read2st64_b32 {v(vU+2,2)}, {v(vAr0)} offset0:16 offset1:24
      ds_read2st64_b32 {v(vU+4,2)}, {v(vAr1)} offset0:0 offset1:8
      ds_read2st64_b32 {v(vU+6,2)}, {v(vAr1)} offset0:16 offset1:24
      s_waitcnt lgkmcnt(2)
      v_pk_add_f32 {v(vU,2)}, {v(vU,2)}, {v(vU+2,2)}
      s_waitcnt lgkmcnt(0)
      v_pk_add_f32 {v(vU+4,2)}, {v(vU+4,2)}, {v(vU+6,2)}
      v_add_f32 {v(vU)}, {v(vU)}, {v(vU+1)}
      v_add_f32 {v(vU+4)}, {v(vU+4)}, {v(vU+5)}
      v_cvt_pk_bf16_f32 {v(vT0)}, {v(vU)}, {v(vU+4)}
      global_store_dwordx2 {v(vAog)}, {v(vT0,2)}, {s(sWS,2)}{FS}
    """)
    ts("o_published")
    vST = vV
    vOO = vV + 8
    def issue_st():
        A(f"global_load_dwordx4 {v(vST,4)}, {v(vAst)}, {s(sWS,2)} sc1")
        A(f"global_load_dwordx4 {v(vST+4,4)}, {v(vAst)}, {s(sWS,2)} offset:128 sc1")
    def issue_o():
        A(f"global_load_dwordx4 {v(vOO,4)}, {v(vApo)}, {s(sWS,2)} sc1")
        A(f"global_load_dwordx4 {v(vOO+4,4)}, {v(vApo)}, {s(sWS,2)} offset:512 sc1")
    issue_st()
    issue_o()
    if TS:
        A("s_waitcnt vmcnt(5)")
        ts("w_arr")
        A("s_waitcnt vmcnt(4)")
        ts("o_ack")
        A("s_waitcnt vmcnt(2)")
        ts("st_ret")
        A("s_waitcnt vmcnt(0)")
        ts("o_ret")
    poll_loop(issue_st, [vST+1, vST+3, vST+5, vST+7], "st", first_issued=True, waitn=2)
    ts("st_done")
    LskipB = A.label("skipB")
    A(f"""
      s_cmp_ge_u32 s2, 224
      s_cbranch_scc1 {LskipB}
    """)
    for i in range(2):
        A(f"v_mfma_f32_16x16x32_bf16 {v(vD3,4)}, {v(vQ+4*i,4)}, {v(vWO+16+4*i,4)}, {v(vD3,4)}")
    A(f"{LskipB}:")
    def red8(regs, op):
        n = len(regs)
        for ctrl in ("quad_perm:[1,0,3,2]", "quad_perm:[2,3,0,1]", "row_half_mirror"):
            if n < 3: A.nop(3 - n)
            for r in regs:
                A(f"{op}_dpp {v(r)}, {v(r)}, {v(r)} {ctrl} row_mask:0xf bank_mask:0xf")
    A(f"v_max_f32 {v(vT2)}, {v(vST)}, {v(vST+4)}")
    A.nop(1)
    red8([vT2], "v_max_f32")
    A(f"""
      v_sub_f32 {v(vT3)}, {v(vST)}, {v(vT2)}
      v_sub_f32 {v(vT4)}, {v(vST+4)}, {v(vT2)}
      v_exp_f32 {v(vT3)}, {v(vT3)}
      v_exp_f32 {v(vT4)}, {v(vT4)}
      s_nop 0
      v_mul_f32 {v(vT2)}, {v(vT3)}, {v(vST+2)}
      v_fma_f32 {v(vT2)}, {v(vT4)}, {v(vST+6)}, {v(vT2)}
      s_nop 1
    """)
    red8([vT2], "v_add_f32")
    A(f"""
      v_rcp_f32 {v(vT2)}, {v(vT2)}
      s_nop 0
      v_mul_f32 {v(vT3)}, {v(vT3)}, {v(vT2)}
      v_mul_f32 {v(vT4)}, {v(vT4)}, {v(vT2)}
    """)
    poll_loop(issue_o, [vOO+1, vOO+3, vOO+5, vOO+7], "h1", first_issued=True, waitn=0)
    ts("h1_done")
    A(f"""
      v_lshlrev_b32 {v(vU)}, 16, {v(vOO)}
      v_and_b32 {v(vU+1)}, 0xffff0000, {v(vOO)}
      v_lshlrev_b32 {v(vU+2)}, 16, {v(vOO+2)}
      v_and_b32 {v(vU+3)}, 0xffff0000, {v(vOO+2)}
      v_lshlrev_b32 {v(vU+4)}, 16, {v(vOO+4)}
      v_and_b32 {v(vU+5)}, 0xffff0000, {v(vOO+4)}
      v_lshlrev_b32 {v(vU+6)}, 16, {v(vOO+6)}
      v_and_b32 {v(vU+7)}, 0xffff0000, {v(vOO+6)}
    """)
    for i in range(4):
        A(f"v_mul_f32 {v(vU+i)}, {v(vU+i)}, {v(vT3)}")
    for i in range(4):
        A(f"v_fma_f32 {v(vU+i)}, {v(vU+4+i)}, {v(vT4)}, {v(vU+i)}")
    red8([vU, vU+1, vU+2, vU+3], "v_add_f32")
    for i in range(4):
        A(f"v_cvt_pk_bf16_f32 {v(vU+i)}, {v(vU+i)}, {v(vU+i)}")
    for i in range(4):
        for k in range(4):
            A(f"v_and_b32 {v(vQ+4*i+k)}, {v(vU+i)}, {v(vMK+k)}")
    A.nop(1)
    for i in range(4):
        A(f"v_mfma_f32_16x16x32_bf16 {v(vD3,4)}, {v(vQ+4*i,4)}, {v(vWO+4*i,4)}, {v(vD3,4)}")
    A(f"""
      v_mov_b32 {v(vU+1)}, {s(sTAG)}
      v_mov_b32 {v(vU+3)}, {s(sTAG)}
    """)
    A.nop(6)
    A(f"""
      v_cvt_pk_bf16_f32 {v(vU)}, {v(vD3)}, {v(vD3+1)}
      v_cvt_pk_bf16_f32 {v(vU+2)}, {v(vD3+2)}, {v(vD3+3)}
      global_store_dwordx4 {v(vApg)}, {v(vU,4)}, {s(sWS,2)} sc1
    """)
    ts("p_published")
    A(f"""
      s_cmp_lt_u32 {s(sA)}, 24
      s_cbranch_scc1 Lend
      s_sub_u32 {s(sT0)}, {s(sA)}, 24
      s_lshl_b32 {s(sT0)}, {s(sT0)}, 3
      s_add_u32 {s(sT3)}, {s(sT0)}, {s(sKVH)}
      s_lshl_b32 {s(sT0)}, {s(sT3)}, 5
      v_lshlrev_b32 {v(vT4)}, 1, {v(vN)}
      v_add_u32 {v(vT4)}, {s(sT0)}, {v(vT4)}
      global_load_ushort {v(vXR)}, {v(vT4)}, {s(sX,2)}
      s_lshl_b32 {s(sT0)}, {s(sT3)}, 6
      s_add_u32 {s(sT0)}, {s(sT0)}, {WS_PG}
      v_lshrrev_b32 {v(vT5)}, 2, v0
      v_lshlrev_b32 {v(vT5)}, 12, {v(vT5)}
      v_and_b32 {v(vT0)}, 3, {v(vL)}
      v_lshl_add_u32 {v(vT5)}, {v(vT0)}, 4, {v(vT5)}
      v_add_u32 {v(vT5)}, {s(sT0)}, {v(vT5)}
      v_add_u32 {v(vT1)}, 0x40000, {v(vT5)}
      v_add_u32 {v(vT2)}, 0x80000, {v(vT5)}
      v_add_u32 {v(vT3)}, 0xc0000, {v(vT5)}
    """)
    def issue_p():
        for i, r in enumerate((vT5, vT1, vT2, vT3)):
            A(f"global_load_dwordx4 {v(vK+4*i,4)}, {v(r)}, {s(sWS,2)} sc1")
    poll_loop(issue_p, [vK+4*i+k for i in range(4) for k in (1, 3)], "h2")
    ts("h2_done")
    for i in range(4):
        A(f"v_lshlrev_b32 {v(vV+4*i)}, 16, {v(vK+4*i)}")
        A(f"v_and_b32 {v(vV+4*i+1)}, 0xffff0000, {v(vK+4*i)}")
        A(f"v_lshlrev_b32 {v(vV+4*i+2)}, 16, {v(vK+4*i+2)}")
        A(f"v_and_b32 {v(vV+4*i+3)}, 0xffff0000, {v(vK+4*i+2)}")
    for h in range(2):
        A(f"v_pk_add_f32 {v(vV+2*h,2)}, {v(vV+2*h,2)}, {v(vV+4+2*h,2)}")
        A(f"v_pk_add_f32 {v(vV+8+2*h,2)}, {v(vV+8+2*h,2)}, {v(vV+12+2*h,2)}")
    for h in range(2):
        A(f"v_pk_add_f32 {v(vV+2*h,2)}, {v(vV+2*h,2)}, {v(vV+8+2*h,2)}")
    A.nop(2)
    A(f"v_permlane32_swap_b32 {v(vV)}, {v(vV+2)}")
    A(f"v_permlane32_swap_b32 {v(vV+1)}, {v(vV+3)}")
    A(f"v_add_f32 {v(vV)}, {v(vV)}, {v(vV+2)}")
    A(f"v_add_f32 {v(vV+1)}, {v(vV+1)}, {v(vV+3)}")
    A.nop(2)
    A(f"v_permlane16_swap_b32 {v(vV)}, {v(vV+1)}")
    A(f"v_add_f32 {v(vV)}, {v(vV)}, {v(vV+1)}")
    A.nop(2)
    A(f"v_add_f32_dpp {v(vV)}, {v(vV)}, {v(vV)} row_ror:4 row_mask:0xf bank_mask:0xf")
    A.nop(2)
    A(f"v_add_f32_dpp {v(vV)}, {v(vV)}, {v(vV)} row_ror:8 row_mask:0xf bank_mask:0xf")
    A(f"""
      s_lshl_b32 {s(sT0)}, {s(sWAVE)}, 6
      v_lshlrev_b32 {v(vT4)}, 4, {v(vT0)}
      v_lshl_add_u32 {v(vT4)}, {v(vGq)}, 2, {v(vT4)}
      v_add_u32 {v(vT4)}, {s(sT0)}, {v(vT4)}
      ds_write_b32 {v(vT4)}, {v(vV)} offset:{L_FN}
      v_lshlrev_b32 {v(vT4)}, 2, {v(vN)}
      s_waitcnt lgkmcnt(0)
      s_barrier
      s_cmp_lg_u32 {s(sWAVE)}, 0
      s_cbranch_scc1 Lend
    """)
    for u in range(4):
        A(f"ds_read_b32 {v(vU+u)}, {v(vT4)} offset:{L_FN + 64*u}")
    A(f"""
      v_lshlrev_b32 {v(vT0)}, 16, {v(vXR)}
      s_lshl_b32 {s(sT0)}, {s(sT3)}, 5
      v_lshlrev_b32 {v(vT4)}, 1, {v(vN)}
      v_add_u32 {v(vT4)}, {s(sT0)}, {v(vT4)}
      s_waitcnt lgkmcnt(0)
      v_add_f32 {v(vU)}, {v(vU)}, {v(vU+1)}
      v_add_f32 {v(vU+2)}, {v(vU+2)}, {v(vU+3)}
      v_add_f32 {v(vU)}, {v(vU)}, {v(vU+2)}
      v_add_f32 {v(vU)}, {v(vU)}, {v(vT0)}
      v_cvt_pk_bf16_f32 {v(vU)}, {v(vU)}, {v(vU)}
      v_cmp_gt_u32 vcc, 16, {v(vL)}
      s_and_saveexec_b64 {s(sEX,2)}, vcc
      global_store_short {v(vT4)}, {v(vU)}, {s(sOUT,2)}
      s_mov_b64 exec, {s(sEX,2)}
      s_cmp_lg_u32 {s(sT3)}, 0
      s_cbranch_scc1 Lend
      v_mov_b32 {v(vT4)}, 0
      v_mov_b32 {v(vT5)}, {s(sTAG)}
      v_cmp_eq_u32 vcc, 0, {v(vL)}
      s_and_saveexec_b64 {s(sEX,2)}, vcc
      global_store_dword {v(vT4)}, {v(vT5)}, {s(sWS,2)} sc1
      s_mov_b64 exec, {s(sEX,2)}
      s_branch Lend
    """)
    A("Laux:")
    role[0] = "X"
    if PRIO:
        A("s_setprio 3")
    A(f"""
      s_sub_u32 {s(sROLE)}, {s(sWAVE)}, 4
      v_lshlrev_b32 {v(vT1)}, 4, {v(vL)}
      v_lshrrev_b32 {v(vT2)}, 3, {v(vL)}
      v_and_b32 {v(vT3)}, 7, {v(vL)}
      s_and_b32 {s(sKS)}, {s(sA)}, 3
      s_lshr_b32 {s(sT0)}, {s(sA)}, 2
      s_lshl_b32 {s(sT1)}, {s(sKVH)}, 3
      s_add_u32 {s(sT0)}, {s(sT0)}, {s(sT1)}
      s_lshl_b32 {s(sT0)}, {s(sT0)}, 7
      s_lshl_b32 {s(sT1)}, {s(sKS)}, 20
      s_add_u32 {s(sT2)}, {s(sT0)}, {s(sT1)}
      s_movk_i32 {s(sSTR)}, 0x2000
      s_cmp_eq_u32 {s(sROLE)}, 0
      s_cbranch_scc1 Laux_w
      s_and_b32 {s(sKS)}, s2, 3
      s_lshr_b32 {s(sT0)}, s2, 2
      s_cmp_ge_u32 {s(sT0)}, 28
      s_cselect_b32 {s(sT3)}, 1, 0
      s_cselect_b32 {s(sT1)}, 28, 0
      s_sub_u32 {s(sT0)}, {s(sT0)}, {s(sT1)}
      s_cmp_ge_u32 s2, 224
      s_cselect_b32 {s(sT0)}, 0, {s(sT0)}
      s_lshl_b32 {s(sT2)}, {s(sT0)}, 7
      s_mul_i32 {s(sT1)}, {s(sKS)}, {128*3584}
      s_add_u32 {s(sT2)}, {s(sT2)}, {s(sT1)}
      s_movk_i32 {s(sSTR)}, 3584
      s_mov_b32 {s(sTILE)}, {s(sT0)}
      s_mov_b32 {s(sTILE+1)}, {s(sT3)}
      s_waitcnt lgkmcnt(0)
      s_cmp_eq_u32 {s(sT3)}, 0
      s_cselect_b32 {s(sWQ)}, {s(sG)}, {s(sU)}
      s_cselect_b32 {s(sWQ+1)}, {s(sG+1)}, {s(sU+1)}
    """)
    A("Laux_w:")
    A(f"""
      s_waitcnt lgkmcnt(0)
      s_add_u32 {s(sWb)}, {s(sWQ)}, {s(sT2)}
      s_addc_u32 {s(sWb+1)}, {s(sWQ+1)}, 0
      v_mul_lo_u32 {v(vT2)}, {v(vT2)}, {s(sSTR)}
      v_lshl_add_u32 {v(vT2)}, {v(vT3)}, 4, {v(vT2)}
      s_lshl_b32 {s(sT0)}, {s(sSTR)}, 3
      global_load_dword {v(vEP)}, {v(vT7)}, {s(sWS,2)} sc1
      global_load_dwordx4 {v(vU,4)}, {v(vT1)}, {s(sX,2)}
      global_load_dwordx4 {v(vU+4,4)}, {v(vT1)}, {s(sX,2)} offset:1024
    """)
    for i in range(16):
        A(f"global_load_dwordx4 {v(vK+4*i,4)}, {v(vT2)}, {s(sWb,2)}{NT}")
        if i < 15:
            A(f"v_add_u32 {v(vT2)}, {s(sT0)}, {v(vT2)}")
    ts("issK")
    if BAR0:
        A("s_barrier")
    A("s_waitcnt vmcnt(16)")
    ts("issV")
    A(f"v_readfirstlane_b32 {s(sTAG)}, {v(vEP)}")
    for k in range(4):
        A(f"v_lshlrev_b32 {v(vP+4*k)}, 16, {v(vU+k)}")
        A(f"v_lshlrev_b32 {v(vP+4*k+1)}, 16, {v(vU+4+k)}")
        A(f"v_and_b32 {v(vP+4*k+2)}, 0xffff0000, {v(vU+k)}")
        A(f"v_and_b32 {v(vP+4*k+3)}, 0xffff0000, {v(vU+4+k)}")
    A(f"s_add_u32 {s(sTAG)}, {s(sTAG)}, 0x{TAG_DELTA:x}")
    def allreduce2(r0, r1, t0, t1, op="v_add_f32"):
        for sh in (8, 4, 2, 1):
            A.nop(1)
            A(f"{op}_dpp {v(r0)}, {v(r0)}, {v(r0)} row_ror:{sh} row_mask:0xf bank_mask:0xf")
            A(f"{op}_dpp {v(r1)}, {v(r1)}, {v(r1)} row_ror:{sh} row_mask:0xf bank_mask:0xf")
        for sw in ("v_permlane16_swap_b32", "v_permlane32_swap_b32"):
            A(f"v_mov_b32 {v(t0)}, {v(r0)}")
            A(f"v_mov_b32 {v(t1)}, {v(r1)}")
            A.nop(1)
            A(f"{sw} {v(r0)}, {v(t0)}")
            A(f"{sw} {v(r1)}, {v(t1)}")
            A(f"{op} {v(r0)}, {v(r0)}, {v(t0)}")
            A(f"{op} {v(r1)}, {v(r1)}, {v(t1)}")
    A(f"v_pk_add_f32 {v(vT0,2)}, {v(vP,2)}, {v(vP+2,2)}")
    for i in range(2, 8):
        A(f"v_pk_add_f32 {v(vT0,2)}, {v(vT0,2)}, {v(vP+2*i,2)}")
    A.nop(1)
    allreduce2(vT0, vT0+1, vT2, vT3)
    A(f"v_mul_f32 {v(vT0)}, 0x3b000000, {v(vT0)}")
    A(f"v_mul_f32 {v(vT0+1)}, 0x3b000000, {v(vT0+1)}")
    A(f"v_pk_add_f32 {v(vT4,2)}, {v(vP,2)}, {v(vT0,2)} neg_lo:[0,1] neg_hi:[0,1]")
    A(f"v_pk_mul_f32 {v(vT2,2)}, {v(vT4,2)}, {v(vT4,2)}")
    for i in range(1, 8):
        A(f"v_pk_add_f32 {v(vT4,2)}, {v(vP+2*i,2)}, {v(vT0,2)} neg_lo:[0,1] neg_hi:[0,1]")
        A(f"v_pk_fma_f32 {v(vT2,2)}, {v(vT4,2)}, {v(vT4,2)}, {v(vT2,2)}")
    A.nop(1)
    allreduce2(vT2, vT3, vT4, vT5)
    A(f"v_mul_f32 {v(vT2)}, 0x3b000000, {v(vT2)}")
    A(f"v_mul_f32 {v(vT3)}, 0x3b000000, {v(vT3)}")
    rnd_pair(vT0, vT6)
    rnd_pair(vT2, vT6)
    A(f"v_add_f32 {v(vT2)}, 0x3727c5ac, {v(vT2)}")
    A(f"v_add_f32 {v(vT3)}, 0x3727c5ac, {v(vT3)}")
    rnd_pair(vT2, vT6)
    A(f"v_sqrt_f32 {v(vT2)}, {v(vT2)}")
    A(f"v_sqrt_f32 {v(vT3)}, {v(vT3)}")
    A.nop(1)
    rnd_pair(vT2, vT6)
    A(f"v_rcp_f32 {v(vT2)}, {v(vT2)}")
    A(f"v_rcp_f32 {v(vT3)}, {v(vT3)}")
    A.nop(1)
    for i in range(8):
        r = vP + 2*i
        A(f"v_pk_add_f32 {v(r,2)}, {v(r,2)}, {v(vT0,2)} neg_lo:[0,1] neg_hi:[0,1]")
        rnd_pair(r, vT6)
        A(f"v_pk_mul_f32 {v(r,2)}, {v(r,2)}, {v(vT2,2)}")
        rnd_pair(r, vT6)
    A(f"""
      s_lshl_b32 {s(sT0)}, {s(sROLE)}, 12
      v_lshlrev_b32 {v(vT4)}, 6, {v(vL)}
      v_add_u32 {v(vT4)}, {s(sT0)}, {v(vT4)}
    """)
    for k in range(4):
        A(f"ds_write_b128 {v(vT4)}, {v(vP+4*k,4)} offset:{L_XN + 16*k}")
    A(f"""
      s_lshl_b32 {s(sT1)}, {s(sKS)}, 10
      s_add_u32 {s(sT0)}, {s(sT0)}, {s(sT1)}
      v_lshrrev_b32 {v(vT4)}, 3, {v(vL)}
      v_lshlrev_b32 {v(vT4)}, 3, {v(vT4)}
      v_add_u32 {v(vT4)}, {s(sT0)}, {v(vT4)}
    """)
    for i in range(16):
        A(f"ds_read_b64 {v(vV+2*i,2)}, {v(vT4)} offset:{L_XN + 64*i}")
    ts("issW")
    def gemv_piece(acc, wreg, xn, first):
        for k in range(4):
            u = vU + 2*(k & 1)
            A(f"v_lshlrev_b32 {v(u)}, 16, {v(wreg+k)}")
            A(f"v_and_b32 {v(u+1)}, 0xffff0000, {v(wreg+k)}")
            if first:
                A(f"v_pk_mul_f32 {v(acc+4*k,2)}, {v(xn,2)}, {v(u,2)} op_sel:[0,0] op_sel_hi:[1,0]")
                A(f"v_pk_mul_f32 {v(acc+4*k+2,2)}, {v(xn,2)}, {v(u,2)} op_sel:[0,1] op_sel_hi:[1,1]")
            else:
                A(f"v_pk_fma_f32 {v(acc+4*k,2)}, {v(xn,2)}, {v(u,2)}, {v(acc+4*k,2)} op_sel:[0,0,0] op_sel_hi:[1,0,1]")
                A(f"v_pk_fma_f32 {v(acc+4*k+2,2)}, {v(xn,2)}, {v(u,2)}, {v(acc+4*k+2,2)} op_sel:[0,1,0] op_sel_hi:[1,1,1]")
    A("s_waitcnt lgkmcnt(0)")
    for i in range(16):
        A(f"s_waitcnt vmcnt({15 - i})")
        gemv_piece(vS, vK+4*i, vV+2*i, i == 0)
    ts("Kdone")
    acc = vS
    A.nop(1)
    for i in range(8):
        A(f"v_permlane32_swap_b32 {v(acc+i)}, {v(acc+i+8)}")
    for i in range(8):
        A(f"v_add_f32 {v(acc+i)}, {v(acc+i)}, {v(acc+i+8)}")
    A.nop(1)
    for i in range(4):
        A(f"v_permlane16_swap_b32 {v(acc+i)}, {v(acc+i+4)}")
    for i in range(4):
        A(f"v_add_f32 {v(acc+i)}, {v(acc+i)}, {v(acc+i+4)}")
    A.nop(1)
    for i in range(2):
        A(f"v_add_f32_dpp {v(acc+4+i)}, {v(acc+i)}, {v(acc+i)} row_ror:8 row_mask:0xf bank_mask:0x3")
        A(f"v_add_f32_dpp {v(acc+4+i)}, {v(acc+i+2)}, {v(acc+i+2)} row_ror:8 row_mask:0xf bank_mask:0xc")
    A(f"""
      s_lshl_b32 {s(sT0)}, {s(sROLE)}, 9
      v_and_b32 {v(vT4)}, 7, {v(vL)}
      v_lshlrev_b32 {v(vT4)}, 3, {v(vT4)}
      v_lshrrev_b32 {v(vT5)}, 3, {v(vL)}
      v_add_u32 {v(vT4)}, {v(vT4)}, {v(vT5)}
      v_lshlrev_b32 {v(vT4)}, 3, {v(vT4)}
      v_add_u32 {v(vT4)}, {s(sT0)}, {v(vT4)}
      ds_write_b64 {v(vT4)}, {v(acc+4,2)} offset:{L_TR}
      s_cmp_eq_u32 {s(sROLE)}, 0
      s_cbranch_scc0 Laux_gst
    """)
    A(f"""
      v_and_b32 {v(vT5)}, 31, {v(vL)}
      v_lshrrev_b32 {v(vT6)}, 5, {v(vL)}
      v_lshlrev_b32 {v(vT4)}, 4, {v(vT5)}
      v_lshl_add_u32 {v(vT4)}, {v(vT6)}, 2, {v(vT4)}
      s_lshl_b32 {s(sT1)}, {s(sKVH)}, 15
      s_lshl_b32 {s(sT2)}, {s(sKS)}, 12
      s_add_u32 {s(sT1)}, {s(sT1)}, {s(sT2)}
      s_lshr_b32 {s(sT2)}, {s(sA)}, 2
      s_lshl_b32 {s(sT2)}, {s(sT2)}, 9
      s_add_u32 {s(sT1)}, {s(sT1)}, {s(sT2)}
      s_add_u32 {s(sT1)}, {s(sT1)}, {WS_QG}
      v_lshlrev_b32 {v(vT6)}, 14, {v(vT6)}
      v_lshl_add_u32 {v(vT5)}, {v(vT5)}, 4, {v(vT6)}
      v_add_u32 {v(vT5)}, {s(sT1)}, {v(vT5)}
      s_branch Laux_st
    """)
    A("Laux_gst:")
    A(f"""
      v_lshrrev_b32 {v(vT5)}, 3, {v(vL)}
      v_and_b32 {v(vT6)}, 3, {v(vL)}
      v_lshl_add_u32 {v(vT4)}, {v(vT5)}, 2, {v(vT6)}
      v_lshlrev_b32 {v(vT4)}, 4, {v(vT4)}
      v_bfe_u32 {v(vT6)}, {v(vL)}, 2, 1
      v_lshl_add_u32 {v(vT4)}, {v(vT6)}, 2, {v(vT4)}
      v_add_u32 {v(vT4)}, 512, {v(vT4)}
      s_lshl_b32 {s(sT1)}, {s(sTILE)}, 13
      s_lshl_b32 {s(sT2)}, {s(sTILE+1)}, 2
      s_add_u32 {s(sT2)}, {s(sT2)}, {s(sKS)}
      s_lshl_b32 {s(sT2)}, {s(sT2)}, 7
      s_add_u32 {s(sT1)}, {s(sT1)}, {s(sT2)}
      s_add_u32 {s(sT1)}, {s(sT1)}, {WS_GG}
      v_lshlrev_b32 {v(vT5)}, 10, {v(vT5)}
      v_and_b32 {v(vT6)}, 7, {v(vL)}
      v_lshl_add_u32 {v(vT5)}, {v(vT6)}, 4, {v(vT5)}
      v_add_u32 {v(vT5)}, {s(sT1)}, {v(vT5)}
    """)
    A("Laux_st:")
    Lnost = A.label("nost")
    A(f"""
      ds_read_b32 {v(vU)}, {v(vT4)} offset:{L_TR}
      ds_read_b32 {v(vU+2)}, {v(vT4)} offset:{L_TR+8}
      v_mov_b32 {v(vU+1)}, {s(sTAG)}
      v_mov_b32 {v(vU+3)}, {s(sTAG)}
      s_waitcnt lgkmcnt(0)
      s_cmp_eq_u32 {s(sROLE)}, 0
      s_cselect_b32 {s(sT0)}, 0, s2
      s_cmp_ge_u32 {s(sT0)}, 224
      s_cbranch_scc1 {Lnost}
      global_store_dwordx4 {v(vT5)}, {v(vU,4)}, {s(sWS,2)} sc1
    """)
    A(f"{Lnost}:")
    ts("p_done")
    A("Lend:")
    if TS and not DBG:
        ts("end")
        A("s_waitcnt lgkmcnt(0)")
        n = 19
        A(f"""
          s_mul_i32 {s(sT0)}, s2, 6
          s_add_u32 {s(sT0)}, {s(sT0)}, {s(sWAVE)}
          s_lshl_b32 {s(sT0)}, {s(sT0)}, 7
          s_add_u32 {s(sT0)}, {s(sT0)}, {WS_TS}
          v_mov_b32 {v(vT4)}, {s(sT0)}
          v_cmp_eq_u32 vcc, 0, {v(vL)}
          s_and_saveexec_b64 {s(sEX,2)}, vcc
        """)
        for k in range(n):
            A(f"v_mov_b32 {v(vT5)}, {s(64+2*k)}")
            A(f"global_store_dword {v(vT4)}, {v(vT5)}, {s(sWS,2)} offset:{4*k}")
    if DBG:
        ts("end")
        A("s_waitcnt lgkmcnt(0)")
        Ld = A.label("dbgskip")
        A(f"""
          s_cmp_ge_u32 {s(sWAVE)}, 4
          s_cbranch_scc1 {Ld}
          v_mov_b32 {v(vT4)}, 0
          v_cmp_eq_u32 vcc, 0, {v(vL)}
          s_and_saveexec_b64 {s(sEX,2)}, vcc
          s_not_b32 {s(sT0)}, {s(64)}
          v_mov_b32 {v(vT5)}, {s(sT0)}
          global_atomic_umax {v(vT4)}, {v(vT5)}, {s(sDBG,2)}
          v_mov_b32 {v(vT5)}, {s(64)}
          global_atomic_umax {v(vT4)}, {v(vT5)}, {s(sDBG,2)} offset:4
        """)
        names = ["issV", "p_done", "pv_done", "o_published", "o_ack", "st_done", "h1_done", "p_published", "end"]
        for i, nm in enumerate(names):
            k = 18 if nm == "end" else ts_map["A"].index(nm)
            A(f"v_mov_b32 {v(vT5)}, {s(64+2*k)}")
            A(f"global_atomic_umax {v(vT4)}, {v(vT5)}, {s(sDBG,2)} offset:{8+4*i}")
        A(f"{Ld}:")
    A("Lexit:")
    A("s_endpgm")
    hdr = f"""; fused decode kernel: layernorm -> {{windowed GQA attention + out proj}} + {{sigmoid GLU}} + residual
; @launch grid=(256,1,1) block=(384,1,1) lds={LDS_BYTES}
.amdgcn_target "amdgcn-amd-amdhsa--gfx950"
.text
.globl {NAME}
.p2align 8
.type {NAME},@function
{NAME}:
"""
    ftr = f"""
.section .rodata,"a"
.p2align 6
.amdhsa_kernel {NAME}
  .amdhsa_next_free_vgpr {NV}
  .amdhsa_next_free_sgpr 102
  .amdhsa_accum_offset {NV}
  .amdhsa_group_segment_fixed_size 0
  .amdhsa_kernarg_size 96
  .amdhsa_user_sgpr_count 2
  .amdhsa_user_sgpr_kernarg_segment_ptr 1
  .amdhsa_system_sgpr_workgroup_id_x 1
.end_amdhsa_kernel
"""
    return hdr + A.text() + ftr, (ts_map if TS else None)

NWAVES = 6
if __name__ == "__main__":
    out = sys.argv[1]
    opt = {}
    for a in sys.argv[2:]:
        k, val = a.split("=")
        opt[k] = int(val)
    txt, slots = gen(opt)
    open(out, "w").write(txt)
    print("wrote", out, "ts slots:", slots)
```

```python
import sys

NAME = "parallel_sum__sliding_block_cached__glu_gated_glu__decode_kernel"
NWAVES = 6
NAWAVES = 4

class Asm:
    def __init__(self):
        self.lines = []
        self.uid = 0
    def __call__(self, s):
        for ln in s.strip("\n").split("\n"):
            t = ln.strip()
            if not t: continue
            self.lines.append(t if t.endswith(":") else "  " + t)
    def label(self, base):
        self.uid += 1
        return f"L{base}_{self.uid}"
    def nop(self, n):
        while n > 0:
            k = min(n, 16)
            self(f"s_nop {k-1}")
            n -= k
    def text(self):
        return "\n".join(self.lines) + "\n"

def v(i, n=1):
    return f"v{i}" if n == 1 else f"v[{i}:{i+n-1}]"
def s(i, n=1):
    return f"s{i}" if n == 1 else f"s[{i}:{i+n-1}]"

WS_EPOCH = 0
WS_XG = 0x8000
WS_SG = 0x10000
WS_QG = 0x40000
WS_GG = 0x80000
WS_OG = 0x100000
WS_RG = 0x200000
WS_FG = 0x300000
WS_TS = 0x800000
TAG_DELTA = 0x9E3779B9

L_XN = 0
L_TR = 8192
L_QB = 9216
L_MX = 10240
L_LS = 10304
L_FN = 10624
L_HV = 11264
L_OP = 12288
LDS_BYTES = 20480

def gen(opt):
    A = Asm()
    TS = opt.get("ts", 0)
    NT = " nt" if opt.get("nt", 1) else ""
    WIN = opt.get("win", 8)
    NTH = opt.get("nth", 17)
    QPOS = opt.get("qpos", 0)
    SPIN = opt.get("spin", 2000000)
    CPF = opt.get("cpf", 1)
    FASTOK = opt.get("fast", 1)
    D1 = opt.get("d1", 1)
    D2 = opt.get("d2", 1)
    PGS = opt.get("pgs", 4352)
    role = ["A"]
    ts_map = {"A": ["start"], "X": ["start"]}
    SKIP = set(opt.get("_skip", ["issK", "q_done", "h_done", "issQ", "q_n"]))
    def slot(name):
        if name == "start": return 0
        if name == "end": return 18
        l = ts_map[role[0]]
        if name not in l: l.append(name)
        assert len(l) <= 18, l
        return l.index(name)
    def ts(name):
        if TS and not (role[0] == "A" and name in SKIP):
            A(f"s_memrealtime {s(64 + 2*slot(name), 2)}")

    sX, sK, sV, sWQ, sWO, sBX, sG, sU = 4, 6, 8, 10, 12, 14, 16, 18
    sWD, sOUT, sDBG, sWS = 20, 22, 24, 26
    sKVH, sA, sB, sTAG, sWAVE = 28, 29, 30, 31, 32
    sT0, sT1, sT2, sT3 = 33, 34, 35, 36
    sSPIN = 37
    sC0 = 38
    sEX = 40
    sXCC, sMODE = 42, 43
    sSRK = 44
    sSRV = 48
    sWb = 52
    sWDb = 54
    sSTR = 56
    sKS = 57
    sTILE = 58
    sROLE = 62
    vL, vN, vGq = 1, 2, 3
    vT0, vT1, vT2, vT3, vT4, vT5, vT6, vT7 = 4, 5, 6, 7, 8, 9, 10, 11
    vM0, vM1 = 12, 13
    vMK = 14
    vEP = 18
    vXR = 18
    vOA = 20
    vD3 = 28
    vQ = 32
    vS = 48
    vK = 64
    vV = 128
    vWO = 192
    vP = 216
    vU = 232
    vAX = 240
    NV = 256
    vAq, vAg, vAx, vAw0, vAw1, vAw2 = vAX, vAX+4, vAX+5, vAX+6, vAX+7, vAX+8
    vAo, vAr0, vAr1, vAog, vAst, vApo, vApg = vAX+9, vAX+10, vAX+11, vAX+12, vAX+13, vAX+14, vAX+15

    def xrow(r, t, op):
        for sw in ("v_permlane16_swap_b32", "v_permlane32_swap_b32"):
            A(f"v_mov_b32 {v(t)}, {v(r)}")
            A.nop(2)
            A(f"{sw} {v(r)}, {v(t)}")
            A(f"{op} {v(r)}, {v(r)}, {v(t)}")
    def rnd_pair(r, t):
        A(f"v_cvt_pk_bf16_f32 {v(t)}, {v(r)}, {v(r+1)}")
        A(f"v_lshlrev_b32 {v(r)}, 16, {v(t)}")
        A(f"v_and_b32 {v(r+1)}, 0xffff0000, {v(t)}")
    def check(regs):
        tmp = [vT6, vT7, vU+6]
        first = True
        i = 0
        regs = list(regs)
        A(f"v_xor_b32 {v(vT6)}, {s(sTAG)}, {v(regs[0])}")
        i = 1
        while i < len(regs):
            if i + 1 < len(regs):
                A(f"v_xor_b32 {v(vT7)}, {s(sTAG)}, {v(regs[i])}")
                A(f"v_xor_b32 {v(vU+6)}, {s(sTAG)}, {v(regs[i+1])}")
                A(f"v_or3_b32 {v(vT6)}, {v(vT6)}, {v(vT7)}, {v(vU+6)}")
                i += 2
            else:
                A(f"v_xor_b32 {v(vT7)}, {s(sTAG)}, {v(regs[i])}")
                A(f"v_or_b32 {v(vT6)}, {v(vT6)}, {v(vT7)}")
                i += 1
        A(f"v_cmp_ne_u32 vcc, 0, {v(vT6)}")
    def poll_simple(issue, tagregs, name, waitn):
        Lr = A.label(name + "_retry"); Lk = A.label(name + "_ok")
        if TS and name + "_n" not in SKIP: A(f"s_mov_b32 {s(64+2*slot(name + '_n'))}, 0")
        A(f"s_waitcnt vmcnt({waitn})")
        check(tagregs)
        A(f"s_cbranch_vccz {Lk}")
        A(f"s_mov_b32 {s(sSPIN)}, {SPIN}")
        A(f"{Lr}:")
        A("s_mov_b64 exec, vcc")
        issue()
        A("s_waitcnt vmcnt(0)")
        check(tagregs)
        A(f"s_cbranch_vccz {Lk}_x")
        A(f"s_sub_u32 {s(sSPIN)}, {s(sSPIN)}, 1")
        A(f"s_cmp_lg_u32 {s(sSPIN)}, 0")
        A(f"s_cbranch_scc1 {Lr}")
        A(f"{Lk}_x:")
        A("s_mov_b64 exec, -1")
        if TS and name + "_n" not in SKIP: A(f"s_sub_u32 {s(64+2*slot(name + '_n'))}, {SPIN+1}, {s(sSPIN)}")
        A(f"{Lk}:")
    def poll_pipe(issue, nld, tagregs, name, depth, primed, masked):
        Lr = A.label(name + "_loop"); Lk = A.label(name + "_ok"); Lf = A.label(name + "_first")
        A(f"s_mov_b32 {s(sSPIN)}, {SPIN}")
        if primed >= depth:
            A(f"s_branch {Lf}")
        else:
            for _ in range(depth - 1 - primed): issue()
        A(f"{Lr}:")
        issue()
        A(f"{Lf}:")
        A(f"s_waitcnt vmcnt({nld*(depth-1)})")
        check(tagregs)
        A(f"s_cbranch_vccz {Lk}")
        if masked: A("s_mov_b64 exec, vcc")
        A(f"s_sub_u32 {s(sSPIN)}, {s(sSPIN)}, 1")
        A(f"s_cmp_lg_u32 {s(sSPIN)}, 0")
        A(f"s_cbranch_scc1 {Lr}")
        A(f"{Lk}:")
        if masked: A("s_mov_b64 exec, -1")
        if TS: A(f"s_sub_u32 {s(64+2*slot(name + '_n'))}, {SPIN}, {s(sSPIN)}")
    def store_mode(txt):
        if not FASTOK:
            A(txt + " sc1"); return
        La = A.label("sts"); Lb = A.label("ste")
        A(f"s_cmp_eq_u32 {s(sMODE)}, 0")
        A(f"s_cbranch_scc1 {La}")
        A(txt)
        A(f"s_branch {Lb}")
        A(f"{La}:")
        A(txt + " sc1")
        A(f"{Lb}:")

    A("s_cmp_ge_u32 s2, 256")
    A("s_cbranch_scc1 Lexit")
    A(f"s_load_dwordx16 {s(4,16)}, s[0:1], 0")
    A(f"s_load_dwordx8 {s(20,8)}, s[0:1], 64")
    ts("start")
    if CPF:
        A(f"""
          s_getpc_b64 {s(sC0,2)}
        Lpc:
          v_lshrrev_b32 {v(vT0)}, 6, v0
          s_bfe_u32 {s(sT0)}, s2, 0x10003
          s_mul_i32 {s(sT0)}, {s(sT0)}, 6
          v_add_u32 {v(vT0)}, {s(sT0)}, {v(vT0)}
          v_min_u32 {v(vT0)}, CODE_CHUNKS-1, {v(vT0)}
          v_lshlrev_b32 {v(vT0)}, 10, {v(vT0)}
          v_and_b32 {v(vT1)}, 63, v0
          v_lshl_add_u32 {v(vT0)}, {v(vT1)}, 4, {v(vT0)}
          s_sub_u32 {s(sC0)}, {s(sC0)}, Lpc-{NAME}
          s_subb_u32 {s(sC0+1)}, {s(sC0+1)}, 0
          global_load_dwordx4 {v(vWO+20,4)}, {v(vT0)}, {s(sC0,2)}
        """)
    A(f"""
      v_and_b32 {v(vL)}, 63, v0
      v_lshrrev_b32 {v(vT0)}, 6, v0
      v_and_b32 {v(vN)}, 15, v0
      v_bfe_u32 {v(vGq)}, v0, 4, 2
      v_readfirstlane_b32 {s(sWAVE)}, {v(vT0)}
      s_and_b32 {s(sKVH)}, s2, 7
      s_lshr_b32 {s(sA)}, s2, 3
      s_lshr_b32 {s(sB)}, {s(sA)}, 4
      s_getreg_b32 {s(sXCC)}, hwreg(HW_REG_XCC_ID)
      s_and_b32 {s(sXCC)}, {s(sXCC)}, 15
      v_mov_b32 {v(vT7)}, 0
      s_cmp_ge_u32 {s(sWAVE)}, 4
      s_cbranch_scc1 Laux
    """)
    A(f"""
      v_and_b32 {v(vT3)}, 3, {v(vN)}
      v_lshlrev_b32 {v(vT3)}, 10, {v(vT3)}
      v_lshrrev_b32 {v(vT4)}, 2, {v(vN)}
      v_lshl_add_u32 {v(vT3)}, {v(vT4)}, 8, {v(vT3)}
      v_lshl_add_u32 {v(vT3)}, {v(vGq)}, 4, {v(vT3)}
      v_lshlrev_b32 {v(vT2)}, 8, {v(vGq)}
      v_lshl_add_u32 {v(vT2)}, {v(vN)}, 4, {v(vT2)}
      v_lshlrev_b32 {v(vAw0)}, 10, {v(vGq)}
      v_lshl_add_u32 {v(vAw0)}, {v(vN)}, 4, {v(vAw0)}
      v_add_u32 {v(vAw1)}, 0x1000, {v(vAw0)}
    """)
    for tau in range(4):
        A(f"s_add_u32 {s(sT0)}, {s(sWAVE)}, {4*tau}")
        A(f"s_add_u32 {s(sT0)}, {s(sT0)}, {s(sA)}")
        A(f"s_and_b32 {s(sT0)}, {s(sT0)}, 15")
        A(f"s_lshl_b32 {s(sTILE+tau)}, {s(sT0)}, 12")
    A(f"""
      s_mov_b32 {s(sT0)}, 0xffff
      s_mov_b32 {s(sT1)}, 0xffff0000
      v_and_b32 {v(vT4)}, 1, {v(vL)}
      v_cmp_eq_u32 vcc, 1, {v(vT4)}
      v_mov_b32 {v(vT5)}, {s(sT0)}
      v_mov_b32 {v(vT6)}, {s(sT1)}
      v_cndmask_b32 {v(vT5)}, {v(vT5)}, {v(vT6)}, vcc
      v_and_b32 {v(vT4)}, 2, {v(vL)}
      v_cmp_eq_u32 vcc, 0, {v(vT4)}
      s_nop 1
      v_cndmask_b32 {v(vM0)}, 0, {v(vT5)}, vcc
      v_cmp_ne_u32 vcc, 0, {v(vT4)}
      s_nop 1
      v_cndmask_b32 {v(vM1)}, 0, {v(vT5)}, vcc
      v_bfe_u32 {v(vT4)}, {v(vL)}, 1, 2
    """)
    for i in range(4):
        A(f"v_cmp_eq_u32 vcc, {i}, {v(vT4)}")
        A("s_nop 1")
        A(f"v_cndmask_b32 {v(vMK+i)}, 0, {v(vT5)}, vcc")
    A(f"""
      s_lshl_b32 {s(sT0)}, {s(sKVH)}, 1
      s_add_u32 {s(sT0)}, {s(sT0)}, {s(sB)}
      s_lshl_b32 {s(sT0)}, {s(sT0)}, 14
      s_lshl_b32 {s(sT1)}, {s(sWAVE)}, 10
      s_add_u32 {s(sT0)}, {s(sT0)}, {s(sT1)}
      s_add_u32 {s(sT0)}, {s(sT0)}, {WS_QG}
      v_lshlrev_b32 {v(vT4)}, 4, {v(vL)}
      v_add_u32 {v(vAq)}, {s(sT0)}, {v(vT4)}
      s_cmp_lt_u32 s2, 224
      s_cselect_b32 {s(sT0)}, s2, 0
      s_lshl_b32 {s(sT0)}, {s(sT0)}, 10
      s_add_u32 {s(sT0)}, {s(sT0)}, {WS_GG}
      v_add_u32 {v(vAg)}, {s(sT0)}, {v(vT4)}
      v_add_u32 {v(vAq+1)}, 0x1000, {v(vAq)}
      v_add_u32 {v(vAq+2)}, 0x2000, {v(vAq)}
      v_add_u32 {v(vAq+3)}, 0x3000, {v(vAq)}
      s_lshl_b32 {s(sT0)}, {s(sKVH)}, 8
      s_add_u32 {s(sT0)}, {s(sT0)}, {WS_XG}
      v_and_b32 {v(vT4)}, 31, {v(vL)}
      v_lshlrev_b32 {v(vT4)}, 3, {v(vT4)}
      v_add_u32 {v(vAx)}, {s(sT0)}, {v(vT4)}
    """)
    A(f"""
      s_lshl_b32 {s(sT0)}, {s(sWAVE)}, 11
      s_add_u32 {s(sT0)}, {s(sT0)}, {L_OP}
      v_lshlrev_b32 {v(vAo)}, 9, {v(vGq)}
      v_lshl_add_u32 {v(vAo)}, {v(vN)}, 5, {v(vAo)}
      v_add_u32 {v(vAo)}, {s(sT0)}, {v(vAo)}
      v_lshrrev_b32 {v(vT4)}, 3, {v(vL)}
      v_lshlrev_b32 {v(vT4)}, 4, {v(vT4)}
      v_and_b32 {v(vT5)}, 1, {v(vL)}
      v_lshl_add_u32 {v(vT4)}, {v(vT5)}, 3, {v(vT4)}
      v_bfe_u32 {v(vT5)}, {v(vL)}, 1, 2
      v_add_u32 {v(vT4)}, {v(vT4)}, {v(vT5)}
      v_lshlrev_b32 {v(vT4)}, 2, {v(vT4)}
      s_lshl_b32 {s(sT0)}, {s(sWAVE)}, 9
      s_add_u32 {s(sT0)}, {s(sT0)}, {L_OP}
      v_add_u32 {v(vAr0)}, {s(sT0)}, {v(vT4)}
      v_add_u32 {v(vAr1)}, 16, {v(vAr0)}
      s_lshl_b32 {s(sT0)}, {s(sKVH)}, 16
      s_lshl_b32 {s(sT1)}, {s(sWAVE)}, 14
      s_add_u32 {s(sT0)}, {s(sT0)}, {s(sT1)}
      s_lshl_b32 {s(sT1)}, {s(sA)}, 6
      s_add_u32 {s(sT0)}, {s(sT0)}, {s(sT1)}
      s_add_u32 {s(sT0)}, {s(sT0)}, {WS_OG}
      v_lshrrev_b32 {v(vT4)}, 3, {v(vL)}
      v_lshlrev_b32 {v(vT4)}, 11, {v(vT4)}
      v_and_b32 {v(vT5)}, 7, {v(vL)}
      v_lshl_add_u32 {v(vT4)}, {v(vT5)}, 3, {v(vT4)}
      v_add_u32 {v(vAog)}, {s(sT0)}, {v(vT4)}
      s_lshl_b32 {s(sT0)}, {s(sKVH)}, 2
      s_lshr_b32 {s(sT1)}, {s(sA)}, 3
      s_add_u32 {s(sT0)}, {s(sT0)}, {s(sT1)}
      s_lshl_b32 {s(sT0)}, {s(sT0)}, 9
      s_add_u32 {s(sT0)}, {s(sT0)}, {WS_SG}
      v_bfe_u32 {v(vT4)}, {v(vL)}, 3, 1
      v_lshlrev_b32 {v(vAst)}, 8, {v(vT4)}
      v_lshl_add_u32 {v(vAst)}, {v(vT5)}, 4, {v(vAst)}
      v_add_u32 {v(vAst)}, {s(sT0)}, {v(vAst)}
      s_lshl_b32 {s(sT0)}, {s(sKVH)}, 5
      s_add_u32 {s(sT0)}, {s(sT0)}, {s(sA)}
      s_lshl_b32 {s(sT0)}, {s(sT0)}, 11
      s_add_u32 {s(sT0)}, {s(sT0)}, {WS_OG}
      v_lshlrev_b32 {v(vApo)}, 10, {v(vT4)}
      v_lshl_add_u32 {v(vApo)}, {v(vT5)}, 6, {v(vApo)}
      v_lshl_add_u32 {v(vApo)}, {v(vGq)}, 4, {v(vApo)}
      v_add_u32 {v(vApo)}, {s(sT0)}, {v(vApo)}
      s_lshl_b32 {s(sT0)}, {s(sKVH)}, 17
      s_lshl_b32 {s(sT1)}, {s(sWAVE)}, 14
      s_add_u32 {s(sT0)}, {s(sT0)}, {s(sT1)}
      s_lshl_b32 {s(sT1)}, {s(sA)}, 7
      s_add_u32 {s(sT0)}, {s(sT0)}, {s(sT1)}
      s_add_u32 {s(sT0)}, {s(sT0)}, {WS_RG}
      v_lshrrev_b32 {v(vT4)}, 1, {v(vGq)}
      v_lshlrev_b32 {v(vT4)}, 16, {v(vT4)}
      v_lshrrev_b32 {v(vT5)}, 2, {v(vN)}
      v_lshl_add_u32 {v(vT4)}, {v(vT5)}, 12, {v(vT4)}
      v_and_b32 {v(vT5)}, 3, {v(vN)}
      v_lshl_add_u32 {v(vT4)}, {v(vT5)}, 5, {v(vT4)}
      v_and_b32 {v(vT5)}, 1, {v(vGq)}
      v_lshl_add_u32 {v(vT4)}, {v(vT5)}, 4, {v(vT4)}
      v_add_u32 {v(vApg)}, {s(sT0)}, {v(vT4)}
      v_mov_b32 {v(vD3)}, 0
      v_mov_b32 {v(vD3+1)}, 0
      v_mov_b32 {v(vD3+2)}, 0
      v_mov_b32 {v(vD3+3)}, 0
    """)
    A(f"""
      s_lshl_b32 {s(sT0)}, {s(sB)}, 3
      s_add_u32 {s(sT0)}, {s(sT0)}, {s(sKVH)}
      s_lshl_b32 {s(sT0)}, {s(sT0)}, 23
      s_and_b32 {s(sT1)}, {s(sA)}, 15
      s_lshl_b32 {s(sT1)}, {s(sT1)}, 16
      s_add_u32 {s(sT0)}, {s(sT0)}, {s(sT1)}
      s_add_u32 {s(sT0)}, {s(sT0)}, 0x700000
      s_waitcnt lgkmcnt(0)
      s_add_u32 {s(sSRK)}, {s(sK)}, {s(sT0)}
      s_addc_u32 {s(sSRK+1)}, {s(sK+1)}, 0
      s_and_b32 {s(sSRK+1)}, {s(sSRK+1)}, 0xffff
      s_mov_b32 {s(sSRK+2)}, 0x10000
      s_mov_b32 {s(sSRK+3)}, 0x20000
      s_add_u32 {s(sSRV)}, {s(sV)}, {s(sT0)}
      s_addc_u32 {s(sSRV+1)}, {s(sV+1)}, 0
      s_and_b32 {s(sSRV+1)}, {s(sSRV+1)}, 0xffff
      s_mov_b32 {s(sSRV+2)}, 0x10000
      s_mov_b32 {s(sSRV+3)}, 0x20000
      s_lshl_b32 {s(sT0)}, {s(sKVH)}, 19
      s_lshl_b32 {s(sT1)}, {s(sA)}, 14
      s_add_u32 {s(sT0)}, {s(sT0)}, {s(sT1)}
      s_lshl_b32 {s(sT1)}, {s(sWAVE)}, 8
      s_add_u32 {s(sT0)}, {s(sT0)}, {s(sT1)}
      s_add_u32 {s(sWb)}, {s(sWO)}, {s(sT0)}
      s_addc_u32 {s(sWb+1)}, {s(sWO+1)}, 0
      s_cmp_lt_u32 s2, 224
      s_cselect_b32 {s(sT0)}, s2, 0
      s_lshl_b32 {s(sT0)}, {s(sT0)}, 13
      s_add_u32 {s(sT0)}, {s(sT0)}, {s(sT1)}
      s_add_u32 {s(sWDb)}, {s(sWD)}, {s(sT0)}
      s_addc_u32 {s(sWDb+1)}, {s(sWD+1)}, 0
      s_barrier
    """)
    nload = [0]
    def ld(txt):
        if WIN and WIN <= nload[0] < NTH:
            A(f"s_waitcnt vmcnt({WIN-1})")
        A(txt); nload[0] += 1
    vQP = vQ
    vGP = vOA
    vXP = vOA + 4
    def issue_q():
        for ks in range(4):
            A(f"global_load_dwordx4 {v(vQP+4*ks,4)}, {v(vAq+ks)}, {s(sWS,2)} sc1")
    def issue_x():
        A(f"global_load_dwordx2 {v(vXP,2)}, {v(vAx)}, {s(sWS,2)} sc1")
    def issue_qx():
        issue_q(); issue_x()
    def issue_g():
        A(f"global_load_dwordx4 {v(vGP,4)}, {v(vAg)}, {s(sWS,2)} sc1")
    ld(f"global_load_dword {v(vEP)}, {v(vT7)}, {s(sWS,2)} sc1")
    for tau in range(4):
        for jj in range(4):
            ld(f"buffer_load_dwordx4 {v(vK+16*tau+4*jj,4)}, {v(vT3)}, {s(sSRK,4)}, {s(sTILE+tau)} offen offset:{64*jj}{NT}")
    ts("issK")
    A("s_barrier")
    nv = 0
    for tau in range(4):
        for r in range(4):
            if nv == QPOS:
                if QPOS > 0: A("s_barrier")
                issue_qx(); issue_g(); ts("issQ")
                A("s_barrier")
            ld(f"buffer_load_dwordx4 {v(vV+16*tau+4*r,4)}, {v(vT2)}, {s(sSRV,4)}, {s(sTILE+tau)} offen offset:{1024*r}{NT}")
            nv += 1
    ts("issV")
    AFTER_Q = 16 - QPOS
    A(f"""
      s_waitcnt vmcnt({AFTER_Q + 6})
      v_readfirstlane_b32 {s(sTAG)}, {v(vEP)}
      s_add_u32 {s(sTAG)}, {s(sTAG)}, 0x{TAG_DELTA:x}
    """)
    poll_simple(issue_qx, [vQP+4*i+k for i in range(4) for k in (1, 3)] + [vXP+1], "q", AFTER_Q + 1)
    ts("q_done")
    A(f"""
      v_add_f32 {v(vQP)}, {v(vQP)}, {v(vQP+4)}
      v_add_f32 {v(vQP+2)}, {v(vQP+2)}, {v(vQP+6)}
      v_add_f32 {v(vQP+8)}, {v(vQP+8)}, {v(vQP+12)}
      v_add_f32 {v(vQP+10)}, {v(vQP+10)}, {v(vQP+14)}
      v_add_f32 {v(vQP)}, {v(vQP)}, {v(vQP+8)}
      v_add_f32 {v(vQP+2)}, {v(vQP+2)}, {v(vQP+10)}
      v_cvt_pk_bf16_f32 {v(vQP)}, {v(vQP)}, {v(vQP+2)}
      v_lshlrev_b32 {v(vT4)}, 2, v0
      ds_write_b32 {v(vT4)}, {v(vQP)} offset:{L_QB}
      v_lshrrev_b32 {v(vT4)}, 2, {v(vN)}
      v_lshlrev_b32 {v(vT4)}, 8, {v(vT4)}
      v_lshl_add_u32 {v(vT4)}, {v(vGq)}, 4, {v(vT4)}
      v_cmp_ne_u32 vcc, {s(sXCC)}, {v(vXP)}
      s_cmp_eq_u64 vcc, 0
      s_cselect_b32 {s(sMODE)}, 1, 0
      s_waitcnt lgkmcnt(0)
      s_barrier
    """)
    ts("barX")
    for jj in range(4):
        A(f"ds_read_b128 {v(vQ+4*jj,4)}, {v(vT4)} offset:{L_QB + 64*jj}")
    A("s_waitcnt lgkmcnt(0)")
    for jj in range(4):
        for t in range(4):
            c = "0" if jj == 0 else v(vS+4*t,4)
            A(f"v_mfma_f32_16x16x32_bf16 {v(vS+4*t,4)}, {v(vK+16*t+4*jj,4)}, {v(vQ+4*jj,4)}, {c}")
    A(f"s_mov_b32 {s(sC0)}, 0x3db504f3")
    A(f"s_mov_b32 {s(sC0+1)}, 0x3db504f3")
    A.nop(6)
    for i in range(8):
        r = vS + 2*i
        t = vU + (i & 3)
        A(f"v_cvt_pk_bf16_f32 {v(t)}, {v(r)}, {v(r+1)}")
        A(f"v_lshlrev_b32 {v(r)}, 16, {v(t)}")
        A(f"v_and_b32 {v(r+1)}, 0xffff0000, {v(t)}")
        A(f"v_pk_mul_f32 {v(r,2)}, {v(r,2)}, {s(sC0,2)}")
        A(f"v_cvt_pk_bf16_f32 {v(t)}, {v(r)}, {v(r+1)}")
        A(f"v_lshlrev_b32 {v(r)}, 16, {v(t)}")
        A(f"v_and_b32 {v(r+1)}, 0xffff0000, {v(t)}")
    A(f"v_max3_f32 {v(vT0)}, {v(vS)}, {v(vS+1)}, {v(vS+2)}")
    for i in range(3, 15, 2):
        A(f"v_max3_f32 {v(vT0)}, {v(vT0)}, {v(vS+i)}, {v(vS+i+1)}")
    A(f"v_max_f32 {v(vT0)}, {v(vT0)}, {v(vS+15)}")
    xrow(vT0, vT1, "v_max_f32")
    A(f"""
      v_lshrrev_b32 {v(vT2)}, 2, {v(vN)}
      v_lshlrev_b32 {v(vT2)}, 4, {v(vT2)}
      s_lshl_b32 {s(sT0)}, {s(sWAVE)}, 2
      v_add_u32 {v(vT3)}, {s(sT0)}, {v(vT2)}
      ds_write_b32 {v(vT3)}, {v(vT0)} offset:{L_MX}
      s_waitcnt lgkmcnt(0)
      s_barrier
      ds_read_b128 {v(vU,4)}, {v(vT2)} offset:{L_MX}
      s_mov_b32 {s(sC0)}, 0x3fb8aa3b
      s_waitcnt lgkmcnt(0)
      v_max3_f32 {v(vT0)}, {v(vU)}, {v(vU+1)}, {v(vU+2)}
      v_max_f32 {v(vT0)}, {v(vT0)}, {v(vU+3)}
      v_mul_f32 {v(vT0)}, {s(sC0)}, {v(vT0)}
    """)
    for i in range(16):
        A(f"v_fma_f32 {v(vS+i)}, {v(vS+i)}, {s(sC0)}, -{v(vT0)}")
    for i in range(16):
        A(f"v_exp_f32 {v(vS+i)}, {v(vS+i)}")
    A.nop(1)
    for i in range(8):
        A(f"v_add_f32 {v(vU + (i & 7))}, {v(vS+2*i)}, {v(vS+2*i+1)}")
    for i in range(4):
        A(f"v_add_f32 {v(vU+i)}, {v(vU+i)}, {v(vU+4+i)}")
    A(f"v_add_f32 {v(vU)}, {v(vU)}, {v(vU+2)}")
    A(f"v_add_f32 {v(vU+1)}, {v(vU+1)}, {v(vU+3)}")
    A(f"v_add_f32 {v(vT1)}, {v(vU)}, {v(vU+1)}")
    xrow(vT1, vT4, "v_add_f32")
    A(f"ds_write_b32 {v(vT3)}, {v(vT1)} offset:{L_LS}")
    for i in range(16):
        A(f"v_cvt_pk_bf16_f32 {v(vS+i)}, {v(vS+i)}, {v(vS+i)}")
    for i in range(16):
        A(f"v_and_b32 {v(vK+2*i)}, {v(vS+i)}, {v(vM0)}")
        A(f"v_and_b32 {v(vK+2*i+1)}, {v(vS+i)}, {v(vM1)}")
    A(f"""
      s_waitcnt lgkmcnt(0)
      s_barrier
      s_lshl_b32 {s(sT0)}, {s(sWAVE)}, 4
      v_mov_b32 {v(vT6)}, {s(sT0)}
      ds_read_b128 {v(vP+4,4)}, {v(vT6)} offset:{L_LS}
      s_lshl_b32 {s(sT0)}, {s(sKVH)}, 2
      s_add_u32 {s(sT0)}, {s(sT0)}, {s(sWAVE)}
      s_lshl_b32 {s(sT0)}, {s(sT0)}, 9
      s_lshl_b32 {s(sT1)}, {s(sA)}, 4
      s_add_u32 {s(sT0)}, {s(sT0)}, {s(sT1)}
      s_add_u32 {s(sT0)}, {s(sT0)}, {WS_SG}
      v_mov_b32 {v(vT5)}, {s(sT0)}
      ds_read_b128 {v(vP+8,4)}, {v(vT6)} offset:{L_MX}
      s_waitcnt lgkmcnt(0)
      v_add_f32 {v(vP+4)}, {v(vP+4)}, {v(vP+5)}
      v_add_f32 {v(vP+6)}, {v(vP+6)}, {v(vP+7)}
      v_add_f32 {v(vP+6)}, {v(vP+4)}, {v(vP+6)}
      v_max3_f32 {v(vP+4)}, {v(vP+8)}, {v(vP+9)}, {v(vP+10)}
      v_max_f32 {v(vP+4)}, {v(vP+4)}, {v(vP+11)}
      v_mul_f32 {v(vP+4)}, {s(sC0)}, {v(vP+4)}
      v_mov_b32 {v(vP+5)}, {s(sTAG)}
      v_mov_b32 {v(vP+7)}, {s(sTAG)}
      s_mov_b64 exec, 1
    """)
    store_mode(f"global_store_dwordx4 {v(vT5)}, {v(vP+4,4)}, {s(sWS,2)}")
    A("s_mov_b64 exec, -1")
    ts("p_done")
    A(f"global_load_dwordx4 {v(vWO+16,4)}, {v(vAw0)}, {s(sWDb,2)}{NT}")
    A(f"global_load_dwordx4 {v(vWO+20,4)}, {v(vAw1)}, {s(sWDb,2)}{NT}")
    A(f"global_load_dwordx4 {v(vWO,4)}, {v(vAw0)}, {s(sWb,2)}{NT}")
    A(f"global_load_dwordx4 {v(vWO+4,4)}, {v(vAw1)}, {s(sWb,2)}{NT}")
    A(f"v_add_u32 {v(vAw2)}, 0x2000, {v(vAw0)}")
    A(f"global_load_dwordx4 {v(vWO+8,4)}, {v(vAw2)}, {s(sWb,2)}{NT}")
    A(f"v_add_u32 {v(vAw2)}, 0x3000, {v(vAw0)}")
    A(f"global_load_dwordx4 {v(vWO+12,4)}, {v(vAw2)}, {s(sWb,2)}{NT}")
    LnoG = A.label("noG")
    A(f"s_cmp_ge_u32 s2, 224")
    A(f"s_cbranch_scc1 {LnoG}")
    SKIP.add("g_n")
    poll_simple(issue_g, [vGP+1, vGP+3], "g", AFTER_Q + 7)
    for r in (vGP, vGP+2):
        A.nop(2)
        A(f"v_add_f32_dpp {v(r)}, {v(r)}, {v(r)} row_ror:8 row_mask:0xf bank_mask:0xf")
        A(f"v_mov_b32 {v(vT0)}, {v(r)}")
        A.nop(2)
        A(f"v_permlane16_swap_b32 {v(r)}, {v(vT0)}")
        A(f"v_add_f32 {v(r)}, {v(r)}, {v(vT0)}")
    for r, tt in ((vGP, vGP+1), (vGP+2, vGP+3)):
        A(f"v_mov_b32 {v(tt)}, {v(r)}")
        A.nop(2)
        A(f"v_permlane32_swap_b32 {v(r)}, {v(tt)}")
    A(f"""
      v_cvt_pk_bf16_f32 {v(vT6)}, {v(vGP)}, {v(vGP+2)}
      v_cvt_pk_bf16_f32 {v(vT7)}, {v(vGP+1)}, {v(vGP+3)}
      v_lshlrev_b32 {v(vS+8)}, 16, {v(vT6)}
      v_and_b32 {v(vS+9)}, 0xffff0000, {v(vT6)}
      v_lshlrev_b32 {v(vS+10)}, 16, {v(vT7)}
      v_and_b32 {v(vS+11)}, 0xffff0000, {v(vT7)}
      s_mov_b32 {s(sC0)}, 0xbfb8aa3b
      v_mul_f32 {v(vS+8)}, {s(sC0)}, {v(vS+8)}
      v_mul_f32 {v(vS+9)}, {s(sC0)}, {v(vS+9)}
      v_exp_f32 {v(vS+8)}, {v(vS+8)}
      v_exp_f32 {v(vS+9)}, {v(vS+9)}
      s_nop 0
      v_add_f32 {v(vS+8)}, 1.0, {v(vS+8)}
      v_add_f32 {v(vS+9)}, 1.0, {v(vS+9)}
      v_rcp_f32 {v(vS+8)}, {v(vS+8)}
      v_rcp_f32 {v(vS+9)}, {v(vS+9)}
      s_nop 0
      v_cvt_pk_bf16_f32 {v(vT6)}, {v(vS+8)}, {v(vS+9)}
      v_lshlrev_b32 {v(vS+8)}, 16, {v(vT6)}
      v_and_b32 {v(vS+9)}, 0xffff0000, {v(vT6)}
      v_pk_mul_f32 {v(vS+8,2)}, {v(vS+8,2)}, {v(vS+10,2)}
      v_cvt_pk_bf16_f32 {v(vS+12)}, {v(vS+8)}, {v(vS+8)}
      v_cvt_pk_bf16_f32 {v(vS+13)}, {v(vS+9)}, {v(vS+9)}
      s_lshl_b32 {s(sT0)}, {s(sWAVE)}, 7
      v_bfe_u32 {v(vT4)}, {v(vL)}, 2, 1
      v_lshlrev_b32 {v(vT4)}, 6, {v(vT4)}
      v_and_b32 {v(vT5)}, 1, {v(vL)}
      v_lshl_add_u32 {v(vT4)}, {v(vT5)}, 5, {v(vT4)}
      v_bfe_u32 {v(vT5)}, {v(vL)}, 1, 1
      v_lshl_add_u32 {v(vT4)}, {v(vT5)}, 2, {v(vT4)}
      v_add_u32 {v(vT4)}, {s(sT0)}, {v(vT4)}
      ds_write_b32 {v(vT4)}, {v(vS+12)} offset:{L_HV}
      ds_write_b32 {v(vT4)}, {v(vS+13)} offset:{L_HV+16}
      v_bfe_u32 {v(vT5)}, {v(vL)}, 3, 1
      v_lshlrev_b32 {v(vT5)}, 6, {v(vT5)}
      v_lshl_add_u32 {v(vT5)}, {v(vGq)}, 4, {v(vT5)}
      v_add_u32 {v(vT5)}, {s(sT0)}, {v(vT5)}
      ds_read_b64 {v(vP,2)}, {v(vT5)} offset:{L_HV}
      s_waitcnt lgkmcnt(0)
    """)
    for i in range(2):
        for k in range(4):
            A(f"v_and_b32 {v(vP+4+4*i+k)}, {v(vP+i)}, {v(vMK+k)}")
    A(f"{LnoG}:")
    A(f"v_mov_b32 {v(vT1)}, {s(sTAG)}")
    ts("h_done")
    for i in range(16):
        A(f"s_waitcnt vmcnt({(15 - i) + 7})")
        c0 = "0" if i == 0 else v(vOA,4)
        c1 = "0" if i == 0 else v(vOA+4,4)
        A(f"v_mfma_f32_16x16x16_bf16 {v(vOA,4)}, {v(vK+2*i,2)}, {v(vV+4*i,2)}, {c0}")
        A(f"v_mfma_f32_16x16x16_bf16 {v(vOA+4,4)}, {v(vK+2*i,2)}, {v(vV+4*i+2,2)}, {c1}")
    ts("pv_done")
    A.nop(8)
    A(f"""
      ds_write_b128 {v(vAo)}, {v(vOA,4)}
      ds_write_b128 {v(vAo)}, {v(vOA+4,4)} offset:16
      s_waitcnt lgkmcnt(0)
      s_barrier
      ds_read2st64_b32 {v(vU,2)}, {v(vAr0)} offset0:0 offset1:8
      ds_read2st64_b32 {v(vU+2,2)}, {v(vAr0)} offset0:16 offset1:24
      ds_read2st64_b32 {v(vU+4,2)}, {v(vAr1)} offset0:0 offset1:8
      ds_read2st64_b32 {v(vU+6,2)}, {v(vAr1)} offset0:16 offset1:24
      s_waitcnt lgkmcnt(2)
      v_pk_add_f32 {v(vU,2)}, {v(vU,2)}, {v(vU+2,2)}
      s_waitcnt lgkmcnt(0)
      v_pk_add_f32 {v(vU+4,2)}, {v(vU+4,2)}, {v(vU+6,2)}
      v_add_f32 {v(vU)}, {v(vU)}, {v(vU+1)}
      v_add_f32 {v(vU+4)}, {v(vU+4)}, {v(vU+5)}
      v_cvt_pk_bf16_f32 {v(vT0)}, {v(vU)}, {v(vU+4)}
    """)
    store_mode(f"global_store_dwordx2 {v(vAog)}, {v(vT0,2)}, {s(sWS,2)}")
    ts("o_published")
    vST = vV
    vOO = vV + 8
    def issue_st():
        A(f"global_load_dwordx4 {v(vST,4)}, {v(vAst)}, {s(sWS,2)} sc1")
        A(f"global_load_dwordx4 {v(vST+4,4)}, {v(vAst)}, {s(sWS,2)} offset:128 sc1")
    def issue_o():
        A(f"global_load_dwordx4 {v(vOO,4)}, {v(vApo)}, {s(sWS,2)} sc1")
        A(f"global_load_dwordx4 {v(vOO+4,4)}, {v(vApo)}, {s(sWS,2)} offset:512 sc1")
    issue_st()
    issue_o()
    poll_simple(issue_st, [vST+1, vST+3, vST+5, vST+7], "st", 2)
    ts("st_done")
    LskipB = A.label("skipB")
    A(f"s_cmp_ge_u32 s2, 224")
    A(f"s_cbranch_scc1 {LskipB}")
    for i in range(2):
        A(f"v_mfma_f32_16x16x32_bf16 {v(vD3,4)}, {v(vP+4+4*i,4)}, {v(vWO+16+4*i,4)}, {v(vD3,4)}")
    A(f"{LskipB}:")
    def red8(regs, op):
        n = len(regs)
        for ctrl in ("quad_perm:[1,0,3,2]", "quad_perm:[2,3,0,1]", "row_half_mirror"):
            if n < 3: A.nop(3 - n)
            for r in regs:
                A(f"{op}_dpp {v(r)}, {v(r)}, {v(r)} {ctrl} row_mask:0xf bank_mask:0xf")
    A(f"v_max_f32 {v(vT2)}, {v(vST)}, {v(vST+4)}")
    red8([vT2], "v_max_f32")
    A(f"""
      v_sub_f32 {v(vT3)}, {v(vST)}, {v(vT2)}
      v_sub_f32 {v(vT4)}, {v(vST+4)}, {v(vT2)}
      v_exp_f32 {v(vT3)}, {v(vT3)}
      v_exp_f32 {v(vT4)}, {v(vT4)}
      s_nop 0
      v_mul_f32 {v(vT2)}, {v(vT3)}, {v(vST+2)}
      v_fma_f32 {v(vT2)}, {v(vT4)}, {v(vST+6)}, {v(vT2)}
    """)
    red8([vT2], "v_add_f32")
    A(f"""
      v_rcp_f32 {v(vT2)}, {v(vT2)}
      s_nop 0
      v_mul_f32 {v(vT3)}, {v(vT3)}, {v(vT2)}
      v_mul_f32 {v(vT4)}, {v(vT4)}, {v(vT2)}
    """)
    poll_pipe(issue_o, 2, [vOO+1, vOO+3, vOO+5, vOO+7], "h1", D1, 1, True)
    ts("h1_done")
    A(f"""
      v_lshlrev_b32 {v(vU)}, 16, {v(vOO)}
      v_and_b32 {v(vU+1)}, 0xffff0000, {v(vOO)}
      v_lshlrev_b32 {v(vU+2)}, 16, {v(vOO+2)}
      v_and_b32 {v(vU+3)}, 0xffff0000, {v(vOO+2)}
      v_lshlrev_b32 {v(vU+4)}, 16, {v(vOO+4)}
      v_and_b32 {v(vU+5)}, 0xffff0000, {v(vOO+4)}
      v_lshlrev_b32 {v(vU+6)}, 16, {v(vOO+6)}
      v_and_b32 {v(vU+7)}, 0xffff0000, {v(vOO+6)}
      v_pk_mul_f32 {v(vU,2)}, {v(vU,2)}, {v(vT3,2)} op_sel:[0,0] op_sel_hi:[1,0]
      v_pk_mul_f32 {v(vU+2,2)}, {v(vU+2,2)}, {v(vT3,2)} op_sel:[0,0] op_sel_hi:[1,0]
    """.replace(v(vT3,2), "XX")) if False else None
    A(f"""
      v_lshlrev_b32 {v(vU)}, 16, {v(vOO)}
      v_and_b32 {v(vU+1)}, 0xffff0000, {v(vOO)}
      v_lshlrev_b32 {v(vU+2)}, 16, {v(vOO+2)}
      v_and_b32 {v(vU+3)}, 0xffff0000, {v(vOO+2)}
      v_lshlrev_b32 {v(vU+4)}, 16, {v(vOO+4)}
      v_and_b32 {v(vU+5)}, 0xffff0000, {v(vOO+4)}
      v_lshlrev_b32 {v(vU+6)}, 16, {v(vOO+6)}
      v_and_b32 {v(vU+7)}, 0xffff0000, {v(vOO+6)}
    """)
    for i in range(4):
        A(f"v_mul_f32 {v(vU+i)}, {v(vU+i)}, {v(vT3)}")
    for i in range(4):
        A(f"v_fma_f32 {v(vU+i)}, {v(vU+4+i)}, {v(vT4)}, {v(vU+i)}")
    red8([vU, vU+1, vU+2, vU+3], "v_add_f32")
    for i in range(4):
        A(f"v_cvt_pk_bf16_f32 {v(vU+i)}, {v(vU+i)}, {v(vU+i)}")
    for i in range(4):
        for k in range(4):
            A(f"v_and_b32 {v(vQ+4*i+k)}, {v(vU+i)}, {v(vMK+k)}")
    A(f"v_mov_b32 {v(vU+5)}, {s(sTAG)}")
    A(f"v_mov_b32 {v(vU+7)}, {s(sTAG)}")
    for i in range(4):
        A(f"v_mfma_f32_16x16x32_bf16 {v(vD3,4)}, {v(vQ+4*i,4)}, {v(vWO+4*i,4)}, {v(vD3,4)}")
    A.nop(8)
    A(f"""
      v_cvt_pk_bf16_f32 {v(vU+4)}, {v(vD3)}, {v(vD3+1)}
      v_cvt_pk_bf16_f32 {v(vU+6)}, {v(vD3+2)}, {v(vD3+3)}
    """)
    store_mode(f"global_store_dwordx4 {v(vApg)}, {v(vU+4,4)}, {s(sWS,2)}")
    ts("p_published")
    A(f"""
      s_lshl_b32 {s(sT0)}, {s(sKVH)}, 5
      s_add_u32 {s(sT0)}, {s(sT0)}, {s(sA)}
      s_lshl_b32 {s(sT0)}, {s(sT0)}, 12
      s_lshl_b32 {s(sT1)}, {s(sWAVE)}, 5
      s_add_u32 {s(sT0)}, {s(sT0)}, {s(sT1)}
      s_add_u32 {s(sT0)}, {s(sT0)}, {WS_RG}
      v_lshrrev_b32 {v(vT5)}, 1, {v(vL)}
      v_lshlrev_b32 {v(vT5)}, 7, {v(vT5)}
      v_and_b32 {v(vT0)}, 1, {v(vL)}
      v_lshl_add_u32 {v(vT5)}, {v(vT0)}, 4, {v(vT5)}
      v_add_u32 {v(vT5)}, {s(sT0)}, {v(vT5)}
    """)
    def issue_r():
        A(f"global_load_dwordx4 {v(vK,4)}, {v(vT5)}, {s(sWS,2)} sc1")
    issue_r()
    A(f"""
      s_lshl_b32 {s(sT0)}, {s(sA)}, 11
      s_lshl_b32 {s(sT1)}, {s(sKVH)}, 8
      s_add_u32 {s(sT0)}, {s(sT0)}, {s(sT1)}
      s_lshl_b32 {s(sT1)}, {s(sWAVE)}, 6
      s_add_u32 {s(sT0)}, {s(sT0)}, {s(sT1)}
      s_add_u32 {s(sT0)}, {s(sT0)}, {WS_FG}
      v_lshlrev_b32 {v(vT1)}, 5, {v(vT0)}
      v_lshl_add_u32 {v(vT1)}, {v(vGq)}, 3, {v(vT1)}
      v_add_u32 {v(vT1)}, {s(sT0)}, {v(vT1)}
      v_mov_b32 {v(vT3)}, {s(sTAG)}
    """)
    poll_pipe(issue_r, 1, [vK+1, vK+3], "h2", 1, 1, True)
    ts("h2_done")
    A(f"""
      v_lshlrev_b32 {v(vS)}, 16, {v(vK)}
      v_and_b32 {v(vS+1)}, 0xffff0000, {v(vK)}
      v_lshlrev_b32 {v(vS+2)}, 16, {v(vK+2)}
      v_and_b32 {v(vS+3)}, 0xffff0000, {v(vK+2)}
      s_nop 1
      v_permlane32_swap_b32 {v(vS)}, {v(vS+2)}
      v_permlane32_swap_b32 {v(vS+1)}, {v(vS+3)}
      v_add_f32 {v(vS)}, {v(vS)}, {v(vS+2)}
      v_add_f32 {v(vS+1)}, {v(vS+1)}, {v(vS+3)}
      s_nop 1
      v_permlane16_swap_b32 {v(vS)}, {v(vS+1)}
      v_add_f32 {v(vS)}, {v(vS)}, {v(vS+1)}
      s_nop 1
      v_add_f32_dpp {v(vS)}, {v(vS)}, {v(vS)} row_ror:8 row_mask:0xf bank_mask:0xf
      s_nop 1
      v_add_f32_dpp {v(vS)}, {v(vS)}, {v(vS)} row_ror:4 row_mask:0xf bank_mask:0xf
      s_nop 1
      v_add_f32_dpp {v(vT2)}, {v(vS)}, {v(vS)} quad_perm:[2,3,0,1] row_mask:0xf bank_mask:0xf
      s_mov_b64 exec, 0x0003000300030003
      global_store_dwordx2 {v(vT1)}, {v(vT2,2)}, {s(sWS,2)} sc1
      s_mov_b64 exec, -1
    """.replace("s_mov_b64 exec, 0x0003000300030003", f"s_mov_b32 exec_lo, 0x00030003\n      s_mov_b32 exec_hi, 0x00030003".replace("\\n", "\n")))
    ts("f_published")
    A(f"""
      s_and_b32 {s(sT0)}, {s(sA)}, 7
      s_cmp_lg_u32 {s(sT0)}, {s(sKVH)}
      s_cbranch_scc1 Lend
      s_cmp_lg_u32 {s(sWAVE)}, 0
      s_cbranch_scc1 Lend
      s_lshl_b32 {s(sT0)}, {s(sA)}, 11
      s_add_u32 {s(sT0)}, {s(sT0)}, {WS_FG}
      v_lshrrev_b32 {v(vT5)}, 3, {v(vL)}
      v_lshlrev_b32 {v(vT5)}, 8, {v(vT5)}
      v_and_b32 {v(vT0)}, 7, {v(vL)}
      v_lshl_add_u32 {v(vT5)}, {v(vT0)}, 4, {v(vT5)}
      v_add_u32 {v(vT5)}, {s(sT0)}, {v(vT5)}
      s_lshl_b32 {s(sT0)}, {s(sA)}, 6
      v_lshlrev_b32 {v(vT4)}, 2, {v(vT0)}
      v_add_u32 {v(vT4)}, {s(sT0)}, {v(vT4)}
      global_load_dword {v(vXR)}, {v(vT4)}, {s(sX,2)}
      global_load_dword {v(vXR+1)}, {v(vT4)}, {s(sX,2)} offset:32
    """)
    def issue_f():
        A(f"global_load_dwordx4 {v(vK+4,4)}, {v(vT5)}, {s(sWS,2)} sc1")
        A(f"global_load_dwordx4 {v(vK+8,4)}, {v(vT5)}, {s(sWS,2)} offset:128 sc1")
    poll_pipe(issue_f, 2, [vK+5, vK+7, vK+9, vK+11], "h3", 1, 0, True)
    ts("h3_done")
    A(f"""
      v_add_f32_dpp {v(vK+4)}, {v(vK+4)}, {v(vK+4)} row_ror:8 row_mask:0xf bank_mask:0xf
      v_add_f32_dpp {v(vK+6)}, {v(vK+6)}, {v(vK+6)} row_ror:8 row_mask:0xf bank_mask:0xf
      v_add_f32_dpp {v(vK+8)}, {v(vK+8)}, {v(vK+8)} row_ror:8 row_mask:0xf bank_mask:0xf
      v_add_f32_dpp {v(vK+10)}, {v(vK+10)}, {v(vK+10)} row_ror:8 row_mask:0xf bank_mask:0xf
      v_mov_b32 {v(vS)}, {v(vK+4)}
      v_mov_b32 {v(vS+1)}, {v(vK+6)}
      v_mov_b32 {v(vS+2)}, {v(vK+8)}
      v_mov_b32 {v(vS+3)}, {v(vK+10)}
      v_mov_b32 {v(vS+4)}, {v(vK+4)}
      v_mov_b32 {v(vS+5)}, {v(vK+6)}
      v_mov_b32 {v(vS+6)}, {v(vK+8)}
      v_mov_b32 {v(vS+7)}, {v(vK+10)}
      s_nop 1
    """)
    for sw in ("v_permlane16_swap_b32", "v_permlane32_swap_b32"):
        for i in range(4):
            A(f"{sw} {v(vS+i)}, {v(vS+4+i)}")
        for i in range(4):
            A(f"v_add_f32 {v(vS+i)}, {v(vS+i)}, {v(vS+4+i)}")
        if sw.startswith("v_permlane16"):
            for i in range(4):
                A(f"v_mov_b32 {v(vS+4+i)}, {v(vS+i)}")
            A.nop(1)
    A(f"""
      v_lshlrev_b32 {v(vS+8)}, 16, {v(vXR)}
      v_and_b32 {v(vS+9)}, 0xffff0000, {v(vXR)}
      v_lshlrev_b32 {v(vS+10)}, 16, {v(vXR+1)}
      v_and_b32 {v(vS+11)}, 0xffff0000, {v(vXR+1)}
      v_pk_add_f32 {v(vS,2)}, {v(vS,2)}, {v(vS+8,2)}
      v_pk_add_f32 {v(vS+2,2)}, {v(vS+2,2)}, {v(vS+10,2)}
      v_cvt_pk_bf16_f32 {v(vS)}, {v(vS)}, {v(vS+1)}
      v_cvt_pk_bf16_f32 {v(vS+2)}, {v(vS+2)}, {v(vS+3)}
      s_mov_b64 exec, 0xff
      global_store_dword {v(vT4)}, {v(vS)}, {s(sOUT,2)}
      global_store_dword {v(vT4)}, {v(vS+2)}, {s(sOUT,2)} offset:32
      s_cmp_lg_u32 {s(sA)}, 0
      s_cbranch_scc1 Lend
      v_mov_b32 {v(vT4)}, 0
      v_mov_b32 {v(vT5)}, {s(sTAG)}
      s_mov_b64 exec, 1
      global_store_dword {v(vT4)}, {v(vT5)}, {s(sWS,2)} sc1
      s_branch Lend
    """)
    A("Laux:")
    role[0] = "X"
    A("s_setprio 3")
    A(f"""
      s_sub_u32 {s(sROLE)}, {s(sWAVE)}, 4
      v_lshlrev_b32 {v(vT1)}, 4, {v(vL)}
      v_lshrrev_b32 {v(vT2)}, 3, {v(vL)}
      v_and_b32 {v(vT3)}, 7, {v(vL)}
      s_and_b32 {s(sKS)}, {s(sA)}, 3
      s_lshr_b32 {s(sT0)}, {s(sA)}, 2
      s_lshl_b32 {s(sT1)}, {s(sKVH)}, 3
      s_add_u32 {s(sT0)}, {s(sT0)}, {s(sT1)}
      s_lshl_b32 {s(sT0)}, {s(sT0)}, 7
      s_lshl_b32 {s(sT1)}, {s(sKS)}, 20
      s_add_u32 {s(sT2)}, {s(sT0)}, {s(sT1)}
      s_movk_i32 {s(sSTR)}, 0x2000
      s_cmp_eq_u32 {s(sROLE)}, 0
      s_cbranch_scc1 Laux_w
      s_and_b32 {s(sKS)}, s2, 3
      s_lshr_b32 {s(sT0)}, s2, 2
      s_cmp_ge_u32 {s(sT0)}, 28
      s_cselect_b32 {s(sT3)}, 1, 0
      s_cselect_b32 {s(sT1)}, 28, 0
      s_sub_u32 {s(sT0)}, {s(sT0)}, {s(sT1)}
      s_cmp_ge_u32 s2, 224
      s_cselect_b32 {s(sT0)}, 0, {s(sT0)}
      s_lshl_b32 {s(sT2)}, {s(sT0)}, 7
      s_mul_i32 {s(sT1)}, {s(sKS)}, {128*3584}
      s_add_u32 {s(sT2)}, {s(sT2)}, {s(sT1)}
      s_movk_i32 {s(sSTR)}, 3584
      s_mov_b32 {s(sTILE)}, {s(sT0)}
      s_mov_b32 {s(sTILE+1)}, {s(sT3)}
      s_waitcnt lgkmcnt(0)
      s_cmp_eq_u32 {s(sT3)}, 0
      s_cselect_b32 {s(sWQ)}, {s(sG)}, {s(sU)}
      s_cselect_b32 {s(sWQ+1)}, {s(sG+1)}, {s(sU+1)}
    """)
    A("Laux_w:")
    A(f"""
      s_waitcnt lgkmcnt(0)
      s_add_u32 {s(sWb)}, {s(sWQ)}, {s(sT2)}
      s_addc_u32 {s(sWb+1)}, {s(sWQ+1)}, 0
      v_mul_lo_u32 {v(vT2)}, {v(vT2)}, {s(sSTR)}
      v_lshl_add_u32 {v(vT2)}, {v(vT3)}, 4, {v(vT2)}
      s_lshl_b32 {s(sT0)}, {s(sSTR)}, 3
      global_load_dword {v(vEP)}, {v(vT7)}, {s(sWS,2)} sc1
      global_load_dwordx4 {v(vU,4)}, {v(vT1)}, {s(sX,2)}
      global_load_dwordx4 {v(vU+4,4)}, {v(vT1)}, {s(sX,2)} offset:1024
    """)
    for i in range(16):
        A(f"global_load_dwordx4 {v(vK+4*i,4)}, {v(vT2)}, {s(sWb,2)}{NT}")
        if i < 15:
            A(f"v_add_u32 {v(vT2)}, {s(sT0)}, {v(vT2)}")
    ts("issK")
    A("s_barrier")
    A("s_waitcnt vmcnt(16)")
    ts("issV")
    A(f"v_readfirstlane_b32 {s(sTAG)}, {v(vEP)}")
    for k in range(4):
        A(f"v_lshlrev_b32 {v(vP+4*k)}, 16, {v(vU+k)}")
        A(f"v_lshlrev_b32 {v(vP+4*k+1)}, 16, {v(vU+4+k)}")
        A(f"v_and_b32 {v(vP+4*k+2)}, 0xffff0000, {v(vU+k)}")
        A(f"v_and_b32 {v(vP+4*k+3)}, 0xffff0000, {v(vU+4+k)}")
    A(f"s_add_u32 {s(sTAG)}, {s(sTAG)}, 0x{TAG_DELTA:x}")
    def allreduce2(r0, r1, t0, t1, op="v_add_f32"):
        for sh in (8, 4, 2, 1):
            A.nop(1)
            A(f"{op}_dpp {v(r0)}, {v(r0)}, {v(r0)} row_ror:{sh} row_mask:0xf bank_mask:0xf")
            A(f"{op}_dpp {v(r1)}, {v(r1)}, {v(r1)} row_ror:{sh} row_mask:0xf bank_mask:0xf")
        for sw in ("v_permlane16_swap_b32", "v_permlane32_swap_b32"):
            A(f"v_mov_b32 {v(t0)}, {v(r0)}")
            A(f"v_mov_b32 {v(t1)}, {v(r1)}")
            A.nop(1)
            A(f"{sw} {v(r0)}, {v(t0)}")
            A(f"{sw} {v(r1)}, {v(t1)}")
            A(f"{op} {v(r0)}, {v(r0)}, {v(t0)}")
            A(f"{op} {v(r1)}, {v(r1)}, {v(t1)}")
    A(f"v_pk_add_f32 {v(vT0,2)}, {v(vP,2)}, {v(vP+2,2)}")
    for i in range(2, 8):
        A(f"v_pk_add_f32 {v(vT0,2)}, {v(vT0,2)}, {v(vP+2*i,2)}")
    A.nop(1)
    allreduce2(vT0, vT0+1, vT2, vT3)
    A(f"v_mul_f32 {v(vT0)}, 0x3b000000, {v(vT0)}")
    A(f"v_mul_f32 {v(vT0+1)}, 0x3b000000, {v(vT0+1)}")
    A(f"v_pk_add_f32 {v(vT4,2)}, {v(vP,2)}, {v(vT0,2)} neg_lo:[0,1] neg_hi:[0,1]")
    A(f"v_pk_mul_f32 {v(vT2,2)}, {v(vT4,2)}, {v(vT4,2)}")
    for i in range(1, 8):
        A(f"v_pk_add_f32 {v(vT4,2)}, {v(vP+2*i,2)}, {v(vT0,2)} neg_lo:[0,1] neg_hi:[0,1]")
        A(f"v_pk_fma_f32 {v(vT2,2)}, {v(vT4,2)}, {v(vT4,2)}, {v(vT2,2)}")
    A.nop(1)
    allreduce2(vT2, vT3, vT4, vT5)
    A(f"v_mul_f32 {v(vT2)}, 0x3b000000, {v(vT2)}")
    A(f"v_mul_f32 {v(vT3)}, 0x3b000000, {v(vT3)}")
    rnd_pair(vT0, vT6)
    rnd_pair(vT2, vT6)
    A(f"v_add_f32 {v(vT2)}, 0x3727c5ac, {v(vT2)}")
    A(f"v_add_f32 {v(vT3)}, 0x3727c5ac, {v(vT3)}")
    rnd_pair(vT2, vT6)
    A(f"v_sqrt_f32 {v(vT2)}, {v(vT2)}")
    A(f"v_sqrt_f32 {v(vT3)}, {v(vT3)}")
    A.nop(1)
    rnd_pair(vT2, vT6)
    A(f"v_rcp_f32 {v(vT2)}, {v(vT2)}")
    A(f"v_rcp_f32 {v(vT3)}, {v(vT3)}")
    A.nop(1)
    for i in range(8):
        r = vP + 2*i
        A(f"v_pk_add_f32 {v(r,2)}, {v(r,2)}, {v(vT0,2)} neg_lo:[0,1] neg_hi:[0,1]")
        rnd_pair(r, vT6)
        A(f"v_pk_mul_f32 {v(r,2)}, {v(r,2)}, {v(vT2,2)}")
        rnd_pair(r, vT6)
    A(f"""
      s_lshl_b32 {s(sT0)}, {s(sROLE)}, 12
      v_lshlrev_b32 {v(vT4)}, 6, {v(vL)}
      v_add_u32 {v(vT4)}, {s(sT0)}, {v(vT4)}
    """)
    for k in range(4):
        A(f"ds_write_b128 {v(vT4)}, {v(vP+4*k,4)} offset:{L_XN + 16*k}")
    A(f"""
      s_lshl_b32 {s(sT1)}, {s(sKS)}, 10
      s_add_u32 {s(sT0)}, {s(sT0)}, {s(sT1)}
      v_lshrrev_b32 {v(vT4)}, 3, {v(vL)}
      v_lshlrev_b32 {v(vT4)}, 3, {v(vT4)}
      v_add_u32 {v(vT4)}, {s(sT0)}, {v(vT4)}
    """)
    for i in range(16):
        A(f"ds_read_b64 {v(vV+2*i,2)}, {v(vT4)} offset:{L_XN + 64*i}")
    ts("issW")
    def gemv_piece(acc, wreg, xn, first):
        for k in range(4):
            u = vU + 2*(k & 1)
            A(f"v_lshlrev_b32 {v(u)}, 16, {v(wreg+k)}")
            A(f"v_and_b32 {v(u+1)}, 0xffff0000, {v(wreg+k)}")
            if first:
                A(f"v_pk_mul_f32 {v(acc+4*k,2)}, {v(xn,2)}, {v(u,2)} op_sel:[0,0] op_sel_hi:[1,0]")
                A(f"v_pk_mul_f32 {v(acc+4*k+2,2)}, {v(xn,2)}, {v(u,2)} op_sel:[0,1] op_sel_hi:[1,1]")
            else:
                A(f"v_pk_fma_f32 {v(acc+4*k,2)}, {v(xn,2)}, {v(u,2)}, {v(acc+4*k,2)} op_sel:[0,0,0] op_sel_hi:[1,0,1]")
                A(f"v_pk_fma_f32 {v(acc+4*k+2,2)}, {v(xn,2)}, {v(u,2)}, {v(acc+4*k+2,2)} op_sel:[0,1,0] op_sel_hi:[1,1,1]")
    A("s_waitcnt lgkmcnt(0)")
    for i in range(16):
        A(f"s_waitcnt vmcnt({15 - i + 0})" if True else "")
        gemv_piece(vS, vK+4*i, vV+2*i, i == 0)
    ts("Kdone")
    acc = vS
    A.nop(1)
    for i in range(8):
        A(f"v_permlane32_swap_b32 {v(acc+i)}, {v(acc+i+8)}")
    for i in range(8):
        A(f"v_add_f32 {v(acc+i)}, {v(acc+i)}, {v(acc+i+8)}")
    A.nop(1)
    for i in range(4):
        A(f"v_permlane16_swap_b32 {v(acc+i)}, {v(acc+i+4)}")
    for i in range(4):
        A(f"v_add_f32 {v(acc+i)}, {v(acc+i)}, {v(acc+i+4)}")
    A.nop(1)
    for i in range(2):
        A(f"v_add_f32_dpp {v(acc+4+i)}, {v(acc+i)}, {v(acc+i)} row_ror:8 row_mask:0xf bank_mask:0x3")
        A(f"v_add_f32_dpp {v(acc+4+i)}, {v(acc+i+2)}, {v(acc+i+2)} row_ror:8 row_mask:0xf bank_mask:0xc")
    A(f"""
      s_lshl_b32 {s(sT0)}, {s(sROLE)}, 9
      v_and_b32 {v(vT4)}, 7, {v(vL)}
      v_lshlrev_b32 {v(vT4)}, 3, {v(vT4)}
      v_lshrrev_b32 {v(vT5)}, 3, {v(vL)}
      v_add_u32 {v(vT4)}, {v(vT4)}, {v(vT5)}
      v_lshlrev_b32 {v(vT4)}, 3, {v(vT4)}
      v_add_u32 {v(vT4)}, {s(sT0)}, {v(vT4)}
      ds_write_b64 {v(vT4)}, {v(acc+4,2)} offset:{L_TR}
      s_cmp_eq_u32 {s(sROLE)}, 0
      s_cbranch_scc0 Laux_gst
      v_and_b32 {v(vT5)}, 31, {v(vL)}
      v_lshrrev_b32 {v(vT6)}, 5, {v(vL)}
      v_lshlrev_b32 {v(vT4)}, 4, {v(vT5)}
      v_lshl_add_u32 {v(vT4)}, {v(vT6)}, 2, {v(vT4)}
      s_lshl_b32 {s(sT1)}, {s(sKVH)}, 15
      s_lshl_b32 {s(sT2)}, {s(sKS)}, 12
      s_add_u32 {s(sT1)}, {s(sT1)}, {s(sT2)}
      s_lshr_b32 {s(sT2)}, {s(sA)}, 2
      s_lshl_b32 {s(sT2)}, {s(sT2)}, 9
      s_add_u32 {s(sT1)}, {s(sT1)}, {s(sT2)}
      s_add_u32 {s(sT1)}, {s(sT1)}, {WS_QG}
      v_lshlrev_b32 {v(vT6)}, 14, {v(vT6)}
      v_lshl_add_u32 {v(vT5)}, {v(vT5)}, 4, {v(vT6)}
      v_add_u32 {v(vT5)}, {s(sT1)}, {v(vT5)}
      s_branch Laux_st
    """)
    A("Laux_gst:")
    A(f"""
      v_lshrrev_b32 {v(vT5)}, 3, {v(vL)}
      v_and_b32 {v(vT6)}, 3, {v(vL)}
      v_lshl_add_u32 {v(vT4)}, {v(vT5)}, 2, {v(vT6)}
      v_lshlrev_b32 {v(vT4)}, 4, {v(vT4)}
      v_bfe_u32 {v(vT6)}, {v(vL)}, 2, 1
      v_lshl_add_u32 {v(vT4)}, {v(vT6)}, 2, {v(vT4)}
      v_add_u32 {v(vT4)}, 512, {v(vT4)}
      s_lshl_b32 {s(sT1)}, {s(sTILE)}, 13
      s_lshl_b32 {s(sT2)}, {s(sTILE+1)}, 2
      s_add_u32 {s(sT2)}, {s(sT2)}, {s(sKS)}
      s_lshl_b32 {s(sT2)}, {s(sT2)}, 7
      s_add_u32 {s(sT1)}, {s(sT1)}, {s(sT2)}
      s_add_u32 {s(sT1)}, {s(sT1)}, {WS_GG}
      v_lshlrev_b32 {v(vT5)}, 10, {v(vT5)}
      v_and_b32 {v(vT6)}, 7, {v(vL)}
      v_lshl_add_u32 {v(vT5)}, {v(vT6)}, 4, {v(vT5)}
      v_add_u32 {v(vT5)}, {s(sT1)}, {v(vT5)}
    """)
    A("Laux_st:")
    A(f"""
      ds_read_b32 {v(vU)}, {v(vT4)} offset:{L_TR}
      ds_read_b32 {v(vU+2)}, {v(vT4)} offset:{L_TR+8}
      v_mov_b32 {v(vU+1)}, {s(sTAG)}
      v_mov_b32 {v(vU+3)}, {s(sTAG)}
      s_waitcnt lgkmcnt(0)
      s_cmp_eq_u32 {s(sROLE)}, 0
      s_cselect_b32 {s(sT0)}, 0, s2
      s_cmp_ge_u32 {s(sT0)}, 224
      s_cbranch_scc1 Lend
      global_store_dwordx4 {v(vT5)}, {v(vU,4)}, {s(sWS,2)} sc1
      s_cmp_lg_u32 {s(sROLE)}, 0
      s_cbranch_scc1 Lend
      s_lshl_b32 {s(sT0)}, {s(sKVH)}, 8
      s_lshl_b32 {s(sT1)}, {s(sA)}, 3
      s_add_u32 {s(sT0)}, {s(sT0)}, {s(sT1)}
      s_add_u32 {s(sT0)}, {s(sT0)}, {WS_XG}
      v_mov_b32 {v(vT0)}, {s(sT0)}
      v_mov_b32 {v(vT2)}, {s(sXCC)}
      v_mov_b32 {v(vT3)}, {s(sTAG)}
      s_mov_b64 exec, 1
      global_store_dwordx2 {v(vT0)}, {v(vT2,2)}, {s(sWS,2)} sc1
    """)
    ts("p_done")
    A("Lend:")
    if TS:
        ts("end")
        A("s_waitcnt lgkmcnt(0)")
        A(f"""
          s_mov_b64 exec, 1
          s_mul_i32 {s(sT0)}, s2, 6
          s_add_u32 {s(sT0)}, {s(sT0)}, {s(sWAVE)}
          s_lshl_b32 {s(sT0)}, {s(sT0)}, 7
          s_add_u32 {s(sT0)}, {s(sT0)}, {WS_TS}
          v_mov_b32 {v(vT4)}, {s(sT0)}
        """)
        for k in range(19):
            A(f"v_mov_b32 {v(vT5)}, {s(64+2*k)}")
            A(f"global_store_dword {v(vT4)}, {v(vT5)}, {s(sWS,2)} offset:{4*k}")
    A("Lexit:")
    A("s_endpgm")
    A("Lcode_end:")
    A(f".set CODE_CHUNKS, (Lcode_end-{NAME})/1024")
    hdr = f"""; fused decode kernel: layernorm -> {{windowed GQA attention + out proj}} + {{sigmoid GLU}} + residual
; @launch grid=(256,1,1) block=(384,1,1) lds={LDS_BYTES}
.amdgcn_target "amdgcn-amd-amdhsa--gfx950"
.text
.globl {NAME}
.p2align 8
.type {NAME},@function
{NAME}:
"""
    ftr = f"""
.section .rodata,"a"
.p2align 6
.amdhsa_kernel {NAME}
  .amdhsa_next_free_vgpr {NV}
  .amdhsa_next_free_sgpr 102
  .amdhsa_accum_offset {NV}
  .amdhsa_group_segment_fixed_size 0
  .amdhsa_kernarg_size 96
  .amdhsa_user_sgpr_count 2
  .amdhsa_user_sgpr_kernarg_segment_ptr 1
  .amdhsa_system_sgpr_workgroup_id_x 1
.end_amdhsa_kernel
"""
    return hdr + A.text() + ftr, (ts_map if TS else None)

if __name__ == "__main__":
    out = sys.argv[1]
    opt = {}
    for a in sys.argv[2:]:
        k, val = a.split("=")
        opt[k] = int(val)
    txt, slots = gen(opt)
    open(out, "w").write(txt)
    print("wrote", out, "ts slots:", slots)
```

```python
import sys

NAME = "parallel_sum__sliding_block_cached__glu_gated_glu__decode_kernel"
NWAVES = 6
NAWAVES = 4

class Asm:
    def __init__(self):
        self.lines = []
        self.uid = 0
    def __call__(self, s):
        for ln in s.strip("\n").split("\n"):
            t = ln.strip()
            if not t: continue
            self.lines.append(t if t.endswith(":") else "  " + t)
    def label(self, base):
        self.uid += 1
        return f"L{base}_{self.uid}"
    def nop(self, n):
        while n > 0:
            k = min(n, 16)
            self(f"s_nop {k-1}")
            n -= k
    def text(self):
        return "\n".join(self.lines) + "\n"

def v(i, n=1):
    return f"v{i}" if n == 1 else f"v[{i}:{i+n-1}]"
def s(i, n=1):
    return f"s{i}" if n == 1 else f"s[{i}:{i+n-1}]"

WS_EPOCH = 0
WS_XG = 0x8000
WS_SG = 0x10000
WS_QG = 0x40000
WS_GG = 0x80000
WS_OG = 0x100000
WS_RG = 0x200000
WS_FG = 0x300000
WS_TS = 0x800000
TAG_DELTA = 0x9E3779B9

L_XB = 0
L_TR = 2048
L_QB = 4096
L_MX = 5120
L_LS = 5184
L_HV = 5248
L_OP = 6144
LDS_BYTES = 14336

def gen(opt):
    A = Asm()
    TS = opt.get("ts", 0)
    NT = " nt" if opt.get("nt", 1) else ""
    WIN = opt.get("win", 8)
    NTH = opt.get("nth", 17)
    QK = opt.get("qk", 12)
    BAR0 = opt.get("bar0", 1)
    SPIN = opt.get("spin", 2000000)
    CPF = opt.get("cpf", 1)
    FASTOK = opt.get("fast", 1)
    D1 = opt.get("d1", 1)
    D2 = opt.get("d2", 1)
    PGS = opt.get("pgs", 4352)
    role = ["A"]
    ts_map = {"A": ["start"], "X": ["start"]}
    SKIP = set(opt.get("_skip", ["issK", "q_done", "h_done", "q_n", "st_n"] + (["h1_n", "h2_n", "h3_n", "issQ"] if opt.get("det") else ["s_issued", "preM", "barM", "preS"])))
    def slot(name):
        if name == "start": return 0
        if name == "end": return 18
        l = ts_map[role[0]]
        if name not in l: l.append(name)
        assert len(l) <= 18, l
        return l.index(name)
    def ts(name):
        if TS and not (role[0] == "A" and name in SKIP):
            A(f"s_memrealtime {s(64 + 2*slot(name), 2)}")

    sX, sK, sV, sWQ, sWO, sBX, sG, sU = 4, 6, 8, 10, 12, 14, 16, 18
    sWD, sOUT, sDBG, sWS = 20, 22, 24, 26
    sKVH, sA, sB, sTAG, sWAVE = 28, 29, 30, 31, 32
    sT0, sT1, sT2, sT3 = 33, 34, 35, 36
    sSPIN = 37
    sC0 = 38
    sEX = 40
    sXCC, sMODE = 42, 43
    sSRK = 44
    sSRV = 48
    sWb = 52
    sWDb = 54
    sSTR = 56
    sKS = 57
    sTILE = 58
    sROLE = 62
    vL, vN, vGq = 1, 2, 3
    vT0, vT1, vT2, vT3, vT4, vT5, vT6, vT7 = 4, 5, 6, 7, 8, 9, 10, 11
    vM0, vM1 = 12, 13
    vMK = 14
    vEP = 18
    vXR = 18
    vOA = 20
    vD3 = 28
    vQ = 32
    vS = 48
    vK = 64
    vV = 128
    vWO = 192
    vP = 216
    vU = 232
    vAX = 240
    NV = 256
    vAq, vAg, vAx, vAw0, vAw1, vAw2 = vAX, vAX+4, vAX+5, vAX+6, vAX+7, vAX+8
    vAo, vAr0, vAr1, vAog, vAst, vApo, vApg = vAX+9, vAX+10, vAX+11, vAX+12, vAX+13, vAX+14, vAX+15
    vAr, vAf = vAX+4, vP+15

    def xrow(r, t, op):
        for sw in ("v_permlane16_swap_b32", "v_permlane32_swap_b32"):
            A(f"v_mov_b32 {v(t)}, {v(r)}")
            A.nop(2)
            A(f"{sw} {v(r)}, {v(t)}")
            A(f"{op} {v(r)}, {v(r)}, {v(t)}")
    def rnd_pair(r, t):
        A(f"v_cvt_pk_bf16_f32 {v(t)}, {v(r)}, {v(r+1)}")
        A(f"v_lshlrev_b32 {v(r)}, 16, {v(t)}")
        A(f"v_and_b32 {v(r+1)}, 0xffff0000, {v(t)}")
    def check(regs):
        tmp = [vT6, vT7, vU+6]
        first = True
        i = 0
        regs = list(regs)
        A(f"v_xor_b32 {v(vT6)}, {s(sTAG)}, {v(regs[0])}")
        i = 1
        while i < len(regs):
            if i + 1 < len(regs):
                A(f"v_xor_b32 {v(vT7)}, {s(sTAG)}, {v(regs[i])}")
                A(f"v_xor_b32 {v(vU+6)}, {s(sTAG)}, {v(regs[i+1])}")
                A(f"v_or3_b32 {v(vT6)}, {v(vT6)}, {v(vT7)}, {v(vU+6)}")
                i += 2
            else:
                A(f"v_xor_b32 {v(vT7)}, {s(sTAG)}, {v(regs[i])}")
                A(f"v_or_b32 {v(vT6)}, {v(vT6)}, {v(vT7)}")
                i += 1
        A(f"v_cmp_ne_u32 vcc, 0, {v(vT6)}")
    def poll_simple(issue, tagregs, name, waitn):
        Lr = A.label(name + "_retry"); Lk = A.label(name + "_ok")
        if TS and name + "_n" not in SKIP and name != "g": A(f"s_mov_b32 {s(64+2*slot(name + '_n'))}, 0")
        A(f"s_waitcnt vmcnt({waitn})")
        check(tagregs)
        A(f"s_cbranch_vccz {Lk}")
        A(f"s_mov_b32 {s(sSPIN)}, {SPIN}")
        A(f"{Lr}:")
        A("s_mov_b64 exec, vcc")
        issue()
        A("s_waitcnt vmcnt(0)")
        check(tagregs)
        A(f"s_cbranch_vccz {Lk}_x")
        A(f"s_sub_u32 {s(sSPIN)}, {s(sSPIN)}, 1")
        A(f"s_cmp_lg_u32 {s(sSPIN)}, 0")
        A(f"s_cbranch_scc1 {Lr}")
        A(f"{Lk}_x:")
        A("s_mov_b64 exec, -1")
        if TS and name + "_n" not in SKIP and name != "g": A(f"s_sub_u32 {s(64+2*slot(name + '_n'))}, {SPIN+1}, {s(sSPIN)}")
        A(f"{Lk}:")
    def poll_pipe(issue, nld, tagregs, name, depth, primed, masked):
        Lr = A.label(name + "_loop"); Lk = A.label(name + "_ok"); Lf = A.label(name + "_first")
        A(f"s_mov_b32 {s(sSPIN)}, {SPIN}")
        if primed >= depth:
            A(f"s_branch {Lf}")
        else:
            for _ in range(depth - 1 - primed): issue()
        A(f"{Lr}:")
        issue()
        A(f"{Lf}:")
        A(f"s_waitcnt vmcnt({nld*(depth-1)})")
        check(tagregs)
        A(f"s_cbranch_vccz {Lk}")
        if masked: A("s_mov_b64 exec, vcc")
        A(f"s_sub_u32 {s(sSPIN)}, {s(sSPIN)}, 1")
        A(f"s_cmp_lg_u32 {s(sSPIN)}, 0")
        A(f"s_cbranch_scc1 {Lr}")
        A(f"{Lk}:")
        if masked: A("s_mov_b64 exec, -1")
        if TS and name + "_n" not in SKIP: A(f"s_sub_u32 {s(64+2*slot(name + '_n'))}, {SPIN}, {s(sSPIN)}")
    def store_mode(txt):
        if not FASTOK:
            A(txt + " sc1"); return
        La = A.label("sts"); Lb = A.label("ste")
        A(f"s_cmp_eq_u32 {s(sMODE)}, 0")
        A(f"s_cbranch_scc1 {La}")
        A(txt)
        A(f"s_branch {Lb}")
        A(f"{La}:")
        A(txt + " sc1")
        A(f"{Lb}:")

    A("s_cmp_ge_u32 s2, 256")
    A("s_cbranch_scc1 Lexit")
    A(f"s_load_dwordx16 {s(4,16)}, s[0:1], 0")
    A(f"s_load_dwordx8 {s(20,8)}, s[0:1], 64")
    ts("start")
    if CPF:
        A(f"""
          s_getpc_b64 {s(sC0,2)}
        Lpc:
          v_lshrrev_b32 {v(vT0)}, 6, v0
          s_bfe_u32 {s(sT0)}, s2, 0x10003
          s_mul_i32 {s(sT0)}, {s(sT0)}, 6
          v_add_u32 {v(vT0)}, {s(sT0)}, {v(vT0)}
          v_min_u32 {v(vT0)}, CODE_CHUNKS-1, {v(vT0)}
          v_lshlrev_b32 {v(vT0)}, 10, {v(vT0)}
          v_and_b32 {v(vT1)}, 63, v0
          v_lshl_add_u32 {v(vT0)}, {v(vT1)}, 4, {v(vT0)}
          s_sub_u32 {s(sC0)}, {s(sC0)}, Lpc-{NAME}
          s_subb_u32 {s(sC0+1)}, {s(sC0+1)}, 0
          global_load_dwordx4 {v(vWO+20,4)}, {v(vT0)}, {s(sC0,2)}
        """)
    A(f"""
      v_and_b32 {v(vL)}, 63, v0
      v_lshrrev_b32 {v(vT0)}, 6, v0
      v_and_b32 {v(vN)}, 15, v0
      v_bfe_u32 {v(vGq)}, v0, 4, 2
      v_readfirstlane_b32 {s(sWAVE)}, {v(vT0)}
      s_and_b32 {s(sKVH)}, s2, 7
      s_lshr_b32 {s(sA)}, s2, 3
      s_lshr_b32 {s(sB)}, {s(sA)}, 4
      s_getreg_b32 {s(sXCC)}, hwreg(HW_REG_XCC_ID)
      s_and_b32 {s(sXCC)}, {s(sXCC)}, 15
      v_mov_b32 {v(vT7)}, 0
      s_cmp_ge_u32 {s(sWAVE)}, 4
      s_cbranch_scc1 Laux
    """)
    A(f"""
      v_and_b32 {v(vT3)}, 3, {v(vN)}
      v_lshlrev_b32 {v(vT3)}, 10, {v(vT3)}
      v_lshrrev_b32 {v(vT4)}, 2, {v(vN)}
      v_lshl_add_u32 {v(vT3)}, {v(vT4)}, 8, {v(vT3)}
      v_lshl_add_u32 {v(vT3)}, {v(vGq)}, 4, {v(vT3)}
      s_lshl_b32 {s(sT0)}, {s(sB)}, 3
      s_add_u32 {s(sT0)}, {s(sT0)}, {s(sKVH)}
      s_lshl_b32 {s(sT0)}, {s(sT0)}, 23
      s_and_b32 {s(sT1)}, {s(sA)}, 15
      s_lshl_b32 {s(sT1)}, {s(sT1)}, 16
      s_add_u32 {s(sT0)}, {s(sT0)}, {s(sT1)}
      s_add_u32 {s(sT2)}, {s(sT0)}, 0x700000
    """)
    for tau in range(4):
        A(f"s_add_u32 {s(sT0)}, {s(sWAVE)}, {4*tau}")
        A(f"s_add_u32 {s(sT0)}, {s(sT0)}, {s(sA)}")
        A(f"s_and_b32 {s(sT0)}, {s(sT0)}, 15")
        A(f"s_lshl_b32 {s(sTILE+tau)}, {s(sT0)}, 12")
    A(f"""
      s_mov_b32 {s(sSRK+2)}, 0x10000
      s_mov_b32 {s(sSRK+3)}, 0x20000
      s_waitcnt lgkmcnt(0)
      s_add_u32 {s(sSRK)}, {s(sK)}, {s(sT2)}
      s_addc_u32 {s(sSRK+1)}, {s(sK+1)}, 0
      s_and_b32 {s(sSRK+1)}, {s(sSRK+1)}, 0xffff
    """)
    if BAR0: A("s_barrier")
    nload = [0]
    def ld(txt):
        if WIN and WIN <= nload[0] < NTH:
            A(f"s_waitcnt vmcnt({WIN-1})")
        A(txt); nload[0] += 1
    vQP = vQ
    vXP = vOA + 4
    def issue_q():
        for ks in range(4):
            A(f"global_load_dwordx4 {v(vQP+4*ks,4)}, {v(vAq+ks)}, {s(sWS,2)} sc1")
    def issue_x():
        A(f"global_load_dwordx2 {v(vXP,2)}, {v(vAx)}, {s(sWS,2)} sc1")
    def issue_qx():
        issue_q(); issue_x()
    def kload(n):
        tau, jj = n // 4, n % 4
        ld(f"buffer_load_dwordx4 {v(vK+16*tau+4*jj,4)}, {v(vT3)}, {s(sSRK,4)}, {s(sTILE+tau)} offen offset:{64*jj}{NT}")
    ld(f"global_load_dword {v(vEP)}, {v(vT7)}, {s(sWS,2)} sc1")
    NFIRST = 6
    for n in range(NFIRST): kload(n)
    ts("issK")
    A(f"""
      s_add_u32 {s(sSRV)}, {s(sV)}, {s(sT2)}
      s_addc_u32 {s(sSRV+1)}, {s(sV+1)}, 0
      s_and_b32 {s(sSRV+1)}, {s(sSRV+1)}, 0xffff
      s_mov_b32 {s(sSRV+2)}, 0x10000
      s_mov_b32 {s(sSRV+3)}, 0x20000
      s_lshl_b32 {s(sT0)}, {s(sKVH)}, 19
      s_lshl_b32 {s(sT1)}, {s(sA)}, 14
      s_add_u32 {s(sT0)}, {s(sT0)}, {s(sT1)}
      s_lshl_b32 {s(sT1)}, {s(sWAVE)}, 8
      s_add_u32 {s(sT0)}, {s(sT0)}, {s(sT1)}
      s_add_u32 {s(sWb)}, {s(sWO)}, {s(sT0)}
      s_addc_u32 {s(sWb+1)}, {s(sWO+1)}, 0
      s_cmp_lt_u32 s2, 224
      s_cselect_b32 {s(sT0)}, s2, 0
      s_lshl_b32 {s(sT0)}, {s(sT0)}, 13
      s_add_u32 {s(sT0)}, {s(sT0)}, {s(sT1)}
      s_add_u32 {s(sWDb)}, {s(sWD)}, {s(sT0)}
      s_addc_u32 {s(sWDb+1)}, {s(sWD+1)}, 0
      v_lshlrev_b32 {v(vT2)}, 8, {v(vGq)}
      v_lshl_add_u32 {v(vT2)}, {v(vN)}, 4, {v(vT2)}
      v_lshlrev_b32 {v(vAw0)}, 10, {v(vGq)}
      v_lshl_add_u32 {v(vAw0)}, {v(vN)}, 4, {v(vAw0)}
      v_add_u32 {v(vAw1)}, 0x1000, {v(vAw0)}
      s_lshl_b32 {s(sT0)}, {s(sKVH)}, 1
      s_add_u32 {s(sT0)}, {s(sT0)}, {s(sB)}
      s_lshl_b32 {s(sT0)}, {s(sT0)}, 14
      s_lshl_b32 {s(sT1)}, {s(sWAVE)}, 10
      s_add_u32 {s(sT0)}, {s(sT0)}, {s(sT1)}
      s_add_u32 {s(sT0)}, {s(sT0)}, {WS_QG}
      v_lshlrev_b32 {v(vT4)}, 4, {v(vL)}
      v_add_u32 {v(vAq)}, {s(sT0)}, {v(vT4)}
      v_add_u32 {v(vAq+1)}, 0x1000, {v(vAq)}
      v_add_u32 {v(vAq+2)}, 0x2000, {v(vAq)}
      v_add_u32 {v(vAq+3)}, 0x3000, {v(vAq)}
      s_lshl_b32 {s(sT0)}, {s(sKVH)}, 8
      s_add_u32 {s(sT0)}, {s(sT0)}, {WS_XG}
      v_and_b32 {v(vT4)}, 31, {v(vL)}
      v_lshlrev_b32 {v(vT4)}, 3, {v(vT4)}
      v_add_u32 {v(vAx)}, {s(sT0)}, {v(vT4)}
      s_mov_b32 {s(sT0)}, 0xffff
      s_mov_b32 {s(sT1)}, 0xffff0000
      v_and_b32 {v(vT4)}, 1, {v(vL)}
      v_cmp_eq_u32 vcc, 1, {v(vT4)}
      v_mov_b32 {v(vT5)}, {s(sT0)}
      v_mov_b32 {v(vT6)}, {s(sT1)}
      v_cndmask_b32 {v(vT5)}, {v(vT5)}, {v(vT6)}, vcc
      v_and_b32 {v(vT4)}, 2, {v(vL)}
      v_cmp_eq_u32 vcc, 0, {v(vT4)}
      s_nop 1
      v_cndmask_b32 {v(vM0)}, 0, {v(vT5)}, vcc
      v_cmp_ne_u32 vcc, 0, {v(vT4)}
      s_nop 1
      v_cndmask_b32 {v(vM1)}, 0, {v(vT5)}, vcc
      v_bfe_u32 {v(vT4)}, {v(vL)}, 1, 2
    """)
    for i in range(4):
        A(f"v_cmp_eq_u32 vcc, {i}, {v(vT4)}")
        A("s_nop 1")
        A(f"v_cndmask_b32 {v(vMK+i)}, 0, {v(vT5)}, vcc")
    A(f"""
      s_lshl_b32 {s(sT0)}, {s(sWAVE)}, 11
      s_add_u32 {s(sT0)}, {s(sT0)}, {L_OP}
      v_lshlrev_b32 {v(vAo)}, 9, {v(vGq)}
      v_lshl_add_u32 {v(vAo)}, {v(vN)}, 5, {v(vAo)}
      v_add_u32 {v(vAo)}, {s(sT0)}, {v(vAo)}
      v_lshrrev_b32 {v(vT4)}, 3, {v(vL)}
      v_lshlrev_b32 {v(vT4)}, 4, {v(vT4)}
      v_and_b32 {v(vT5)}, 1, {v(vL)}
      v_lshl_add_u32 {v(vT4)}, {v(vT5)}, 3, {v(vT4)}
      v_bfe_u32 {v(vT5)}, {v(vL)}, 1, 2
      v_add_u32 {v(vT4)}, {v(vT4)}, {v(vT5)}
      v_lshlrev_b32 {v(vT4)}, 2, {v(vT4)}
      s_lshl_b32 {s(sT0)}, {s(sWAVE)}, 9
      s_add_u32 {s(sT0)}, {s(sT0)}, {L_OP}
      v_add_u32 {v(vAr0)}, {s(sT0)}, {v(vT4)}
      v_add_u32 {v(vAr1)}, 16, {v(vAr0)}
      s_lshl_b32 {s(sT0)}, {s(sKVH)}, 16
      s_lshl_b32 {s(sT1)}, {s(sWAVE)}, 14
      s_add_u32 {s(sT0)}, {s(sT0)}, {s(sT1)}
      s_lshl_b32 {s(sT1)}, {s(sA)}, 6
      s_add_u32 {s(sT0)}, {s(sT0)}, {s(sT1)}
      s_add_u32 {s(sT0)}, {s(sT0)}, {WS_OG}
      v_lshrrev_b32 {v(vT4)}, 3, {v(vL)}
      v_lshlrev_b32 {v(vT4)}, 11, {v(vT4)}
      v_and_b32 {v(vT5)}, 7, {v(vL)}
      v_lshl_add_u32 {v(vT4)}, {v(vT5)}, 3, {v(vT4)}
      v_add_u32 {v(vAog)}, {s(sT0)}, {v(vT4)}
      s_lshl_b32 {s(sT0)}, {s(sKVH)}, 2
      s_lshr_b32 {s(sT1)}, {s(sA)}, 3
      s_add_u32 {s(sT0)}, {s(sT0)}, {s(sT1)}
      s_lshl_b32 {s(sT0)}, {s(sT0)}, 9
      s_add_u32 {s(sT0)}, {s(sT0)}, {WS_SG}
      v_bfe_u32 {v(vT4)}, {v(vL)}, 3, 1
      v_lshlrev_b32 {v(vAst)}, 8, {v(vT4)}
      v_lshl_add_u32 {v(vAst)}, {v(vT5)}, 4, {v(vAst)}
      v_add_u32 {v(vAst)}, {s(sT0)}, {v(vAst)}
      s_lshl_b32 {s(sT0)}, {s(sKVH)}, 5
      s_add_u32 {s(sT0)}, {s(sT0)}, {s(sA)}
      s_lshl_b32 {s(sT0)}, {s(sT0)}, 11
      s_add_u32 {s(sT0)}, {s(sT0)}, {WS_OG}
      v_lshlrev_b32 {v(vApo)}, 10, {v(vT4)}
      v_lshl_add_u32 {v(vApo)}, {v(vT5)}, 6, {v(vApo)}
      v_lshl_add_u32 {v(vApo)}, {v(vGq)}, 4, {v(vApo)}
      v_add_u32 {v(vApo)}, {s(sT0)}, {v(vApo)}
      s_lshl_b32 {s(sT0)}, {s(sKVH)}, 17
      s_lshl_b32 {s(sT1)}, {s(sWAVE)}, 14
      s_add_u32 {s(sT0)}, {s(sT0)}, {s(sT1)}
      s_lshl_b32 {s(sT1)}, {s(sA)}, 7
      s_add_u32 {s(sT0)}, {s(sT0)}, {s(sT1)}
      s_add_u32 {s(sT0)}, {s(sT0)}, {WS_RG}
      v_lshrrev_b32 {v(vT4)}, 1, {v(vGq)}
      v_lshlrev_b32 {v(vT4)}, 16, {v(vT4)}
      v_lshrrev_b32 {v(vT5)}, 2, {v(vN)}
      v_lshl_add_u32 {v(vT4)}, {v(vT5)}, 12, {v(vT4)}
      v_and_b32 {v(vT5)}, 3, {v(vN)}
      v_lshl_add_u32 {v(vT4)}, {v(vT5)}, 5, {v(vT4)}
      v_and_b32 {v(vT5)}, 1, {v(vGq)}
      v_lshl_add_u32 {v(vT4)}, {v(vT5)}, 4, {v(vT4)}
      v_add_u32 {v(vApg)}, {s(sT0)}, {v(vT4)}
      s_lshl_b32 {s(sT0)}, {s(sKVH)}, 5
      s_add_u32 {s(sT0)}, {s(sT0)}, {s(sA)}
      s_lshl_b32 {s(sT0)}, {s(sT0)}, 12
      s_lshl_b32 {s(sT1)}, {s(sWAVE)}, 5
      s_add_u32 {s(sT0)}, {s(sT0)}, {s(sT1)}
      s_add_u32 {s(sT0)}, {s(sT0)}, {WS_RG}
      v_lshrrev_b32 {v(vAr)}, 1, {v(vL)}
      v_lshlrev_b32 {v(vAr)}, 7, {v(vAr)}
      v_and_b32 {v(vT0)}, 1, {v(vL)}
      v_lshl_add_u32 {v(vAr)}, {v(vT0)}, 4, {v(vAr)}
      v_add_u32 {v(vAr)}, {s(sT0)}, {v(vAr)}
      s_lshl_b32 {s(sT0)}, {s(sA)}, 11
      s_lshl_b32 {s(sT1)}, {s(sKVH)}, 8
      s_add_u32 {s(sT0)}, {s(sT0)}, {s(sT1)}
      s_lshl_b32 {s(sT1)}, {s(sWAVE)}, 6
      s_add_u32 {s(sT0)}, {s(sT0)}, {s(sT1)}
      s_add_u32 {s(sT0)}, {s(sT0)}, {WS_FG}
      v_lshlrev_b32 {v(vAf)}, 5, {v(vT0)}
      v_lshl_add_u32 {v(vAf)}, {v(vGq)}, 3, {v(vAf)}
      v_add_u32 {v(vAf)}, {s(sT0)}, {v(vAf)}
      v_mov_b32 {v(vD3)}, 0
      v_mov_b32 {v(vD3+1)}, 0
      v_mov_b32 {v(vD3+2)}, 0
      v_mov_b32 {v(vD3+3)}, 0
    """)
    for n in range(NFIRST, 16):
        if n == QK:
            A("s_barrier")
            issue_qx(); ts("issQ")
        kload(n)
    if QK >= 16:
        A("s_barrier")
        issue_qx(); ts("issQ")
    A("s_barrier")
    for tau in range(4):
        for r in range(4):
            A(f"buffer_load_dwordx4 {v(vV+16*tau+4*r,4)}, {v(vT2)}, {s(sSRV,4)}, {s(sTILE+tau)} offen offset:{1024*r}{NT}")
    ts("issV")
    AFTER_Q = (16 - QK) + 16
    A(f"""
      s_waitcnt vmcnt({AFTER_Q + 5})
      v_readfirstlane_b32 {s(sTAG)}, {v(vEP)}
      s_add_u32 {s(sTAG)}, {s(sTAG)}, 0x{TAG_DELTA:x}
    """)
    poll_simple(issue_qx, [vQP+4*i+k for i in range(4) for k in (1, 3)] + [vXP+1], "q", AFTER_Q)
    ts("q_done")
    A(f"""
      v_add_f32 {v(vQP)}, {v(vQP)}, {v(vQP+4)}
      v_add_f32 {v(vQP+2)}, {v(vQP+2)}, {v(vQP+6)}
      v_add_f32 {v(vQP+8)}, {v(vQP+8)}, {v(vQP+12)}
      v_add_f32 {v(vQP+10)}, {v(vQP+10)}, {v(vQP+14)}
      v_add_f32 {v(vQP)}, {v(vQP)}, {v(vQP+8)}
      v_add_f32 {v(vQP+2)}, {v(vQP+2)}, {v(vQP+10)}
      v_cvt_pk_bf16_f32 {v(vQP)}, {v(vQP)}, {v(vQP+2)}
      v_lshlrev_b32 {v(vT4)}, 2, v0
      ds_write_b32 {v(vT4)}, {v(vQP)} offset:{L_QB}
      v_lshrrev_b32 {v(vT4)}, 2, {v(vN)}
      v_lshlrev_b32 {v(vT4)}, 8, {v(vT4)}
      v_lshl_add_u32 {v(vT4)}, {v(vGq)}, 4, {v(vT4)}
      v_cmp_ne_u32 vcc, {s(sXCC)}, {v(vXP)}
      s_cmp_eq_u64 vcc, 0
      s_cselect_b32 {s(sMODE)}, 1, 0
      s_waitcnt lgkmcnt(0)
      s_barrier
    """)
    ts("barX")
    for jj in range(4):
        A(f"ds_read_b128 {v(vQ+4*jj,4)}, {v(vT4)} offset:{L_QB + 64*jj}")
    A("s_waitcnt vmcnt(16) lgkmcnt(0)")
    for jj in range(4):
        for t in range(4):
            c = "0" if jj == 0 else v(vS+4*t,4)
            A(f"v_mfma_f32_16x16x32_bf16 {v(vS+4*t,4)}, {v(vK+16*t+4*jj,4)}, {v(vQ+4*jj,4)}, {c}")
    ts("s_issued")
    A(f"s_mov_b32 {s(sC0)}, 0x3db504f3")
    A(f"s_mov_b32 {s(sC0+1)}, 0x3db504f3")
    A.nop(6)
    for i in range(8):
        r = vS + 2*i
        t = vU + (i & 3)
        A(f"v_cvt_pk_bf16_f32 {v(t)}, {v(r)}, {v(r+1)}")
        A(f"v_lshlrev_b32 {v(r)}, 16, {v(t)}")
        A(f"v_and_b32 {v(r+1)}, 0xffff0000, {v(t)}")
        A(f"v_pk_mul_f32 {v(r,2)}, {v(r,2)}, {s(sC0,2)}")
        A(f"v_cvt_pk_bf16_f32 {v(t)}, {v(r)}, {v(r+1)}")
        A(f"v_lshlrev_b32 {v(r)}, 16, {v(t)}")
        A(f"v_and_b32 {v(r+1)}, 0xffff0000, {v(t)}")
    A(f"v_max3_f32 {v(vT0)}, {v(vS)}, {v(vS+1)}, {v(vS+2)}")
    for i in range(3, 15, 2):
        A(f"v_max3_f32 {v(vT0)}, {v(vT0)}, {v(vS+i)}, {v(vS+i+1)}")
    A(f"v_max_f32 {v(vT0)}, {v(vT0)}, {v(vS+15)}")
    xrow(vT0, vT1, "v_max_f32")
    A(f"""
      v_lshrrev_b32 {v(vT2)}, 2, {v(vN)}
      v_lshlrev_b32 {v(vT2)}, 4, {v(vT2)}
      s_lshl_b32 {s(sT0)}, {s(sWAVE)}, 2
      v_add_u32 {v(vT3)}, {s(sT0)}, {v(vT2)}
      ds_write_b32 {v(vT3)}, {v(vT0)} offset:{L_MX}
      s_waitcnt lgkmcnt(0)
    """)
    ts("preM")
    A(f"""
      s_barrier
    """)
    ts("barM")
    A(f"""
      ds_read_b128 {v(vU,4)}, {v(vT2)} offset:{L_MX}
      s_mov_b32 {s(sC0)}, 0x3fb8aa3b
      s_waitcnt lgkmcnt(0)
      v_max3_f32 {v(vT0)}, {v(vU)}, {v(vU+1)}, {v(vU+2)}
      v_max_f32 {v(vT0)}, {v(vT0)}, {v(vU+3)}
      v_mul_f32 {v(vT0)}, {s(sC0)}, {v(vT0)}
    """)
    for i in range(16):
        A(f"v_fma_f32 {v(vS+i)}, {v(vS+i)}, {s(sC0)}, -{v(vT0)}")
    for i in range(16):
        A(f"v_exp_f32 {v(vS+i)}, {v(vS+i)}")
    A.nop(1)
    for i in range(8):
        A(f"v_add_f32 {v(vU + (i & 7))}, {v(vS+2*i)}, {v(vS+2*i+1)}")
    for i in range(4):
        A(f"v_add_f32 {v(vU+i)}, {v(vU+i)}, {v(vU+4+i)}")
    A(f"v_add_f32 {v(vU)}, {v(vU)}, {v(vU+2)}")
    A(f"v_add_f32 {v(vU+1)}, {v(vU+1)}, {v(vU+3)}")
    A(f"v_add_f32 {v(vT1)}, {v(vU)}, {v(vU+1)}")
    xrow(vT1, vT4, "v_add_f32")
    A(f"ds_write_b32 {v(vT3)}, {v(vT1)} offset:{L_LS}")
    for i in range(16):
        A(f"v_cvt_pk_bf16_f32 {v(vS+i)}, {v(vS+i)}, {v(vS+i)}")
    for i in range(16):
        A(f"v_and_b32 {v(vK+2*i)}, {v(vS+i)}, {v(vM0)}")
        A(f"v_and_b32 {v(vK+2*i+1)}, {v(vS+i)}, {v(vM1)}")
    ts("preS")
    A(f"""
      s_waitcnt lgkmcnt(0)
      s_barrier
      s_lshl_b32 {s(sT0)}, {s(sWAVE)}, 4
      v_mov_b32 {v(vT6)}, {s(sT0)}
      ds_read_b128 {v(vP+4,4)}, {v(vT6)} offset:{L_LS}
      s_lshl_b32 {s(sT0)}, {s(sKVH)}, 2
      s_add_u32 {s(sT0)}, {s(sT0)}, {s(sWAVE)}
      s_lshl_b32 {s(sT0)}, {s(sT0)}, 9
      s_lshl_b32 {s(sT1)}, {s(sA)}, 4
      s_add_u32 {s(sT0)}, {s(sT0)}, {s(sT1)}
      s_add_u32 {s(sT0)}, {s(sT0)}, {WS_SG}
      v_mov_b32 {v(vT5)}, {s(sT0)}
      ds_read_b128 {v(vP+8,4)}, {v(vT6)} offset:{L_MX}
      s_waitcnt lgkmcnt(0)
      v_add_f32 {v(vP+4)}, {v(vP+4)}, {v(vP+5)}
      v_add_f32 {v(vP+6)}, {v(vP+6)}, {v(vP+7)}
      v_add_f32 {v(vP+6)}, {v(vP+4)}, {v(vP+6)}
      v_max3_f32 {v(vP+4)}, {v(vP+8)}, {v(vP+9)}, {v(vP+10)}
      v_max_f32 {v(vP+4)}, {v(vP+4)}, {v(vP+11)}
      v_mul_f32 {v(vP+4)}, {s(sC0)}, {v(vP+4)}
      v_mov_b32 {v(vP+5)}, {s(sTAG)}
      v_mov_b32 {v(vP+7)}, {s(sTAG)}
      s_mov_b64 exec, 1
    """)
    store_mode(f"global_store_dwordx4 {v(vT5)}, {v(vP+4,4)}, {s(sWS,2)}")
    A("s_mov_b64 exec, -1")
    ts("p_done")
    vST = vS + 8
    def issue_st():
        A(f"global_load_dwordx4 {v(vST,4)}, {v(vAst)}, {s(sWS,2)} sc1")
        A(f"global_load_dwordx4 {v(vST+4,4)}, {v(vAst)}, {s(sWS,2)} offset:128 sc1")
    issue_st()
    A(f"global_load_dwordx4 {v(vWO+16,4)}, {v(vAw0)}, {s(sWDb,2)}{NT}")
    A(f"global_load_dwordx4 {v(vWO+20,4)}, {v(vAw1)}, {s(sWDb,2)}{NT}")
    A(f"global_load_dwordx4 {v(vWO,4)}, {v(vAw0)}, {s(sWb,2)}{NT}")
    A(f"global_load_dwordx4 {v(vWO+4,4)}, {v(vAw1)}, {s(sWb,2)}{NT}")
    A(f"v_add_u32 {v(vAw2)}, 0x2000, {v(vAw0)}")
    A(f"global_load_dwordx4 {v(vWO+8,4)}, {v(vAw2)}, {s(sWb,2)}{NT}")
    A(f"v_add_u32 {v(vAw2)}, 0x3000, {v(vAw0)}")
    A(f"global_load_dwordx4 {v(vWO+12,4)}, {v(vAw2)}, {s(sWb,2)}{NT}")
    A(f"""
      v_bfe_u32 {v(vT5)}, {v(vL)}, 3, 1
      v_lshlrev_b32 {v(vT5)}, 6, {v(vT5)}
      v_lshl_add_u32 {v(vT5)}, {v(vGq)}, 4, {v(vT5)}
      ds_read_b64 {v(vP,2)}, {v(vT5)} offset:{L_HV}
      v_mov_b32 {v(vT1)}, {s(sTAG)}
      s_waitcnt lgkmcnt(0)
    """)
    for i in range(2):
        for k in range(4):
            A(f"v_and_b32 {v(vP+4+4*i+k)}, {v(vP+i)}, {v(vMK+k)}")
    ts("h_done")
    for i in range(16):
        A(f"s_waitcnt vmcnt({(15 - i) + 9})")
        c0 = "0" if i == 0 else v(vOA,4)
        c1 = "0" if i == 0 else v(vOA+4,4)
        A(f"v_mfma_f32_16x16x16_bf16 {v(vOA,4)}, {v(vK+2*i,2)}, {v(vV+4*i,2)}, {c0}")
        A(f"v_mfma_f32_16x16x16_bf16 {v(vOA+4,4)}, {v(vK+2*i,2)}, {v(vV+4*i+2,2)}, {c1}")
    ts("pv_done")
    A.nop(8)
    A(f"""
      ds_write_b128 {v(vAo)}, {v(vOA,4)}
      ds_write_b128 {v(vAo)}, {v(vOA+4,4)} offset:16
      s_waitcnt lgkmcnt(0)
      s_barrier
      ds_read2st64_b32 {v(vU,2)}, {v(vAr0)} offset0:0 offset1:8
      ds_read2st64_b32 {v(vU+2,2)}, {v(vAr0)} offset0:16 offset1:24
      ds_read2st64_b32 {v(vU+4,2)}, {v(vAr1)} offset0:0 offset1:8
      ds_read2st64_b32 {v(vU+6,2)}, {v(vAr1)} offset0:16 offset1:24
      s_waitcnt lgkmcnt(2)
      v_pk_add_f32 {v(vU,2)}, {v(vU,2)}, {v(vU+2,2)}
      s_waitcnt lgkmcnt(0)
      v_pk_add_f32 {v(vU+4,2)}, {v(vU+4,2)}, {v(vU+6,2)}
      v_add_f32 {v(vU)}, {v(vU)}, {v(vU+1)}
      v_add_f32 {v(vU+4)}, {v(vU+4)}, {v(vU+5)}
      v_cvt_pk_bf16_f32 {v(vT0)}, {v(vU)}, {v(vU+4)}
    """)
    store_mode(f"global_store_dwordx2 {v(vAog)}, {v(vT0,2)}, {s(sWS,2)}")
    ts("o_published")
    vOO = vV + 8
    def issue_o():
        A(f"global_load_dwordx4 {v(vOO,4)}, {v(vApo)}, {s(sWS,2)} sc1")
        A(f"global_load_dwordx4 {v(vOO+4,4)}, {v(vApo)}, {s(sWS,2)} offset:512 sc1")
    issue_o()
    poll_simple(issue_st, [vST+1, vST+3, vST+5, vST+7], "st", 9)
    ts("st_done")
    def red8(regs, op):
        n = len(regs)
        for ctrl in ("quad_perm:[1,0,3,2]", "quad_perm:[2,3,0,1]", "row_half_mirror"):
            if n < 3: A.nop(3 - n)
            for r in regs:
                A(f"{op}_dpp {v(r)}, {v(r)}, {v(r)} {ctrl} row_mask:0xf bank_mask:0xf")
    A(f"v_max_f32 {v(vT2)}, {v(vST)}, {v(vST+4)}")
    red8([vT2], "v_max_f32")
    A(f"""
      v_sub_f32 {v(vT3)}, {v(vST)}, {v(vT2)}
      v_sub_f32 {v(vT4)}, {v(vST+4)}, {v(vT2)}
      v_exp_f32 {v(vT3)}, {v(vT3)}
      v_exp_f32 {v(vT4)}, {v(vT4)}
      s_nop 0
      v_mul_f32 {v(vT2)}, {v(vT3)}, {v(vST+2)}
      v_fma_f32 {v(vT2)}, {v(vT4)}, {v(vST+6)}, {v(vT2)}
    """)
    red8([vT2], "v_add_f32")
    A(f"""
      v_rcp_f32 {v(vT2)}, {v(vT2)}
      s_nop 0
      v_mul_f32 {v(vT3)}, {v(vT3)}, {v(vT2)}
      v_mul_f32 {v(vT4)}, {v(vT4)}, {v(vT2)}
    """)
    LskipB = A.label("skipB")
    A(f"s_cmp_ge_u32 s2, 224")
    A(f"s_cbranch_scc1 {LskipB}")
    A("s_waitcnt vmcnt(7)")
    for i in range(2):
        A(f"v_mfma_f32_16x16x32_bf16 {v(vD3,4)}, {v(vP+4+4*i,4)}, {v(vWO+16+4*i,4)}, {v(vD3,4)}")
    A(f"{LskipB}:")
    poll_pipe(issue_o, 2, [vOO+1, vOO+3, vOO+5, vOO+7], "h1", D1, 1, True)
    ts("h1_done")
    A(f"""
      v_lshlrev_b32 {v(vU)}, 16, {v(vOO)}
      v_and_b32 {v(vU+1)}, 0xffff0000, {v(vOO)}
      v_lshlrev_b32 {v(vU+2)}, 16, {v(vOO+2)}
      v_and_b32 {v(vU+3)}, 0xffff0000, {v(vOO+2)}
      v_lshlrev_b32 {v(vU+4)}, 16, {v(vOO+4)}
      v_and_b32 {v(vU+5)}, 0xffff0000, {v(vOO+4)}
      v_lshlrev_b32 {v(vU+6)}, 16, {v(vOO+6)}
      v_and_b32 {v(vU+7)}, 0xffff0000, {v(vOO+6)}
      v_pk_mul_f32 {v(vU,2)}, {v(vU,2)}, {v(vT3,2)} op_sel:[0,0] op_sel_hi:[1,0]
      v_pk_mul_f32 {v(vU+2,2)}, {v(vU+2,2)}, {v(vT3,2)} op_sel:[0,0] op_sel_hi:[1,0]
    """.replace(v(vT3,2), "XX")) if False else None
    A(f"""
      v_lshlrev_b32 {v(vU)}, 16, {v(vOO)}
      v_and_b32 {v(vU+1)}, 0xffff0000, {v(vOO)}
      v_lshlrev_b32 {v(vU+2)}, 16, {v(vOO+2)}
      v_and_b32 {v(vU+3)}, 0xffff0000, {v(vOO+2)}
      v_lshlrev_b32 {v(vU+4)}, 16, {v(vOO+4)}
      v_and_b32 {v(vU+5)}, 0xffff0000, {v(vOO+4)}
      v_lshlrev_b32 {v(vU+6)}, 16, {v(vOO+6)}
      v_and_b32 {v(vU+7)}, 0xffff0000, {v(vOO+6)}
    """)
    for i in range(4):
        A(f"v_mul_f32 {v(vU+i)}, {v(vU+i)}, {v(vT3)}")
    for i in range(4):
        A(f"v_fma_f32 {v(vU+i)}, {v(vU+4+i)}, {v(vT4)}, {v(vU+i)}")
    red8([vU, vU+1, vU+2, vU+3], "v_add_f32")
    for i in range(4):
        A(f"v_cvt_pk_bf16_f32 {v(vU+i)}, {v(vU+i)}, {v(vU+i)}")
    for i in range(4):
        for k in range(4):
            A(f"v_and_b32 {v(vQ+4*i+k)}, {v(vU+i)}, {v(vMK+k)}")
    A(f"v_mov_b32 {v(vU+5)}, {s(sTAG)}")
    A(f"v_mov_b32 {v(vU+7)}, {s(sTAG)}")
    for i in range(4):
        A(f"v_mfma_f32_16x16x32_bf16 {v(vD3,4)}, {v(vQ+4*i,4)}, {v(vWO+4*i,4)}, {v(vD3,4)}")
    A.nop(8)
    A(f"""
      v_cvt_pk_bf16_f32 {v(vU+4)}, {v(vD3)}, {v(vD3+1)}
      v_cvt_pk_bf16_f32 {v(vU+6)}, {v(vD3+2)}, {v(vD3+3)}
    """)
    store_mode(f"global_store_dwordx4 {v(vApg)}, {v(vU+4,4)}, {s(sWS,2)}")
    ts("p_published")
    def issue_r():
        A(f"global_load_dwordx4 {v(vK,4)}, {v(vAr)}, {s(sWS,2)} sc1")
    issue_r()
    A(f"v_mov_b32 {v(vT3)}, {s(sTAG)}")
    poll_pipe(issue_r, 1, [vK+1, vK+3], "h2", 1, 1, True)
    ts("h2_done")
    A(f"""
      v_lshlrev_b32 {v(vS)}, 16, {v(vK)}
      v_and_b32 {v(vS+1)}, 0xffff0000, {v(vK)}
      v_lshlrev_b32 {v(vS+2)}, 16, {v(vK+2)}
      v_and_b32 {v(vS+3)}, 0xffff0000, {v(vK+2)}
      s_nop 1
      v_permlane32_swap_b32 {v(vS)}, {v(vS+2)}
      v_permlane32_swap_b32 {v(vS+1)}, {v(vS+3)}
      v_add_f32 {v(vS)}, {v(vS)}, {v(vS+2)}
      v_add_f32 {v(vS+1)}, {v(vS+1)}, {v(vS+3)}
      s_nop 1
      v_permlane16_swap_b32 {v(vS)}, {v(vS+1)}
      v_add_f32 {v(vS)}, {v(vS)}, {v(vS+1)}
      s_nop 1
      v_add_f32_dpp {v(vS)}, {v(vS)}, {v(vS)} row_ror:8 row_mask:0xf bank_mask:0xf
      s_nop 1
      v_add_f32_dpp {v(vS)}, {v(vS)}, {v(vS)} row_ror:4 row_mask:0xf bank_mask:0xf
      s_nop 1
      v_add_f32_dpp {v(vT2)}, {v(vS)}, {v(vS)} quad_perm:[2,3,0,1] row_mask:0xf bank_mask:0xf
      s_mov_b64 exec, 0x0003000300030003
      global_store_dwordx2 {v(vAf)}, {v(vT2,2)}, {s(sWS,2)} sc1
      s_mov_b64 exec, -1
    """.replace("s_mov_b64 exec, 0x0003000300030003", f"s_mov_b32 exec_lo, 0x00030003\n      s_mov_b32 exec_hi, 0x00030003".replace("\\n", "\n")))
    ts("f_published")
    A(f"""
      s_and_b32 {s(sT0)}, {s(sA)}, 7
      s_cmp_lg_u32 {s(sT0)}, {s(sKVH)}
      s_cbranch_scc1 Lend
      s_cmp_lg_u32 {s(sWAVE)}, 0
      s_cbranch_scc1 Lend
      s_lshl_b32 {s(sT0)}, {s(sA)}, 11
      s_add_u32 {s(sT0)}, {s(sT0)}, {WS_FG}
      v_lshrrev_b32 {v(vT5)}, 3, {v(vL)}
      v_lshlrev_b32 {v(vT5)}, 8, {v(vT5)}
      v_and_b32 {v(vT0)}, 7, {v(vL)}
      v_lshl_add_u32 {v(vT5)}, {v(vT0)}, 4, {v(vT5)}
      v_add_u32 {v(vT5)}, {s(sT0)}, {v(vT5)}
      s_lshl_b32 {s(sT0)}, {s(sA)}, 6
      v_lshlrev_b32 {v(vT4)}, 2, {v(vT0)}
      v_add_u32 {v(vT4)}, {s(sT0)}, {v(vT4)}
      global_load_dword {v(vXR)}, {v(vT4)}, {s(sX,2)}
      global_load_dword {v(vXR+1)}, {v(vT4)}, {s(sX,2)} offset:32
    """)
    def issue_f():
        A(f"global_load_dwordx4 {v(vK+4,4)}, {v(vT5)}, {s(sWS,2)} sc1")
        A(f"global_load_dwordx4 {v(vK+8,4)}, {v(vT5)}, {s(sWS,2)} offset:128 sc1")
    poll_pipe(issue_f, 2, [vK+5, vK+7, vK+9, vK+11], "h3", 1, 0, True)
    ts("h3_done")
    A(f"""
      v_add_f32_dpp {v(vK+4)}, {v(vK+4)}, {v(vK+4)} row_ror:8 row_mask:0xf bank_mask:0xf
      v_add_f32_dpp {v(vK+6)}, {v(vK+6)}, {v(vK+6)} row_ror:8 row_mask:0xf bank_mask:0xf
      v_add_f32_dpp {v(vK+8)}, {v(vK+8)}, {v(vK+8)} row_ror:8 row_mask:0xf bank_mask:0xf
      v_add_f32_dpp {v(vK+10)}, {v(vK+10)}, {v(vK+10)} row_ror:8 row_mask:0xf bank_mask:0xf
      v_mov_b32 {v(vS)}, {v(vK+4)}
      v_mov_b32 {v(vS+1)}, {v(vK+6)}
      v_mov_b32 {v(vS+2)}, {v(vK+8)}
      v_mov_b32 {v(vS+3)}, {v(vK+10)}
      v_mov_b32 {v(vS+4)}, {v(vK+4)}
      v_mov_b32 {v(vS+5)}, {v(vK+6)}
      v_mov_b32 {v(vS+6)}, {v(vK+8)}
      v_mov_b32 {v(vS+7)}, {v(vK+10)}
      s_nop 1
    """)
    for sw in ("v_permlane16_swap_b32", "v_permlane32_swap_b32"):
        for i in range(4):
            A(f"{sw} {v(vS+i)}, {v(vS+4+i)}")
        for i in range(4):
            A(f"v_add_f32 {v(vS+i)}, {v(vS+i)}, {v(vS+4+i)}")
        if sw.startswith("v_permlane16"):
            for i in range(4):
                A(f"v_mov_b32 {v(vS+4+i)}, {v(vS+i)}")
            A.nop(1)
    A(f"""
      v_lshlrev_b32 {v(vS+8)}, 16, {v(vXR)}
      v_and_b32 {v(vS+9)}, 0xffff0000, {v(vXR)}
      v_lshlrev_b32 {v(vS+10)}, 16, {v(vXR+1)}
      v_and_b32 {v(vS+11)}, 0xffff0000, {v(vXR+1)}
      v_pk_add_f32 {v(vS,2)}, {v(vS,2)}, {v(vS+8,2)}
      v_pk_add_f32 {v(vS+2,2)}, {v(vS+2,2)}, {v(vS+10,2)}
      v_cvt_pk_bf16_f32 {v(vS)}, {v(vS)}, {v(vS+1)}
      v_cvt_pk_bf16_f32 {v(vS+2)}, {v(vS+2)}, {v(vS+3)}
      s_mov_b64 exec, 0xff
      global_store_dword {v(vT4)}, {v(vS)}, {s(sOUT,2)}
      global_store_dword {v(vT4)}, {v(vS+2)}, {s(sOUT,2)} offset:32
      s_cmp_lg_u32 {s(sA)}, 0
      s_cbranch_scc1 Lend
      v_mov_b32 {v(vT4)}, 0
      v_mov_b32 {v(vT5)}, {s(sTAG)}
      s_mov_b64 exec, 1
      global_store_dword {v(vT4)}, {v(vT5)}, {s(sWS,2)} sc1
      s_branch Lend
    """)
    A("Laux:")
    role[0] = "X"
    A("s_setprio 3")
    vWIN = vV
    vXS = vQ
    vDL, vDH = vOA, vOA + 4
    A(f"""
      s_sub_u32 {s(sROLE)}, {s(sWAVE)}, 4
      s_cmp_eq_u32 {s(sROLE)}, 0
      s_cselect_b32 {s(sT0)}, 0, s2
      s_cmp_ge_u32 {s(sT0)}, 224
      s_cbranch_scc1 Lend
      v_lshlrev_b32 {v(vT1)}, 4, {v(vL)}
      v_lshrrev_b32 {v(vT2)}, 3, {v(vL)}
      v_and_b32 {v(vT3)}, 7, {v(vL)}
      s_and_b32 {s(sKS)}, {s(sA)}, 3
      s_lshr_b32 {s(sT0)}, {s(sA)}, 2
      s_lshl_b32 {s(sT1)}, {s(sKVH)}, 3
      s_add_u32 {s(sT0)}, {s(sT0)}, {s(sT1)}
      s_lshl_b32 {s(sT0)}, {s(sT0)}, 7
      s_lshl_b32 {s(sT1)}, {s(sKS)}, 20
      s_add_u32 {s(sT2)}, {s(sT0)}, {s(sT1)}
      s_movk_i32 {s(sSTR)}, 0x2000
      s_cmp_eq_u32 {s(sROLE)}, 0
      s_cbranch_scc1 Laux_w
      s_and_b32 {s(sKS)}, s2, 3
      s_lshr_b32 {s(sT0)}, s2, 2
      s_cmp_ge_u32 {s(sT0)}, 28
      s_cselect_b32 {s(sT3)}, 1, 0
      s_cselect_b32 {s(sT1)}, 28, 0
      s_sub_u32 {s(sT0)}, {s(sT0)}, {s(sT1)}
      s_lshl_b32 {s(sT2)}, {s(sT0)}, 7
      s_mul_i32 {s(sT1)}, {s(sKS)}, {128*3584}
      s_add_u32 {s(sT2)}, {s(sT2)}, {s(sT1)}
      s_movk_i32 {s(sSTR)}, 3584
      s_mov_b32 {s(sTILE)}, {s(sT0)}
      s_mov_b32 {s(sTILE+1)}, {s(sT3)}
      s_waitcnt lgkmcnt(0)
      s_cmp_eq_u32 {s(sT3)}, 0
      s_cselect_b32 {s(sWQ)}, {s(sG)}, {s(sU)}
      s_cselect_b32 {s(sWQ+1)}, {s(sG+1)}, {s(sU+1)}
    """)
    A("Laux_w:")
    A(f"""
      v_mul_lo_u32 {v(vT2)}, {v(vT2)}, {s(sSTR)}
      v_lshl_add_u32 {v(vT2)}, {v(vT3)}, 4, {v(vT2)}
      s_lshl_b32 {s(sT0)}, {s(sKS)}, 8
      v_lshlrev_b32 {v(vT0)}, 2, {v(vL)}
      v_add_u32 {v(vT0)}, {s(sT0)}, {v(vT0)}
      s_lshl_b32 {s(sT0)}, {s(sSTR)}, 3
      s_waitcnt lgkmcnt(0)
      s_add_u32 {s(sWb)}, {s(sWQ)}, {s(sT2)}
      s_addc_u32 {s(sWb+1)}, {s(sWQ+1)}, 0
      global_load_dwordx4 {v(vU,4)}, {v(vT1)}, {s(sX,2)}
      global_load_dwordx4 {v(vU+4,4)}, {v(vT1)}, {s(sX,2)} offset:1024
      global_load_dword {v(vEP)}, {v(vT7)}, {s(sWS,2)} sc1
      global_load_dword {v(vXS)}, {v(vT0)}, {s(sX,2)}
      global_load_dword {v(vXS+1)}, {v(vT0)}, {s(sX,2)} offset:1024
    """)
    for i in range(16):
        A(f"global_load_dwordx4 {v(vK+4*i,4)}, {v(vT2)}, {s(sWb,2)}{NT}")
        if i < 15:
            A(f"v_add_u32 {v(vT2)}, {s(sT0)}, {v(vT2)}")
    ts("issK")
    if BAR0: A("s_barrier")
    for i in range(17):
        A(f"v_mov_b32 {v(vWIN+4*i)}, 0")
        A(f"v_mov_b32 {v(vWIN+4*i+1)}, 0")
    A(f"""
      s_mov_b32 {s(sT0)}, 0xffff
      s_mov_b32 {s(sT1)}, 0xffff0000
      v_and_b32 {v(vT4)}, 1, {v(vL)}
      v_cmp_eq_u32 vcc, 1, {v(vT4)}
      v_mov_b32 {v(vT5)}, {s(sT0)}
      v_mov_b32 {v(vT6)}, {s(sT1)}
      v_cndmask_b32 {v(vT5)}, {v(vT5)}, {v(vT6)}, vcc
      v_and_b32 {v(vT4)}, 2, {v(vL)}
      v_cmp_eq_u32 vcc, 0, {v(vT4)}
      s_nop 1
      v_cndmask_b32 {v(vM0)}, 0, {v(vT5)}, vcc
      v_cmp_ne_u32 vcc, 0, {v(vT4)}
      s_nop 1
      v_cndmask_b32 {v(vM1)}, 0, {v(vT5)}, vcc
    """)
    A(f"""
      s_lshl_b32 {s(sT0)}, {s(sROLE)}, 10
      v_and_b32 {v(vAX)}, 3, {v(vL)}
      v_lshlrev_b32 {v(vAX)}, 7, {v(vAX)}
      v_lshrrev_b32 {v(vT4)}, 2, {v(vL)}
      v_lshl_add_u32 {v(vAX)}, {v(vT4)}, 2, {v(vAX)}
      v_add_u32 {v(vAX)}, {s(sT0)}, {v(vAX)}
      v_bfe_u32 {v(vAX+1)}, {v(vL)}, 2, 1
      v_lshlrev_b32 {v(vAX+1)}, 9, {v(vAX+1)}
      v_lshl_add_u32 {v(vAX+1)}, {v(vGq)}, 7, {v(vAX+1)}
      v_bfe_u32 {v(vT4)}, {v(vL)}, 3, 1
      v_lshl_add_u32 {v(vAX+1)}, {v(vT4)}, 6, {v(vAX+1)}
      v_add_u32 {v(vAX+1)}, {s(sT0)}, {v(vAX+1)}
      v_lshlrev_b32 {v(vAX+2)}, 8, {v(vGq)}
      v_and_b32 {v(vT4)}, 7, {v(vL)}
      v_lshl_add_u32 {v(vAX+2)}, {v(vT4)}, 5, {v(vAX+2)}
      v_add_u32 {v(vAX+2)}, {s(sT0)}, {v(vAX+2)}
    """)
    A(f"""
      s_cmp_eq_u32 {s(sROLE)}, 0
      s_cbranch_scc0 Laux_g1
      v_and_b32 {v(vT5)}, 31, {v(vL)}
      v_lshrrev_b32 {v(vT6)}, 5, {v(vL)}
      v_lshlrev_b32 {v(vAX+3)}, 3, {v(vT5)}
      v_lshl_add_u32 {v(vAX+3)}, {v(vT6)}, 8, {v(vAX+3)}
      s_lshl_b32 {s(sT1)}, {s(sKVH)}, 15
      s_lshl_b32 {s(sT2)}, {s(sKS)}, 12
      s_add_u32 {s(sT1)}, {s(sT1)}, {s(sT2)}
      s_lshr_b32 {s(sT2)}, {s(sA)}, 2
      s_lshl_b32 {s(sT2)}, {s(sT2)}, 9
      s_add_u32 {s(sT1)}, {s(sT1)}, {s(sT2)}
      s_add_u32 {s(sT1)}, {s(sT1)}, {WS_QG}
      v_lshlrev_b32 {v(vT6)}, 14, {v(vT6)}
      v_lshl_add_u32 {v(vT5)}, {v(vT5)}, 4, {v(vT6)}
      v_add_u32 {v(vAX+4)}, {s(sT1)}, {v(vT5)}
      s_branch Laux_g2
    """)
    A("Laux_g1:")
    A(f"""
      v_lshrrev_b32 {v(vT5)}, 3, {v(vL)}
      v_and_b32 {v(vT6)}, 3, {v(vL)}
      v_lshl_add_u32 {v(vAX+3)}, {v(vT5)}, 2, {v(vT6)}
      v_lshlrev_b32 {v(vAX+3)}, 3, {v(vAX+3)}
      v_bfe_u32 {v(vT6)}, {v(vL)}, 2, 1
      v_lshl_add_u32 {v(vAX+3)}, {v(vT6)}, 8, {v(vAX+3)}
      v_add_u32 {v(vAX+3)}, 1024, {v(vAX+3)}
      s_lshl_b32 {s(sT1)}, {s(sTILE)}, 13
      s_lshl_b32 {s(sT2)}, {s(sTILE+1)}, 2
      s_add_u32 {s(sT2)}, {s(sT2)}, {s(sKS)}
      s_lshl_b32 {s(sT2)}, {s(sT2)}, 7
      s_add_u32 {s(sT1)}, {s(sT1)}, {s(sT2)}
      s_add_u32 {s(sT1)}, {s(sT1)}, {WS_GG}
      v_lshlrev_b32 {v(vT5)}, 10, {v(vT5)}
      v_and_b32 {v(vT6)}, 7, {v(vL)}
      v_lshl_add_u32 {v(vT5)}, {v(vT6)}, 4, {v(vT5)}
      v_add_u32 {v(vAX+4)}, {s(sT1)}, {v(vT5)}
    """)
    A("Laux_g2:")
    A("s_waitcnt vmcnt(16)")
    ts("issV")
    A(f"v_readfirstlane_b32 {s(sTAG)}, {v(vEP)}")
    for k in range(4):
        A(f"v_lshlrev_b32 {v(vP+4*k)}, 16, {v(vU+k)}")
        A(f"v_lshlrev_b32 {v(vP+4*k+1)}, 16, {v(vU+4+k)}")
        A(f"v_and_b32 {v(vP+4*k+2)}, 0xffff0000, {v(vU+k)}")
        A(f"v_and_b32 {v(vP+4*k+3)}, 0xffff0000, {v(vU+4+k)}")
    A(f"s_add_u32 {s(sTAG)}, {s(sTAG)}, 0x{TAG_DELTA:x}")
    def allreduce2(r0, r1, t0, t1, op="v_add_f32"):
        for sh in (8, 4, 2, 1):
            A.nop(1)
            A(f"{op}_dpp {v(r0)}, {v(r0)}, {v(r0)} row_ror:{sh} row_mask:0xf bank_mask:0xf")
            A(f"{op}_dpp {v(r1)}, {v(r1)}, {v(r1)} row_ror:{sh} row_mask:0xf bank_mask:0xf")
        for sw in ("v_permlane16_swap_b32", "v_permlane32_swap_b32"):
            A(f"v_mov_b32 {v(t0)}, {v(r0)}")
            A(f"v_mov_b32 {v(t1)}, {v(r1)}")
            A.nop(1)
            A(f"{sw} {v(r0)}, {v(t0)}")
            A(f"{sw} {v(r1)}, {v(t1)}")
            A(f"{op} {v(r0)}, {v(r0)}, {v(t0)}")
            A(f"{op} {v(r1)}, {v(r1)}, {v(t1)}")
    A(f"v_pk_add_f32 {v(vT0,2)}, {v(vP,2)}, {v(vP+2,2)}")
    A(f"v_pk_add_f32 {v(vT2,2)}, {v(vP+4,2)}, {v(vP+6,2)}")
    A(f"v_pk_add_f32 {v(vT4,2)}, {v(vP+8,2)}, {v(vP+10,2)}")
    A(f"v_pk_add_f32 {v(vU,2)}, {v(vP+12,2)}, {v(vP+14,2)}")
    A(f"v_pk_add_f32 {v(vT0,2)}, {v(vT0,2)}, {v(vT2,2)}")
    A(f"v_pk_add_f32 {v(vT4,2)}, {v(vT4,2)}, {v(vU,2)}")
    A(f"v_pk_add_f32 {v(vT0,2)}, {v(vT0,2)}, {v(vT4,2)}")
    A.nop(1)
    allreduce2(vT0, vT0+1, vT2, vT3)
    A(f"v_mul_f32 {v(vT0)}, 0x3b000000, {v(vT0)}")
    A(f"v_mul_f32 {v(vT0+1)}, 0x3b000000, {v(vT0+1)}")
    for i in range(8):
        A(f"v_pk_add_f32 {v(vP+2*i,2)}, {v(vP+2*i,2)}, {v(vT0,2)} neg_lo:[0,1] neg_hi:[0,1]")
    A(f"v_pk_mul_f32 {v(vT2,2)}, {v(vP,2)}, {v(vP,2)}")
    A(f"v_pk_mul_f32 {v(vT4,2)}, {v(vP+2,2)}, {v(vP+2,2)}")
    for i in range(2, 8):
        acc = vT2 if i % 2 == 0 else vT4
        A(f"v_pk_fma_f32 {v(acc,2)}, {v(vP+2*i,2)}, {v(vP+2*i,2)}, {v(acc,2)}")
    A(f"v_pk_add_f32 {v(vT2,2)}, {v(vT2,2)}, {v(vT4,2)}")
    A(f"v_lshlrev_b32 {v(vP)}, 16, {v(vXS)}")
    A(f"v_lshlrev_b32 {v(vP+1)}, 16, {v(vXS+1)}")
    A(f"v_and_b32 {v(vP+2)}, 0xffff0000, {v(vXS)}")
    A(f"v_and_b32 {v(vP+3)}, 0xffff0000, {v(vXS+1)}")
    allreduce2(vT2, vT3, vT4, vT5)
    A(f"v_mul_f32 {v(vT2)}, 0x3b000000, {v(vT2)}")
    A(f"v_mul_f32 {v(vT3)}, 0x3b000000, {v(vT3)}")
    rnd_pair(vT0, vT6)
    rnd_pair(vT2, vT6)
    A(f"v_add_f32 {v(vT2)}, 0x3727c5ac, {v(vT2)}")
    A(f"v_add_f32 {v(vT3)}, 0x3727c5ac, {v(vT3)}")
    A(f"v_pk_add_f32 {v(vP,2)}, {v(vP,2)}, {v(vT0,2)} neg_lo:[0,1] neg_hi:[0,1]")
    A(f"v_pk_add_f32 {v(vP+2,2)}, {v(vP+2,2)}, {v(vT0,2)} neg_lo:[0,1] neg_hi:[0,1]")
    rnd_pair(vT2, vT6)
    A(f"v_sqrt_f32 {v(vT2)}, {v(vT2)}")
    A(f"v_sqrt_f32 {v(vT3)}, {v(vT3)}")
    rnd_pair(vP, vT6)
    rnd_pair(vP+2, vT6)
    rnd_pair(vT2, vT6)
    A(f"v_rcp_f32 {v(vT2)}, {v(vT2)}")
    A(f"v_rcp_f32 {v(vT3)}, {v(vT3)}")
    A.nop(1)
    A(f"v_pk_mul_f32 {v(vP,2)}, {v(vP,2)}, {v(vT2,2)}")
    A(f"v_pk_mul_f32 {v(vP+2,2)}, {v(vP+2,2)}, {v(vT2,2)}")
    for k in range(4):
        A(f"v_cvt_pk_bf16_f32 {v(vP+k)}, {v(vP+k)}, {v(vP+k)}")
    A(f"""
      ds_write_b32 {v(vAX)}, {v(vP)} offset:{L_XB}
      ds_write_b32 {v(vAX)}, {v(vP+1)} offset:{L_XB+512}
      ds_write_b32 {v(vAX)}, {v(vP+2)} offset:{L_XB+64}
      ds_write_b32 {v(vAX)}, {v(vP+3)} offset:{L_XB+512+64}
    """)
    for k in range(4):
        A(f"ds_read_b128 {v(vS+4*k,4)}, {v(vAX+1)} offset:{L_XB + 16*k}")
    ts("issW")
    for k in range(4):
        A(f"s_waitcnt lgkmcnt({3-k})")
        for j in range(4):
            i = 4*k + j
            A(f"v_and_b32 {v(vWIN+4*i+2)}, {v(vS+i)}, {v(vM0)}")
            A(f"v_and_b32 {v(vWIN+4*i+3)}, {v(vS+i)}, {v(vM1)}")
    A(f"v_mov_b32 {v(vU+1)}, {s(sTAG)}")
    A(f"v_mov_b32 {v(vU+3)}, {s(sTAG)}")
    for i in range(16):
        A(f"s_waitcnt vmcnt({15 - i})")
        c0 = "0" if i == 0 else v(vDL,4)
        c1 = "0" if i == 0 else v(vDH,4)
        A(f"v_mfma_f32_16x16x32_bf16 {v(vDL,4)}, {v(vWIN+4*i+2,4)}, {v(vK+4*i,4)}, {c0}")
        A(f"v_mfma_f32_16x16x32_bf16 {v(vDH,4)}, {v(vWIN+4*i,4)}, {v(vK+4*i,4)}, {c1}")
    ts("Kdone")
    A(f"""
      s_mov_b32 exec_lo, 0x00ff00ff
      s_mov_b32 exec_hi, 0xff00ff00
    """)
    A.nop(6)
    A(f"""
      ds_write_b128 {v(vAX+2)}, {v(vDL,4)} offset:{L_TR}
      ds_write_b128 {v(vAX+2)}, {v(vDH,4)} offset:{L_TR+16}
      s_mov_b64 exec, -1
      ds_read_b64 {v(vT0,2)}, {v(vAX+3)} offset:{L_TR}
      ds_read_b64 {v(vT2,2)}, {v(vAX+3)} offset:{L_TR+512}
      s_waitcnt lgkmcnt(0)
      v_add_f32 {v(vU)}, {v(vT0)}, {v(vT2)}
      v_add_f32 {v(vU+2)}, {v(vT0+1)}, {v(vT3)}
      global_store_dwordx4 {v(vAX+4)}, {v(vU,4)}, {s(sWS,2)} sc1
      s_cmp_lg_u32 {s(sROLE)}, 0
      s_cbranch_scc1 Laux_h
      s_lshl_b32 {s(sT0)}, {s(sKVH)}, 8
      s_lshl_b32 {s(sT1)}, {s(sA)}, 3
      s_add_u32 {s(sT0)}, {s(sT0)}, {s(sT1)}
      s_add_u32 {s(sT0)}, {s(sT0)}, {WS_XG}
      v_mov_b32 {v(vT0)}, {s(sT0)}
      v_mov_b32 {v(vT2)}, {s(sXCC)}
      v_mov_b32 {v(vT3)}, {s(sTAG)}
      s_mov_b64 exec, 1
      global_store_dwordx2 {v(vT0)}, {v(vT2,2)}, {s(sWS,2)} sc1
    """)
    ts("p_done")
    A("s_branch Lend")
    A("Laux_h:")
    ts("p_done")
    vGP = vU
    A(f"""
      s_lshl_b32 {s(sT0)}, s2, 10
      s_add_u32 {s(sT0)}, {s(sT0)}, {WS_GG}
      v_lshlrev_b32 {v(vT4)}, 4, {v(vL)}
      v_add_u32 {v(vAX+5)}, {s(sT0)}, {v(vT4)}
      s_barrier
    """)
    def issue_g():
        A(f"global_load_dwordx4 {v(vGP,4)}, {v(vAX+5)}, {s(sWS,2)} sc1")
    issue_g()
    A("s_barrier")
    poll_simple(issue_g, [vGP+1, vGP+3], "g", 0)
    for r in (vGP, vGP+2):
        A.nop(2)
        A(f"v_add_f32_dpp {v(r)}, {v(r)}, {v(r)} row_ror:8 row_mask:0xf bank_mask:0xf")
        A(f"v_mov_b32 {v(vT0)}, {v(r)}")
        A.nop(2)
        A(f"v_permlane16_swap_b32 {v(r)}, {v(vT0)}")
        A(f"v_add_f32 {v(r)}, {v(r)}, {v(vT0)}")
    for r, tt in ((vGP, vGP+1), (vGP+2, vGP+3)):
        A(f"v_mov_b32 {v(tt)}, {v(r)}")
        A.nop(2)
        A(f"v_permlane32_swap_b32 {v(r)}, {v(tt)}")
    A(f"""
      v_cvt_pk_bf16_f32 {v(vT6)}, {v(vGP)}, {v(vGP+2)}
      v_cvt_pk_bf16_f32 {v(vT7)}, {v(vGP+1)}, {v(vGP+3)}
      v_lshlrev_b32 {v(vS+8)}, 16, {v(vT6)}
      v_and_b32 {v(vS+9)}, 0xffff0000, {v(vT6)}
      v_lshlrev_b32 {v(vS+10)}, 16, {v(vT7)}
      v_and_b32 {v(vS+11)}, 0xffff0000, {v(vT7)}
      s_mov_b32 {s(sC0)}, 0xbfb8aa3b
      v_mul_f32 {v(vS+8)}, {s(sC0)}, {v(vS+8)}
      v_mul_f32 {v(vS+9)}, {s(sC0)}, {v(vS+9)}
      v_exp_f32 {v(vS+8)}, {v(vS+8)}
      v_exp_f32 {v(vS+9)}, {v(vS+9)}
      s_nop 0
      v_add_f32 {v(vS+8)}, 1.0, {v(vS+8)}
      v_add_f32 {v(vS+9)}, 1.0, {v(vS+9)}
      v_rcp_f32 {v(vS+8)}, {v(vS+8)}
      v_rcp_f32 {v(vS+9)}, {v(vS+9)}
      s_nop 0
      v_cvt_pk_bf16_f32 {v(vT6)}, {v(vS+8)}, {v(vS+9)}
      v_lshlrev_b32 {v(vS+8)}, 16, {v(vT6)}
      v_and_b32 {v(vS+9)}, 0xffff0000, {v(vT6)}
      v_pk_mul_f32 {v(vS+8,2)}, {v(vS+8,2)}, {v(vS+10,2)}
      v_cvt_pk_bf16_f32 {v(vS+12)}, {v(vS+8)}, {v(vS+8)}
      v_cvt_pk_bf16_f32 {v(vS+13)}, {v(vS+9)}, {v(vS+9)}
      v_bfe_u32 {v(vT4)}, {v(vL)}, 2, 1
      v_lshlrev_b32 {v(vT4)}, 6, {v(vT4)}
      v_and_b32 {v(vT5)}, 1, {v(vL)}
      v_lshl_add_u32 {v(vT4)}, {v(vT5)}, 5, {v(vT4)}
      v_bfe_u32 {v(vT5)}, {v(vL)}, 1, 1
      v_lshl_add_u32 {v(vT4)}, {v(vT5)}, 2, {v(vT4)}
      ds_write_b32 {v(vT4)}, {v(vS+12)} offset:{L_HV}
      ds_write_b32 {v(vT4)}, {v(vS+13)} offset:{L_HV+16}
      s_waitcnt lgkmcnt(0)
    """)
    ts("h_done")
    A("s_barrier")
    A("Lend:")
    if TS:
        ts("end")
        A("s_waitcnt lgkmcnt(0)")
        A(f"""
          s_mov_b64 exec, 1
          s_mul_i32 {s(sT0)}, s2, 6
          s_add_u32 {s(sT0)}, {s(sT0)}, {s(sWAVE)}
          s_lshl_b32 {s(sT0)}, {s(sT0)}, 7
          s_add_u32 {s(sT0)}, {s(sT0)}, {WS_TS}
          v_mov_b32 {v(vT4)}, {s(sT0)}
        """)
        for k in range(19):
            A(f"v_mov_b32 {v(vT5)}, {s(64+2*k)}")
            A(f"global_store_dword {v(vT4)}, {v(vT5)}, {s(sWS,2)} offset:{4*k}")
    A("Lexit:")
    A("s_endpgm")
    A("Lcode_end:")
    A(f".set CODE_CHUNKS, (Lcode_end-{NAME})/1024")
    hdr = f"""; fused decode kernel: layernorm -> {{windowed GQA attention + out proj}} + {{sigmoid GLU}} + residual
; @launch grid=(256,1,1) block=(384,1,1) lds={LDS_BYTES}
.amdgcn_target "amdgcn-amd-amdhsa--gfx950"
.text
.globl {NAME}
.p2align 8
.type {NAME},@function
{NAME}:
"""
    ftr = f"""
.section .rodata,"a"
.p2align 6
.amdhsa_kernel {NAME}
  .amdhsa_next_free_vgpr {NV}
  .amdhsa_next_free_sgpr 102
  .amdhsa_accum_offset {NV}
  .amdhsa_group_segment_fixed_size 0
  .amdhsa_kernarg_size 96
  .amdhsa_user_sgpr_count 2
  .amdhsa_user_sgpr_kernarg_segment_ptr 1
  .amdhsa_system_sgpr_workgroup_id_x 1
.end_amdhsa_kernel
"""
    return hdr + A.text() + ftr, (ts_map if TS else None)

if __name__ == "__main__":
    out = sys.argv[1]
    opt = {}
    for a in sys.argv[2:]:
        k, val = a.split("=")
        opt[k] = int(val)
    txt, slots = gen(opt)
    open(out, "w").write(txt)
    print("wrote", out, "ts slots:", slots)
```

```python
import sys

NAME = "parallel_sum__sliding_block_cached__glu_gated_glu__decode_kernel"
NWAVES = 7
NAWAVES = 4

class Asm:
    def __init__(self):
        self.lines = []
        self.uid = 0
    def __call__(self, s):
        for ln in s.strip("\n").split("\n"):
            t = ln.strip()
            if not t: continue
            self.lines.append(t if t.endswith(":") else "  " + t)
    def label(self, base):
        self.uid += 1
        return f"L{base}_{self.uid}"
    def nop(self, n):
        while n > 0:
            k = min(n, 16)
            self(f"s_nop {k-1}")
            n -= k
    def text(self):
        return "\n".join(self.lines) + "\n"

def v(i, n=1):
    return f"v{i}" if n == 1 else f"v[{i}:{i+n-1}]"
def s(i, n=1):
    return f"s{i}" if n == 1 else f"s[{i}:{i+n-1}]"

WS_EPOCH = 0
WS_XG = 0x8000
WS_SG = 0x10000
WS_QG = 0x40000
WS_GG = 0x80000
WS_OG = 0x100000
WS_RG = 0x200000
WS_FG = 0x300000
WS_TS = 0x800000
TAG_DELTA = 0x9E3779B9

L_XB = 0
L_TR = 2048
L_QB = 4096
L_MX = 5120
L_LS = 5184
L_HV = 5248
L_CT = 5440
L_OP = 6144
L_KL = 16384
L_VL = 81920
LDS_BYTES = 147456

def gen(opt):
    A = Asm()
    TS = opt.get("ts", 0)
    NT = " nt" if opt.get("nt", 1) else ""
    WIN = opt.get("win", 8)
    NTH = opt.get("nth", 17)
    QT = opt.get("qt", 8)
    WT = opt.get("wt", 8)
    WT2 = opt.get("wt2", 11)
    SPIN = opt.get("spin", 2000000)
    CPF = opt.get("cpf", 1)
    FASTOK = opt.get("fast", 1)
    D1 = opt.get("d1", 1)
    D2 = opt.get("d2", 1)
    PGS = opt.get("pgs", 4352)
    role = ["A"]
    ts_map = {"A": ["start"], "X": ["start"]}
    SKIP = set(opt.get("_skip", ["issK", "q_done", "h_done", "q_n", "st_n"] + (["h1_n", "h2_n", "h3_n", "issQ"] if opt.get("det") else ["s_issued", "preM", "barM", "preS"]) + ["issV"]))
    def slot(name):
        if name == "start": return 0
        if name == "end": return 18
        l = ts_map[role[0]]
        if name not in l: l.append(name)
        assert len(l) <= 18, l
        return l.index(name)
    def ts(name):
        if TS and not (role[0] == "A" and name in SKIP):
            A(f"s_memrealtime {s(64 + 2*slot(name), 2)}")

    sX, sK, sV, sWQ, sWO, sBX, sG, sU = 4, 6, 8, 10, 12, 14, 16, 18
    sWD, sOUT, sDBG, sWS = 20, 22, 24, 26
    sKVH, sA, sB, sTAG, sWAVE = 28, 29, 30, 31, 32
    sT0, sT1, sT2, sT3 = 33, 34, 35, 36
    sSPIN = 37
    sC0 = 38
    sEX = 40
    sXCC, sMODE = 42, 43
    sSRK = 44
    sSRV = 48
    sWb = 52
    sWDb = 54
    sSTR = 56
    sKS = 57
    sTILE = 58
    sROLE = 62
    sPROG = 63
    vL, vN, vGq = 1, 2, 3
    vT0, vT1, vT2, vT3, vT4, vT5, vT6, vT7 = 4, 5, 6, 7, 8, 9, 10, 11
    vM0, vM1 = 12, 13
    vMK = 14
    vEP = 18
    vXR = 18
    vOA = 20
    vD3 = 28
    vQ = 32
    vS = 48
    vK = 64
    vV = 128
    vWO = 192
    vP = 216
    vU = 232
    vAX = 240
    NV = 256
    vAq, vAg, vAx, vAw0, vAw1, vAw2 = vAX, vAX+4, vAX+5, vAX+6, vAX+7, vAX+8
    vAo, vAr0, vAr1, vAog, vAst, vApo, vApg = vAX+9, vAX+10, vAX+11, vAX+12, vAX+13, vAX+14, vAX+15
    vAr, vAf = vAX+4, vP+15
    vCT, vONE = vP+14, vP+13
    vAk = vV + 32
    vAv = vV + 36

    def xrow(r, t, op):
        for sw in ("v_permlane16_swap_b32", "v_permlane32_swap_b32"):
            A(f"v_mov_b32 {v(t)}, {v(r)}")
            A.nop(2)
            A(f"{sw} {v(r)}, {v(t)}")
            A(f"{op} {v(r)}, {v(r)}, {v(t)}")
    def rnd_pair(r, t):
        A(f"v_cvt_pk_bf16_f32 {v(t)}, {v(r)}, {v(r+1)}")
        A(f"v_lshlrev_b32 {v(r)}, 16, {v(t)}")
        A(f"v_and_b32 {v(r+1)}, 0xffff0000, {v(t)}")
    def check(regs):
        tmp = [vT6, vT7, vU+6]
        first = True
        i = 0
        regs = list(regs)
        A(f"v_xor_b32 {v(vT6)}, {s(sTAG)}, {v(regs[0])}")
        i = 1
        while i < len(regs):
            if i + 1 < len(regs):
                A(f"v_xor_b32 {v(vT7)}, {s(sTAG)}, {v(regs[i])}")
                A(f"v_xor_b32 {v(vU+6)}, {s(sTAG)}, {v(regs[i+1])}")
                A(f"v_or3_b32 {v(vT6)}, {v(vT6)}, {v(vT7)}, {v(vU+6)}")
                i += 2
            else:
                A(f"v_xor_b32 {v(vT7)}, {s(sTAG)}, {v(regs[i])}")
                A(f"v_or_b32 {v(vT6)}, {v(vT6)}, {v(vT7)}")
                i += 1
        A(f"v_cmp_ne_u32 vcc, 0, {v(vT6)}")
    def poll_simple(issue, tagregs, name, waitn):
        Lr = A.label(name + "_retry"); Lk = A.label(name + "_ok")
        if TS and name + "_n" not in SKIP and name != "g": A(f"s_mov_b32 {s(64+2*slot(name + '_n'))}, 0")
        A(f"s_waitcnt vmcnt({waitn})")
        check(tagregs)
        A(f"s_cbranch_vccz {Lk}")
        A(f"s_mov_b32 {s(sSPIN)}, {SPIN}")
        A(f"{Lr}:")
        A("s_mov_b64 exec, vcc")
        issue()
        A("s_waitcnt vmcnt(0)")
        check(tagregs)
        A(f"s_cbranch_vccz {Lk}_x")
        A(f"s_sub_u32 {s(sSPIN)}, {s(sSPIN)}, 1")
        A(f"s_cmp_lg_u32 {s(sSPIN)}, 0")
        A(f"s_cbranch_scc1 {Lr}")
        A(f"{Lk}_x:")
        A("s_mov_b64 exec, -1")
        if TS and name + "_n" not in SKIP and name != "g": A(f"s_sub_u32 {s(64+2*slot(name + '_n'))}, {SPIN+1}, {s(sSPIN)}")
        A(f"{Lk}:")
    def poll_pipe(issue, nld, tagregs, name, depth, primed, masked):
        Lr = A.label(name + "_loop"); Lk = A.label(name + "_ok"); Lf = A.label(name + "_first")
        A(f"s_mov_b32 {s(sSPIN)}, {SPIN}")
        if primed >= depth:
            A(f"s_branch {Lf}")
        else:
            for _ in range(depth - 1 - primed): issue()
        A(f"{Lr}:")
        issue()
        A(f"{Lf}:")
        A(f"s_waitcnt vmcnt({nld*(depth-1)})")
        check(tagregs)
        A(f"s_cbranch_vccz {Lk}")
        if masked: A("s_mov_b64 exec, vcc")
        A(f"s_sub_u32 {s(sSPIN)}, {s(sSPIN)}, 1")
        A(f"s_cmp_lg_u32 {s(sSPIN)}, 0")
        A(f"s_cbranch_scc1 {Lr}")
        A(f"{Lk}:")
        if masked: A("s_mov_b64 exec, -1")
        if TS and name + "_n" not in SKIP: A(f"s_sub_u32 {s(64+2*slot(name + '_n'))}, {SPIN}, {s(sSPIN)}")
    def lds_spin(off, dst, cmp_txt):
        Ll = A.label("sp"); Lx = A.label("spx")
        A(f"s_mov_b32 {s(sSPIN)}, {SPIN}")
        A(f"{Ll}:")
        A(f"ds_read_b32 {v(vT7)}, {v(vCT)} offset:{L_CT + off}")
        A(f"s_sub_u32 {s(sSPIN)}, {s(sSPIN)}, 1")
        A(f"s_cbranch_scc1 {Lx}")
        A("s_waitcnt lgkmcnt(0)")
        A(f"v_readfirstlane_b32 {s(dst)}, {v(vT7)}")
        A(cmp_txt)
        A(f"s_cbranch_scc1 {Ll}")
        A(f"{Lx}:")
        A("s_waitcnt lgkmcnt(0)")
    def wait_prog(target_txt):
        Ld = A.label("wpd")
        A(f"s_cmp_ge_u32 {s(sPROG)}, {target_txt}")
        A(f"s_cbranch_scc1 {Ld}")
        lds_spin(0, sPROG, f"s_cmp_lt_u32 {s(sPROG)}, {target_txt}")
        A(f"{Ld}:")
    def swbar(off, target):
        A("s_waitcnt lgkmcnt(0)")
        A("s_mov_b64 exec, 1")
        A(f"ds_add_u32 {v(vCT)}, {v(vONE)} offset:{L_CT + off}")
        A("s_mov_b64 exec, -1")
        lds_spin(off, sT3, f"s_cmp_lt_u32 {s(sT3)}, {target}")
    def store_mode(txt):
        if not FASTOK:
            A(txt + " sc1"); return
        La = A.label("sts"); Lb = A.label("ste")
        A(f"s_cmp_eq_u32 {s(sMODE)}, 0")
        A(f"s_cbranch_scc1 {La}")
        A(txt)
        A(f"s_branch {Lb}")
        A(f"{La}:")
        A(txt + " sc1")
        A(f"{Lb}:")

    A("s_cmp_ge_u32 s2, 256")
    A("s_cbranch_scc1 Lexit")
    A(f"s_load_dwordx16 {s(4,16)}, s[0:1], 0")
    A(f"s_load_dwordx8 {s(20,8)}, s[0:1], 64")
    ts("start")
    if CPF:
        A(f"""
          s_getpc_b64 {s(sC0,2)}
        Lpc:
          v_lshrrev_b32 {v(vT0)}, 6, v0
          s_bfe_u32 {s(sT0)}, s2, 0x10003
          s_mul_i32 {s(sT0)}, {s(sT0)}, 7
          v_add_u32 {v(vT0)}, {s(sT0)}, {v(vT0)}
          v_min_u32 {v(vT0)}, CODE_CHUNKS-1, {v(vT0)}
          v_lshlrev_b32 {v(vT0)}, 10, {v(vT0)}
          v_and_b32 {v(vT1)}, 63, v0
          v_lshl_add_u32 {v(vT0)}, {v(vT1)}, 4, {v(vT0)}
          s_sub_u32 {s(sC0)}, {s(sC0)}, Lpc-{NAME}
          s_subb_u32 {s(sC0+1)}, {s(sC0+1)}, 0
          global_load_dwordx4 {v(vWO+20,4)}, {v(vT0)}, {s(sC0,2)}
        """)
    A(f"""
      v_and_b32 {v(vL)}, 63, v0
      v_lshrrev_b32 {v(vT0)}, 6, v0
      v_and_b32 {v(vN)}, 15, v0
      v_bfe_u32 {v(vGq)}, v0, 4, 2
      v_readfirstlane_b32 {s(sWAVE)}, {v(vT0)}
      s_and_b32 {s(sKVH)}, s2, 7
      s_lshr_b32 {s(sA)}, s2, 3
      s_lshr_b32 {s(sB)}, {s(sA)}, 4
      s_getreg_b32 {s(sXCC)}, hwreg(HW_REG_XCC_ID)
      s_and_b32 {s(sXCC)}, {s(sXCC)}, 15
      v_mov_b32 {v(vT7)}, 0
      v_mov_b32 {v(vCT)}, 0
      v_mov_b32 {v(vONE)}, 1
      s_mov_b32 {s(sPROG)}, 0
      s_cmp_eq_u32 {s(sWAVE)}, 6
      s_cbranch_scc1 Lload
      s_cmp_ge_u32 {s(sWAVE)}, 4
      s_cbranch_scc1 Laux
    """)
    vQP = vQ
    vXP = vOA + 4
    def issue_q():
        for ks in range(4):
            A(f"global_load_dwordx4 {v(vQP+4*ks,4)}, {v(vAq+ks)}, {s(sWS,2)} sc1")
    def issue_x():
        A(f"global_load_dwordx2 {v(vXP,2)}, {v(vAx)}, {s(sWS,2)} sc1")
    def issue_qx():
        issue_q(); issue_x()
    A(f"""
      v_and_b32 {v(vT3)}, 3, {v(vN)}
      v_lshlrev_b32 {v(vT3)}, 10, {v(vT3)}
      v_lshrrev_b32 {v(vT4)}, 2, {v(vN)}
      v_lshl_add_u32 {v(vT3)}, {v(vT4)}, 8, {v(vT3)}
      s_lshl_b32 {s(sT0)}, {s(sWAVE)}, 12
      s_add_u32 {s(sT1)}, {s(sT0)}, {L_KL}
      v_add_u32 {v(vT3)}, {s(sT1)}, {v(vT3)}
      v_xor_b32 {v(vT4)}, {v(vGq)}, {v(vN)}
    """)
    for jj in range(4):
        A(f"v_xor_b32 {v(vT5)}, {4*jj}, {v(vT4)}")
        A(f"v_lshl_add_u32 {v(vAk+jj)}, {v(vT5)}, 4, {v(vT3)}")
    A(f"""
      s_add_u32 {s(sT1)}, {s(sT0)}, {L_VL}
      v_lshlrev_b32 {v(vAv)}, 4, {v(vL)}
      v_add_u32 {v(vAv)}, {s(sT1)}, {v(vAv)}
      s_waitcnt lgkmcnt(0)
      global_load_dword {v(vEP)}, {v(vT7)}, {s(sWS,2)} sc1
    """)
    A(f"""
      s_lshl_b32 {s(sT0)}, {s(sKVH)}, 19
      s_lshl_b32 {s(sT1)}, {s(sA)}, 14
      s_add_u32 {s(sT0)}, {s(sT0)}, {s(sT1)}
      s_lshl_b32 {s(sT1)}, {s(sWAVE)}, 8
      s_add_u32 {s(sT0)}, {s(sT0)}, {s(sT1)}
      s_add_u32 {s(sWb)}, {s(sWO)}, {s(sT0)}
      s_addc_u32 {s(sWb+1)}, {s(sWO+1)}, 0
      s_cmp_lt_u32 s2, 224
      s_cselect_b32 {s(sT0)}, s2, 0
      s_lshl_b32 {s(sT0)}, {s(sT0)}, 13
      s_add_u32 {s(sT0)}, {s(sT0)}, {s(sT1)}
      s_add_u32 {s(sWDb)}, {s(sWD)}, {s(sT0)}
      s_addc_u32 {s(sWDb+1)}, {s(sWD+1)}, 0
      v_lshlrev_b32 {v(vAw0)}, 10, {v(vGq)}
      v_lshl_add_u32 {v(vAw0)}, {v(vN)}, 4, {v(vAw0)}
      v_add_u32 {v(vAw1)}, 0x1000, {v(vAw0)}
      s_lshl_b32 {s(sT0)}, {s(sKVH)}, 1
      s_add_u32 {s(sT0)}, {s(sT0)}, {s(sB)}
      s_lshl_b32 {s(sT0)}, {s(sT0)}, 14
      s_lshl_b32 {s(sT1)}, {s(sWAVE)}, 10
      s_add_u32 {s(sT0)}, {s(sT0)}, {s(sT1)}
      s_add_u32 {s(sT0)}, {s(sT0)}, {WS_QG}
      v_lshlrev_b32 {v(vT4)}, 4, {v(vL)}
      v_add_u32 {v(vAq)}, {s(sT0)}, {v(vT4)}
      v_add_u32 {v(vAq+1)}, 0x1000, {v(vAq)}
      v_add_u32 {v(vAq+2)}, 0x2000, {v(vAq)}
      v_add_u32 {v(vAq+3)}, 0x3000, {v(vAq)}
      s_lshl_b32 {s(sT0)}, {s(sKVH)}, 8
      s_add_u32 {s(sT0)}, {s(sT0)}, {WS_XG}
      v_and_b32 {v(vT4)}, 31, {v(vL)}
      v_lshlrev_b32 {v(vT4)}, 3, {v(vT4)}
      v_add_u32 {v(vAx)}, {s(sT0)}, {v(vT4)}
      s_mov_b32 {s(sT0)}, 0xffff
      s_mov_b32 {s(sT1)}, 0xffff0000
      v_and_b32 {v(vT4)}, 1, {v(vL)}
      v_cmp_eq_u32 vcc, 1, {v(vT4)}
      v_mov_b32 {v(vT5)}, {s(sT0)}
      v_mov_b32 {v(vT6)}, {s(sT1)}
      v_cndmask_b32 {v(vT5)}, {v(vT5)}, {v(vT6)}, vcc
      v_and_b32 {v(vT4)}, 2, {v(vL)}
      v_cmp_eq_u32 vcc, 0, {v(vT4)}
      s_nop 1
      v_cndmask_b32 {v(vM0)}, 0, {v(vT5)}, vcc
      v_cmp_ne_u32 vcc, 0, {v(vT4)}
      s_nop 1
      v_cndmask_b32 {v(vM1)}, 0, {v(vT5)}, vcc
      v_bfe_u32 {v(vT4)}, {v(vL)}, 1, 2
    """)
    for i in range(4):
        A(f"v_cmp_eq_u32 vcc, {i}, {v(vT4)}")
        A("s_nop 1")
        A(f"v_cndmask_b32 {v(vMK+i)}, 0, {v(vT5)}, vcc")
    A(f"""
      s_lshl_b32 {s(sT0)}, {s(sWAVE)}, 11
      s_add_u32 {s(sT0)}, {s(sT0)}, {L_OP}
      v_lshlrev_b32 {v(vAo)}, 9, {v(vGq)}
      v_lshl_add_u32 {v(vAo)}, {v(vN)}, 5, {v(vAo)}
      v_add_u32 {v(vAo)}, {s(sT0)}, {v(vAo)}
      v_lshrrev_b32 {v(vT4)}, 3, {v(vL)}
      v_lshlrev_b32 {v(vT4)}, 4, {v(vT4)}
      v_and_b32 {v(vT5)}, 1, {v(vL)}
      v_lshl_add_u32 {v(vT4)}, {v(vT5)}, 3, {v(vT4)}
      v_bfe_u32 {v(vT5)}, {v(vL)}, 1, 2
      v_add_u32 {v(vT4)}, {v(vT4)}, {v(vT5)}
      v_lshlrev_b32 {v(vT4)}, 2, {v(vT4)}
      s_lshl_b32 {s(sT0)}, {s(sWAVE)}, 9
      s_add_u32 {s(sT0)}, {s(sT0)}, {L_OP}
      v_add_u32 {v(vAr0)}, {s(sT0)}, {v(vT4)}
      v_add_u32 {v(vAr1)}, 16, {v(vAr0)}
      s_lshl_b32 {s(sT0)}, {s(sKVH)}, 16
      s_lshl_b32 {s(sT1)}, {s(sWAVE)}, 14
      s_add_u32 {s(sT0)}, {s(sT0)}, {s(sT1)}
      s_lshl_b32 {s(sT1)}, {s(sA)}, 6
      s_add_u32 {s(sT0)}, {s(sT0)}, {s(sT1)}
      s_add_u32 {s(sT0)}, {s(sT0)}, {WS_OG}
      v_lshrrev_b32 {v(vT4)}, 3, {v(vL)}
      v_lshlrev_b32 {v(vT4)}, 11, {v(vT4)}
      v_and_b32 {v(vT5)}, 7, {v(vL)}
      v_lshl_add_u32 {v(vT4)}, {v(vT5)}, 3, {v(vT4)}
      v_add_u32 {v(vAog)}, {s(sT0)}, {v(vT4)}
      s_lshl_b32 {s(sT0)}, {s(sKVH)}, 2
      s_lshr_b32 {s(sT1)}, {s(sA)}, 3
      s_add_u32 {s(sT0)}, {s(sT0)}, {s(sT1)}
      s_lshl_b32 {s(sT0)}, {s(sT0)}, 9
      s_add_u32 {s(sT0)}, {s(sT0)}, {WS_SG}
      v_bfe_u32 {v(vT4)}, {v(vL)}, 3, 1
      v_lshlrev_b32 {v(vAst)}, 8, {v(vT4)}
      v_lshl_add_u32 {v(vAst)}, {v(vT5)}, 4, {v(vAst)}
      v_add_u32 {v(vAst)}, {s(sT0)}, {v(vAst)}
      s_lshl_b32 {s(sT0)}, {s(sKVH)}, 5
      s_add_u32 {s(sT0)}, {s(sT0)}, {s(sA)}
      s_lshl_b32 {s(sT0)}, {s(sT0)}, 11
      s_add_u32 {s(sT0)}, {s(sT0)}, {WS_OG}
      v_lshlrev_b32 {v(vApo)}, 10, {v(vT4)}
      v_lshl_add_u32 {v(vApo)}, {v(vT5)}, 6, {v(vApo)}
      v_lshl_add_u32 {v(vApo)}, {v(vGq)}, 4, {v(vApo)}
      v_add_u32 {v(vApo)}, {s(sT0)}, {v(vApo)}
      s_lshl_b32 {s(sT0)}, {s(sKVH)}, 17
      s_lshl_b32 {s(sT1)}, {s(sWAVE)}, 14
      s_add_u32 {s(sT0)}, {s(sT0)}, {s(sT1)}
      s_lshl_b32 {s(sT1)}, {s(sA)}, 7
      s_add_u32 {s(sT0)}, {s(sT0)}, {s(sT1)}
      s_add_u32 {s(sT0)}, {s(sT0)}, {WS_RG}
      v_lshrrev_b32 {v(vT4)}, 1, {v(vGq)}
      v_lshlrev_b32 {v(vT4)}, 16, {v(vT4)}
      v_lshrrev_b32 {v(vT5)}, 2, {v(vN)}
      v_lshl_add_u32 {v(vT4)}, {v(vT5)}, 12, {v(vT4)}
      v_and_b32 {v(vT5)}, 3, {v(vN)}
      v_lshl_add_u32 {v(vT4)}, {v(vT5)}, 5, {v(vT4)}
      v_and_b32 {v(vT5)}, 1, {v(vGq)}
      v_lshl_add_u32 {v(vT4)}, {v(vT5)}, 4, {v(vT4)}
      v_add_u32 {v(vApg)}, {s(sT0)}, {v(vT4)}
      s_lshl_b32 {s(sT0)}, {s(sKVH)}, 5
      s_add_u32 {s(sT0)}, {s(sT0)}, {s(sA)}
      s_lshl_b32 {s(sT0)}, {s(sT0)}, 12
      s_lshl_b32 {s(sT1)}, {s(sWAVE)}, 5
      s_add_u32 {s(sT0)}, {s(sT0)}, {s(sT1)}
      s_add_u32 {s(sT0)}, {s(sT0)}, {WS_RG}
      v_lshrrev_b32 {v(vAr)}, 1, {v(vL)}
      v_lshlrev_b32 {v(vAr)}, 7, {v(vAr)}
      v_and_b32 {v(vT0)}, 1, {v(vL)}
      v_lshl_add_u32 {v(vAr)}, {v(vT0)}, 4, {v(vAr)}
      v_add_u32 {v(vAr)}, {s(sT0)}, {v(vAr)}
      s_lshl_b32 {s(sT0)}, {s(sA)}, 11
      s_lshl_b32 {s(sT1)}, {s(sKVH)}, 8
      s_add_u32 {s(sT0)}, {s(sT0)}, {s(sT1)}
      s_lshl_b32 {s(sT1)}, {s(sWAVE)}, 6
      s_add_u32 {s(sT0)}, {s(sT0)}, {s(sT1)}
      s_add_u32 {s(sT0)}, {s(sT0)}, {WS_FG}
      v_lshlrev_b32 {v(vAf)}, 5, {v(vT0)}
      v_lshl_add_u32 {v(vAf)}, {v(vGq)}, 3, {v(vAf)}
      v_add_u32 {v(vAf)}, {s(sT0)}, {v(vAf)}
      v_mov_b32 {v(vD3)}, 0
      v_mov_b32 {v(vD3+1)}, 0
      v_mov_b32 {v(vD3+2)}, 0
      v_mov_b32 {v(vD3+3)}, 0
    """)
    A("s_barrier")
    A(f"""
      s_waitcnt vmcnt(0)
      v_readfirstlane_b32 {s(sTAG)}, {v(vEP)}
      s_add_u32 {s(sTAG)}, {s(sTAG)}, 0x{TAG_DELTA:x}
    """)
    wait_prog(QT)
    ts("issQ")
    issue_qx()
    poll_simple(issue_qx, [vQP+4*i+k for i in range(4) for k in (1, 3)] + [vXP+1], "q", 0)
    ts("q_done")
    A(f"""
      v_add_f32 {v(vQP)}, {v(vQP)}, {v(vQP+4)}
      v_add_f32 {v(vQP+2)}, {v(vQP+2)}, {v(vQP+6)}
      v_add_f32 {v(vQP+8)}, {v(vQP+8)}, {v(vQP+12)}
      v_add_f32 {v(vQP+10)}, {v(vQP+10)}, {v(vQP+14)}
      v_add_f32 {v(vQP)}, {v(vQP)}, {v(vQP+8)}
      v_add_f32 {v(vQP+2)}, {v(vQP+2)}, {v(vQP+10)}
      v_cvt_pk_bf16_f32 {v(vQP)}, {v(vQP)}, {v(vQP+2)}
      v_lshlrev_b32 {v(vT4)}, 2, v0
      ds_write_b32 {v(vT4)}, {v(vQP)} offset:{L_QB}
      v_lshrrev_b32 {v(vT4)}, 2, {v(vN)}
      v_lshlrev_b32 {v(vT4)}, 8, {v(vT4)}
      v_lshl_add_u32 {v(vT4)}, {v(vGq)}, 4, {v(vT4)}
      v_cmp_ne_u32 vcc, {s(sXCC)}, {v(vXP)}
      s_cmp_eq_u64 vcc, 0
      s_cselect_b32 {s(sMODE)}, 1, 0
    """)
    swbar(4, 4)
    ts("barX")
    for jj in range(4):
        A(f"ds_read_b128 {v(vQ+4*jj,4)}, {v(vT4)} offset:{L_QB + 64*jj}")
    wait_prog(16)
    ts("k_land")
    for jj in range(4):
        for t in range(4):
            A(f"ds_read_b128 {v(vK+16*t+4*jj,4)}, {v(vAk+jj)} offset:{16384*t}")
    for jj in range(4):
        A(f"s_waitcnt lgkmcnt({12 - 4*jj})")
        for t in range(4):
            c = "0" if jj == 0 else v(vS+4*t,4)
            A(f"v_mfma_f32_16x16x32_bf16 {v(vS+4*t,4)}, {v(vK+16*t+4*jj,4)}, {v(vQ+4*jj,4)}, {c}")
    ts("s_issued")
    A(f"s_mov_b32 {s(sC0)}, 0x3db504f3")
    A(f"s_mov_b32 {s(sC0+1)}, 0x3db504f3")
    A.nop(6)
    for i in range(8):
        r = vS + 2*i
        t = vU + (i & 3)
        A(f"v_cvt_pk_bf16_f32 {v(t)}, {v(r)}, {v(r+1)}")
        A(f"v_lshlrev_b32 {v(r)}, 16, {v(t)}")
        A(f"v_and_b32 {v(r+1)}, 0xffff0000, {v(t)}")
        A(f"v_pk_mul_f32 {v(r,2)}, {v(r,2)}, {s(sC0,2)}")
        A(f"v_cvt_pk_bf16_f32 {v(t)}, {v(r)}, {v(r+1)}")
        A(f"v_lshlrev_b32 {v(r)}, 16, {v(t)}")
        A(f"v_and_b32 {v(r+1)}, 0xffff0000, {v(t)}")
    A(f"v_max3_f32 {v(vT0)}, {v(vS)}, {v(vS+1)}, {v(vS+2)}")
    for i in range(3, 15, 2):
        A(f"v_max3_f32 {v(vT0)}, {v(vT0)}, {v(vS+i)}, {v(vS+i+1)}")
    A(f"v_max_f32 {v(vT0)}, {v(vT0)}, {v(vS+15)}")
    xrow(vT0, vT1, "v_max_f32")
    A(f"""
      v_lshrrev_b32 {v(vT2)}, 2, {v(vN)}
      v_lshlrev_b32 {v(vT2)}, 4, {v(vT2)}
      s_lshl_b32 {s(sT0)}, {s(sWAVE)}, 2
      v_add_u32 {v(vT3)}, {s(sT0)}, {v(vT2)}
      ds_write_b32 {v(vT3)}, {v(vT0)} offset:{L_MX}
    """)
    ts("preM")
    swbar(8, 4)
    ts("barM")
    A(f"""
      ds_read_b128 {v(vU,4)}, {v(vT2)} offset:{L_MX}
      s_mov_b32 {s(sC0)}, 0x3fb8aa3b
      s_waitcnt lgkmcnt(0)
      v_max3_f32 {v(vT0)}, {v(vU)}, {v(vU+1)}, {v(vU+2)}
      v_max_f32 {v(vT0)}, {v(vT0)}, {v(vU+3)}
      v_mul_f32 {v(vT0)}, {s(sC0)}, {v(vT0)}
    """)
    for i in range(16):
        A(f"v_fma_f32 {v(vS+i)}, {v(vS+i)}, {s(sC0)}, -{v(vT0)}")
    for i in range(16):
        A(f"v_exp_f32 {v(vS+i)}, {v(vS+i)}")
    A.nop(1)
    for i in range(8):
        A(f"v_add_f32 {v(vU + (i & 7))}, {v(vS+2*i)}, {v(vS+2*i+1)}")
    for i in range(4):
        A(f"v_add_f32 {v(vU+i)}, {v(vU+i)}, {v(vU+4+i)}")
    A(f"v_add_f32 {v(vU)}, {v(vU)}, {v(vU+2)}")
    A(f"v_add_f32 {v(vU+1)}, {v(vU+1)}, {v(vU+3)}")
    A(f"v_add_f32 {v(vT1)}, {v(vU)}, {v(vU+1)}")
    xrow(vT1, vT4, "v_add_f32")
    A(f"ds_write_b32 {v(vT3)}, {v(vT1)} offset:{L_LS}")
    for i in range(16):
        A(f"v_cvt_pk_bf16_f32 {v(vS+i)}, {v(vS+i)}, {v(vS+i)}")
    for i in range(16):
        A(f"v_and_b32 {v(vK+2*i)}, {v(vS+i)}, {v(vM0)}")
        A(f"v_and_b32 {v(vK+2*i+1)}, {v(vS+i)}, {v(vM1)}")
    ts("preS")
    swbar(12, 4)
    A(f"""
      s_lshl_b32 {s(sT0)}, {s(sWAVE)}, 4
      v_mov_b32 {v(vT6)}, {s(sT0)}
      ds_read_b128 {v(vP+4,4)}, {v(vT6)} offset:{L_LS}
      s_lshl_b32 {s(sT0)}, {s(sKVH)}, 2
      s_add_u32 {s(sT0)}, {s(sT0)}, {s(sWAVE)}
      s_lshl_b32 {s(sT0)}, {s(sT0)}, 9
      s_lshl_b32 {s(sT1)}, {s(sA)}, 4
      s_add_u32 {s(sT0)}, {s(sT0)}, {s(sT1)}
      s_add_u32 {s(sT0)}, {s(sT0)}, {WS_SG}
      v_mov_b32 {v(vT5)}, {s(sT0)}
      ds_read_b128 {v(vP+8,4)}, {v(vT6)} offset:{L_MX}
      s_waitcnt lgkmcnt(0)
      v_add_f32 {v(vP+4)}, {v(vP+4)}, {v(vP+5)}
      v_add_f32 {v(vP+6)}, {v(vP+6)}, {v(vP+7)}
      v_add_f32 {v(vP+6)}, {v(vP+4)}, {v(vP+6)}
      v_max3_f32 {v(vP+4)}, {v(vP+8)}, {v(vP+9)}, {v(vP+10)}
      v_max_f32 {v(vP+4)}, {v(vP+4)}, {v(vP+11)}
      v_mul_f32 {v(vP+4)}, {s(sC0)}, {v(vP+4)}
      v_mov_b32 {v(vP+5)}, {s(sTAG)}
      v_mov_b32 {v(vP+7)}, {s(sTAG)}
      s_mov_b64 exec, 1
    """)
    store_mode(f"global_store_dwordx4 {v(vT5)}, {v(vP+4,4)}, {s(sWS,2)}")
    A("s_mov_b64 exec, -1")
    ts("p_done")
    vST = vS + 8
    def issue_st():
        A(f"global_load_dwordx4 {v(vST,4)}, {v(vAst)}, {s(sWS,2)} sc1")
        A(f"global_load_dwordx4 {v(vST+4,4)}, {v(vAst)}, {s(sWS,2)} offset:128 sc1")
    issue_st()
    A(f"global_load_dwordx4 {v(vWO+16,4)}, {v(vAw0)}, {s(sWDb,2)}{NT}")
    A(f"global_load_dwordx4 {v(vWO+20,4)}, {v(vAw1)}, {s(sWDb,2)}{NT}")
    A(f"global_load_dwordx4 {v(vWO,4)}, {v(vAw0)}, {s(sWb,2)}{NT}")
    A(f"global_load_dwordx4 {v(vWO+4,4)}, {v(vAw1)}, {s(sWb,2)}{NT}")
    A(f"v_add_u32 {v(vAw2)}, 0x2000, {v(vAw0)}")
    A(f"global_load_dwordx4 {v(vWO+8,4)}, {v(vAw2)}, {s(sWb,2)}{NT}")
    A(f"v_add_u32 {v(vAw2)}, 0x3000, {v(vAw0)}")
    A(f"global_load_dwordx4 {v(vWO+12,4)}, {v(vAw2)}, {s(sWb,2)}{NT}")
    Lh = A.label("hw"); Lhd = A.label("hwd")
    A(f"s_cmp_ge_u32 s2, 224")
    A(f"s_cbranch_scc1 {Lhd}")
    lds_spin(16, sT3, f"s_cmp_eq_u32 {s(sT3)}, 0")
    A(f"{Lhd}:")
    A(f"""
      v_bfe_u32 {v(vT5)}, {v(vL)}, 3, 1
      v_lshlrev_b32 {v(vT5)}, 6, {v(vT5)}
      v_lshl_add_u32 {v(vT5)}, {v(vGq)}, 4, {v(vT5)}
      ds_read_b64 {v(vP,2)}, {v(vT5)} offset:{L_HV}
      v_mov_b32 {v(vT1)}, {s(sTAG)}
      s_waitcnt lgkmcnt(0)
    """)
    for i in range(2):
        for k in range(4):
            A(f"v_and_b32 {v(vP+4+4*i+k)}, {v(vP+i)}, {v(vMK+k)}")
    ts("h_done")
    A(f"s_add_u32 {s(sT2)}, {s(sWAVE)}, 17")
    for tau in range(4):
        buf = vV + 16*(tau & 1)
        wait_prog(s(sT2))
        for r in range(4):
            A(f"ds_read_b128 {v(buf+4*r,4)}, {v(vAv)} offset:{16384*tau + 1024*r}")
        if tau < 3: A(f"s_add_u32 {s(sT2)}, {s(sT2)}, 4")
        for r in range(4):
            i = 4*tau + r
            A(f"s_waitcnt lgkmcnt({3-r})")
            c0 = "0" if i == 0 else v(vOA,4)
            c1 = "0" if i == 0 else v(vOA+4,4)
            A(f"v_mfma_f32_16x16x16_bf16 {v(vOA,4)}, {v(vK+2*i,2)}, {v(buf+4*r,2)}, {c0}")
            A(f"v_mfma_f32_16x16x16_bf16 {v(vOA+4,4)}, {v(vK+2*i,2)}, {v(buf+4*r+2,2)}, {c1}")
    ts("pv_done")
    A.nop(8)
    A(f"""
      ds_write_b128 {v(vAo)}, {v(vOA,4)}
      ds_write_b128 {v(vAo)}, {v(vOA+4,4)} offset:16
    """)
    if TS or opt.get("swy", 0):
        swbar(20, 4)
    else:
        A("s_waitcnt lgkmcnt(0)")
        A("s_barrier")
    A(f"""
      ds_read2st64_b32 {v(vU,2)}, {v(vAr0)} offset0:0 offset1:8
      ds_read2st64_b32 {v(vU+2,2)}, {v(vAr0)} offset0:16 offset1:24
      ds_read2st64_b32 {v(vU+4,2)}, {v(vAr1)} offset0:0 offset1:8
      ds_read2st64_b32 {v(vU+6,2)}, {v(vAr1)} offset0:16 offset1:24
      s_waitcnt lgkmcnt(2)
      v_pk_add_f32 {v(vU,2)}, {v(vU,2)}, {v(vU+2,2)}
      s_waitcnt lgkmcnt(0)
      v_pk_add_f32 {v(vU+4,2)}, {v(vU+4,2)}, {v(vU+6,2)}
      v_add_f32 {v(vU)}, {v(vU)}, {v(vU+1)}
      v_add_f32 {v(vU+4)}, {v(vU+4)}, {v(vU+5)}
      v_cvt_pk_bf16_f32 {v(vT0)}, {v(vU)}, {v(vU+4)}
    """)
    store_mode(f"global_store_dwordx2 {v(vAog)}, {v(vT0,2)}, {s(sWS,2)}")
    ts("o_published")
    vOO = vV + 8
    def issue_o():
        A(f"global_load_dwordx4 {v(vOO,4)}, {v(vApo)}, {s(sWS,2)} sc1")
        A(f"global_load_dwordx4 {v(vOO+4,4)}, {v(vApo)}, {s(sWS,2)} offset:512 sc1")
    issue_o()
    poll_simple(issue_st, [vST+1, vST+3, vST+5, vST+7], "st", 9)
    ts("st_done")
    def red8(regs, op):
        n = len(regs)
        for ctrl in ("quad_perm:[1,0,3,2]", "quad_perm:[2,3,0,1]", "row_half_mirror"):
            if n < 3: A.nop(3 - n)
            for r in regs:
                A(f"{op}_dpp {v(r)}, {v(r)}, {v(r)} {ctrl} row_mask:0xf bank_mask:0xf")
    A(f"v_max_f32 {v(vT2)}, {v(vST)}, {v(vST+4)}")
    red8([vT2], "v_max_f32")
    A(f"""
      v_sub_f32 {v(vT3)}, {v(vST)}, {v(vT2)}
      v_sub_f32 {v(vT4)}, {v(vST+4)}, {v(vT2)}
      v_exp_f32 {v(vT3)}, {v(vT3)}
      v_exp_f32 {v(vT4)}, {v(vT4)}
      s_nop 0
      v_mul_f32 {v(vT2)}, {v(vT3)}, {v(vST+2)}
      v_fma_f32 {v(vT2)}, {v(vT4)}, {v(vST+6)}, {v(vT2)}
    """)
    red8([vT2], "v_add_f32")
    A(f"""
      v_rcp_f32 {v(vT2)}, {v(vT2)}
      s_nop 0
      v_mul_f32 {v(vT3)}, {v(vT3)}, {v(vT2)}
      v_mul_f32 {v(vT4)}, {v(vT4)}, {v(vT2)}
    """)
    LskipB = A.label("skipB")
    A(f"s_cmp_ge_u32 s2, 224")
    A(f"s_cbranch_scc1 {LskipB}")
    A("s_waitcnt vmcnt(7)")
    for i in range(2):
        A(f"v_mfma_f32_16x16x32_bf16 {v(vD3,4)}, {v(vP+4+4*i,4)}, {v(vWO+16+4*i,4)}, {v(vD3,4)}")
    A(f"{LskipB}:")
    poll_pipe(issue_o, 2, [vOO+1, vOO+3, vOO+5, vOO+7], "h1", D1, 1, True)
    ts("h1_done")
    A(f"""
      v_lshlrev_b32 {v(vU)}, 16, {v(vOO)}
      v_and_b32 {v(vU+1)}, 0xffff0000, {v(vOO)}
      v_lshlrev_b32 {v(vU+2)}, 16, {v(vOO+2)}
      v_and_b32 {v(vU+3)}, 0xffff0000, {v(vOO+2)}
      v_lshlrev_b32 {v(vU+4)}, 16, {v(vOO+4)}
      v_and_b32 {v(vU+5)}, 0xffff0000, {v(vOO+4)}
      v_lshlrev_b32 {v(vU+6)}, 16, {v(vOO+6)}
      v_and_b32 {v(vU+7)}, 0xffff0000, {v(vOO+6)}
      v_pk_mul_f32 {v(vU,2)}, {v(vU,2)}, {v(vT3,2)} op_sel:[0,0] op_sel_hi:[1,0]
      v_pk_mul_f32 {v(vU+2,2)}, {v(vU+2,2)}, {v(vT3,2)} op_sel:[0,0] op_sel_hi:[1,0]
    """.replace(v(vT3,2), "XX")) if False else None
    A(f"""
      v_lshlrev_b32 {v(vU)}, 16, {v(vOO)}
      v_and_b32 {v(vU+1)}, 0xffff0000, {v(vOO)}
      v_lshlrev_b32 {v(vU+2)}, 16, {v(vOO+2)}
      v_and_b32 {v(vU+3)}, 0xffff0000, {v(vOO+2)}
      v_lshlrev_b32 {v(vU+4)}, 16, {v(vOO+4)}
      v_and_b32 {v(vU+5)}, 0xffff0000, {v(vOO+4)}
      v_lshlrev_b32 {v(vU+6)}, 16, {v(vOO+6)}
      v_and_b32 {v(vU+7)}, 0xffff0000, {v(vOO+6)}
    """)
    for i in range(4):
        A(f"v_mul_f32 {v(vU+i)}, {v(vU+i)}, {v(vT3)}")
    for i in range(4):
        A(f"v_fma_f32 {v(vU+i)}, {v(vU+4+i)}, {v(vT4)}, {v(vU+i)}")
    red8([vU, vU+1, vU+2, vU+3], "v_add_f32")
    for i in range(4):
        A(f"v_cvt_pk_bf16_f32 {v(vU+i)}, {v(vU+i)}, {v(vU+i)}")
    for i in range(4):
        for k in range(4):
            A(f"v_and_b32 {v(vQ+4*i+k)}, {v(vU+i)}, {v(vMK+k)}")
    A(f"v_mov_b32 {v(vU+5)}, {s(sTAG)}")
    A(f"v_mov_b32 {v(vU+7)}, {s(sTAG)}")
    for i in range(4):
        A(f"v_mfma_f32_16x16x32_bf16 {v(vD3,4)}, {v(vQ+4*i,4)}, {v(vWO+4*i,4)}, {v(vD3,4)}")
    A.nop(8)
    A(f"""
      v_cvt_pk_bf16_f32 {v(vU+4)}, {v(vD3)}, {v(vD3+1)}
      v_cvt_pk_bf16_f32 {v(vU+6)}, {v(vD3+2)}, {v(vD3+3)}
    """)
    store_mode(f"global_store_dwordx4 {v(vApg)}, {v(vU+4,4)}, {s(sWS,2)}")
    ts("p_published")
    def issue_r():
        A(f"global_load_dwordx4 {v(vK,4)}, {v(vAr)}, {s(sWS,2)} sc1")
    issue_r()
    A(f"v_mov_b32 {v(vT3)}, {s(sTAG)}")
    poll_pipe(issue_r, 1, [vK+1, vK+3], "h2", 1, 1, True)
    ts("h2_done")
    A(f"""
      v_lshlrev_b32 {v(vS)}, 16, {v(vK)}
      v_and_b32 {v(vS+1)}, 0xffff0000, {v(vK)}
      v_lshlrev_b32 {v(vS+2)}, 16, {v(vK+2)}
      v_and_b32 {v(vS+3)}, 0xffff0000, {v(vK+2)}
      s_nop 1
      v_permlane32_swap_b32 {v(vS)}, {v(vS+2)}
      v_permlane32_swap_b32 {v(vS+1)}, {v(vS+3)}
      v_add_f32 {v(vS)}, {v(vS)}, {v(vS+2)}
      v_add_f32 {v(vS+1)}, {v(vS+1)}, {v(vS+3)}
      s_nop 1
      v_permlane16_swap_b32 {v(vS)}, {v(vS+1)}
      v_add_f32 {v(vS)}, {v(vS)}, {v(vS+1)}
      s_nop 1
      v_add_f32_dpp {v(vS)}, {v(vS)}, {v(vS)} row_ror:8 row_mask:0xf bank_mask:0xf
      s_nop 1
      v_add_f32_dpp {v(vS)}, {v(vS)}, {v(vS)} row_ror:4 row_mask:0xf bank_mask:0xf
      s_nop 1
      v_add_f32_dpp {v(vT2)}, {v(vS)}, {v(vS)} quad_perm:[2,3,0,1] row_mask:0xf bank_mask:0xf
      s_mov_b64 exec, 0x0003000300030003
      global_store_dwordx2 {v(vAf)}, {v(vT2,2)}, {s(sWS,2)} sc1
      s_mov_b64 exec, -1
    """.replace("s_mov_b64 exec, 0x0003000300030003", f"s_mov_b32 exec_lo, 0x00030003\n      s_mov_b32 exec_hi, 0x00030003".replace("\\n", "\n")))
    ts("f_published")
    A(f"""
      s_and_b32 {s(sT0)}, {s(sA)}, 7
      s_cmp_lg_u32 {s(sT0)}, {s(sKVH)}
      s_cbranch_scc1 Lend
      s_cmp_lg_u32 {s(sWAVE)}, 0
      s_cbranch_scc1 Lend
      s_lshl_b32 {s(sT0)}, {s(sA)}, 11
      s_add_u32 {s(sT0)}, {s(sT0)}, {WS_FG}
      v_lshrrev_b32 {v(vT5)}, 3, {v(vL)}
      v_lshlrev_b32 {v(vT5)}, 8, {v(vT5)}
      v_and_b32 {v(vT0)}, 7, {v(vL)}
      v_lshl_add_u32 {v(vT5)}, {v(vT0)}, 4, {v(vT5)}
      v_add_u32 {v(vT5)}, {s(sT0)}, {v(vT5)}
      s_lshl_b32 {s(sT0)}, {s(sA)}, 6
      v_lshlrev_b32 {v(vT4)}, 2, {v(vT0)}
      v_add_u32 {v(vT4)}, {s(sT0)}, {v(vT4)}
      global_load_dword {v(vXR)}, {v(vT4)}, {s(sX,2)}
      global_load_dword {v(vXR+1)}, {v(vT4)}, {s(sX,2)} offset:32
    """)
    def issue_f():
        A(f"global_load_dwordx4 {v(vK+4,4)}, {v(vT5)}, {s(sWS,2)} sc1")
        A(f"global_load_dwordx4 {v(vK+8,4)}, {v(vT5)}, {s(sWS,2)} offset:128 sc1")
    poll_pipe(issue_f, 2, [vK+5, vK+7, vK+9, vK+11], "h3", 1, 0, True)
    ts("h3_done")
    A(f"""
      v_add_f32_dpp {v(vK+4)}, {v(vK+4)}, {v(vK+4)} row_ror:8 row_mask:0xf bank_mask:0xf
      v_add_f32_dpp {v(vK+6)}, {v(vK+6)}, {v(vK+6)} row_ror:8 row_mask:0xf bank_mask:0xf
      v_add_f32_dpp {v(vK+8)}, {v(vK+8)}, {v(vK+8)} row_ror:8 row_mask:0xf bank_mask:0xf
      v_add_f32_dpp {v(vK+10)}, {v(vK+10)}, {v(vK+10)} row_ror:8 row_mask:0xf bank_mask:0xf
      v_mov_b32 {v(vS)}, {v(vK+4)}
      v_mov_b32 {v(vS+1)}, {v(vK+6)}
      v_mov_b32 {v(vS+2)}, {v(vK+8)}
      v_mov_b32 {v(vS+3)}, {v(vK+10)}
      v_mov_b32 {v(vS+4)}, {v(vK+4)}
      v_mov_b32 {v(vS+5)}, {v(vK+6)}
      v_mov_b32 {v(vS+6)}, {v(vK+8)}
      v_mov_b32 {v(vS+7)}, {v(vK+10)}
      s_nop 1
    """)
    for sw in ("v_permlane16_swap_b32", "v_permlane32_swap_b32"):
        for i in range(4):
            A(f"{sw} {v(vS+i)}, {v(vS+4+i)}")
        for i in range(4):
            A(f"v_add_f32 {v(vS+i)}, {v(vS+i)}, {v(vS+4+i)}")
        if sw.startswith("v_permlane16"):
            for i in range(4):
                A(f"v_mov_b32 {v(vS+4+i)}, {v(vS+i)}")
            A.nop(1)
    A(f"""
      v_lshlrev_b32 {v(vS+8)}, 16, {v(vXR)}
      v_and_b32 {v(vS+9)}, 0xffff0000, {v(vXR)}
      v_lshlrev_b32 {v(vS+10)}, 16, {v(vXR+1)}
      v_and_b32 {v(vS+11)}, 0xffff0000, {v(vXR+1)}
      v_pk_add_f32 {v(vS,2)}, {v(vS,2)}, {v(vS+8,2)}
      v_pk_add_f32 {v(vS+2,2)}, {v(vS+2,2)}, {v(vS+10,2)}
      v_cvt_pk_bf16_f32 {v(vS)}, {v(vS)}, {v(vS+1)}
      v_cvt_pk_bf16_f32 {v(vS+2)}, {v(vS+2)}, {v(vS+3)}
      s_mov_b64 exec, 0xff
      global_store_dword {v(vT4)}, {v(vS)}, {s(sOUT,2)}
      global_store_dword {v(vT4)}, {v(vS+2)}, {s(sOUT,2)} offset:32
      s_cmp_lg_u32 {s(sA)}, 0
      s_cbranch_scc1 Lend
      v_mov_b32 {v(vT4)}, 0
      v_mov_b32 {v(vT5)}, {s(sTAG)}
      s_mov_b64 exec, 1
      global_store_dword {v(vT4)}, {v(vT5)}, {s(sWS,2)} sc1
      s_branch Lend
    """)
    A("Laux:")
    role[0] = "X"
    A("s_setprio 3")
    vWIN = vV
    vXS = vQ
    vDL, vDH = vOA, vOA + 4
    A(f"""
      s_sub_u32 {s(sROLE)}, {s(sWAVE)}, 4
      s_cmp_eq_u32 {s(sROLE)}, 0
      s_cselect_b32 {s(sT0)}, 0, s2
      s_cmp_ge_u32 {s(sT0)}, 224
      s_cbranch_scc1 Lend
      v_lshlrev_b32 {v(vT1)}, 4, {v(vL)}
      v_lshrrev_b32 {v(vT2)}, 3, {v(vL)}
      v_and_b32 {v(vT3)}, 7, {v(vL)}
      s_and_b32 {s(sKS)}, {s(sA)}, 3
      s_lshr_b32 {s(sT0)}, {s(sA)}, 2
      s_lshl_b32 {s(sT1)}, {s(sKVH)}, 3
      s_add_u32 {s(sT0)}, {s(sT0)}, {s(sT1)}
      s_lshl_b32 {s(sT0)}, {s(sT0)}, 7
      s_lshl_b32 {s(sT1)}, {s(sKS)}, 20
      s_add_u32 {s(sT2)}, {s(sT0)}, {s(sT1)}
      s_movk_i32 {s(sSTR)}, 0x2000
      s_cmp_eq_u32 {s(sROLE)}, 0
      s_cbranch_scc1 Laux_w
      s_and_b32 {s(sKS)}, s2, 3
      s_lshr_b32 {s(sT0)}, s2, 2
      s_cmp_ge_u32 {s(sT0)}, 28
      s_cselect_b32 {s(sT3)}, 1, 0
      s_cselect_b32 {s(sT1)}, 28, 0
      s_sub_u32 {s(sT0)}, {s(sT0)}, {s(sT1)}
      s_lshl_b32 {s(sT2)}, {s(sT0)}, 7
      s_mul_i32 {s(sT1)}, {s(sKS)}, {128*3584}
      s_add_u32 {s(sT2)}, {s(sT2)}, {s(sT1)}
      s_movk_i32 {s(sSTR)}, 3584
      s_mov_b32 {s(sTILE)}, {s(sT0)}
      s_mov_b32 {s(sTILE+1)}, {s(sT3)}
      s_waitcnt lgkmcnt(0)
      s_cmp_eq_u32 {s(sT3)}, 0
      s_cselect_b32 {s(sWQ)}, {s(sG)}, {s(sU)}
      s_cselect_b32 {s(sWQ+1)}, {s(sG+1)}, {s(sU+1)}
    """)
    A("Laux_w:")
    A(f"""
      v_mul_lo_u32 {v(vT2)}, {v(vT2)}, {s(sSTR)}
      v_lshl_add_u32 {v(vT2)}, {v(vT3)}, 4, {v(vT2)}
      s_lshl_b32 {s(sT0)}, {s(sKS)}, 8
      v_lshlrev_b32 {v(vT0)}, 2, {v(vL)}
      v_add_u32 {v(vT0)}, {s(sT0)}, {v(vT0)}
      s_lshl_b32 {s(sT0)}, {s(sSTR)}, 3
      s_waitcnt lgkmcnt(0)
      s_add_u32 {s(sWb)}, {s(sWQ)}, {s(sT2)}
      s_addc_u32 {s(sWb+1)}, {s(sWQ+1)}, 0
      global_load_dwordx4 {v(vU,4)}, {v(vT1)}, {s(sX,2)}
      global_load_dwordx4 {v(vU+4,4)}, {v(vT1)}, {s(sX,2)} offset:1024
      global_load_dword {v(vEP)}, {v(vT7)}, {s(sWS,2)} sc1
      global_load_dword {v(vXS)}, {v(vT0)}, {s(sX,2)}
      global_load_dword {v(vXS+1)}, {v(vT0)}, {s(sX,2)} offset:1024
    """)
    for i in range(16):
        A(f"global_load_dwordx4 {v(vK+4*i,4)}, {v(vT2)}, {s(sWb,2)}{NT}")
        if i < 15:
            A(f"v_add_u32 {v(vT2)}, {s(sT0)}, {v(vT2)}")
    ts("issK")
    A("s_barrier")
    for i in range(17):
        A(f"v_mov_b32 {v(vWIN+4*i)}, 0")
        A(f"v_mov_b32 {v(vWIN+4*i+1)}, 0")
    A(f"""
      s_mov_b32 {s(sT0)}, 0xffff
      s_mov_b32 {s(sT1)}, 0xffff0000
      v_and_b32 {v(vT4)}, 1, {v(vL)}
      v_cmp_eq_u32 vcc, 1, {v(vT4)}
      v_mov_b32 {v(vT5)}, {s(sT0)}
      v_mov_b32 {v(vT6)}, {s(sT1)}
      v_cndmask_b32 {v(vT5)}, {v(vT5)}, {v(vT6)}, vcc
      v_and_b32 {v(vT4)}, 2, {v(vL)}
      v_cmp_eq_u32 vcc, 0, {v(vT4)}
      s_nop 1
      v_cndmask_b32 {v(vM0)}, 0, {v(vT5)}, vcc
      v_cmp_ne_u32 vcc, 0, {v(vT4)}
      s_nop 1
      v_cndmask_b32 {v(vM1)}, 0, {v(vT5)}, vcc
    """)
    A(f"""
      s_lshl_b32 {s(sT0)}, {s(sROLE)}, 10
      v_and_b32 {v(vAX)}, 3, {v(vL)}
      v_lshlrev_b32 {v(vAX)}, 7, {v(vAX)}
      v_lshrrev_b32 {v(vT4)}, 2, {v(vL)}
      v_lshl_add_u32 {v(vAX)}, {v(vT4)}, 2, {v(vAX)}
      v_add_u32 {v(vAX)}, {s(sT0)}, {v(vAX)}
      v_bfe_u32 {v(vAX+1)}, {v(vL)}, 2, 1
      v_lshlrev_b32 {v(vAX+1)}, 9, {v(vAX+1)}
      v_lshl_add_u32 {v(vAX+1)}, {v(vGq)}, 7, {v(vAX+1)}
      v_bfe_u32 {v(vT4)}, {v(vL)}, 3, 1
      v_lshl_add_u32 {v(vAX+1)}, {v(vT4)}, 6, {v(vAX+1)}
      v_add_u32 {v(vAX+1)}, {s(sT0)}, {v(vAX+1)}
      v_lshlrev_b32 {v(vAX+2)}, 8, {v(vGq)}
      v_and_b32 {v(vT4)}, 7, {v(vL)}
      v_lshl_add_u32 {v(vAX+2)}, {v(vT4)}, 5, {v(vAX+2)}
      v_add_u32 {v(vAX+2)}, {s(sT0)}, {v(vAX+2)}
    """)
    A(f"""
      s_cmp_eq_u32 {s(sROLE)}, 0
      s_cbranch_scc0 Laux_g1
      v_and_b32 {v(vT5)}, 31, {v(vL)}
      v_lshrrev_b32 {v(vT6)}, 5, {v(vL)}
      v_lshlrev_b32 {v(vAX+3)}, 3, {v(vT5)}
      v_lshl_add_u32 {v(vAX+3)}, {v(vT6)}, 8, {v(vAX+3)}
      s_lshl_b32 {s(sT1)}, {s(sKVH)}, 15
      s_lshl_b32 {s(sT2)}, {s(sKS)}, 12
      s_add_u32 {s(sT1)}, {s(sT1)}, {s(sT2)}
      s_lshr_b32 {s(sT2)}, {s(sA)}, 2
      s_lshl_b32 {s(sT2)}, {s(sT2)}, 9
      s_add_u32 {s(sT1)}, {s(sT1)}, {s(sT2)}
      s_add_u32 {s(sT1)}, {s(sT1)}, {WS_QG}
      v_lshlrev_b32 {v(vT6)}, 14, {v(vT6)}
      v_lshl_add_u32 {v(vT5)}, {v(vT5)}, 4, {v(vT6)}
      v_add_u32 {v(vAX+4)}, {s(sT1)}, {v(vT5)}
      s_branch Laux_g2
    """)
    A("Laux_g1:")
    A(f"""
      v_lshrrev_b32 {v(vT5)}, 3, {v(vL)}
      v_and_b32 {v(vT6)}, 3, {v(vL)}
      v_lshl_add_u32 {v(vAX+3)}, {v(vT5)}, 2, {v(vT6)}
      v_lshlrev_b32 {v(vAX+3)}, 3, {v(vAX+3)}
      v_bfe_u32 {v(vT6)}, {v(vL)}, 2, 1
      v_lshl_add_u32 {v(vAX+3)}, {v(vT6)}, 8, {v(vAX+3)}
      v_add_u32 {v(vAX+3)}, 1024, {v(vAX+3)}
      s_lshl_b32 {s(sT1)}, {s(sTILE)}, 13
      s_lshl_b32 {s(sT2)}, {s(sTILE+1)}, 2
      s_add_u32 {s(sT2)}, {s(sT2)}, {s(sKS)}
      s_lshl_b32 {s(sT2)}, {s(sT2)}, 7
      s_add_u32 {s(sT1)}, {s(sT1)}, {s(sT2)}
      s_add_u32 {s(sT1)}, {s(sT1)}, {WS_GG}
      v_lshlrev_b32 {v(vT5)}, 10, {v(vT5)}
      v_and_b32 {v(vT6)}, 7, {v(vL)}
      v_lshl_add_u32 {v(vT5)}, {v(vT6)}, 4, {v(vT5)}
      v_add_u32 {v(vAX+4)}, {s(sT1)}, {v(vT5)}
    """)
    A("Laux_g2:")
    A("s_waitcnt vmcnt(16)")
    ts("issV")
    A(f"v_readfirstlane_b32 {s(sTAG)}, {v(vEP)}")
    for k in range(4):
        A(f"v_lshlrev_b32 {v(vP+4*k)}, 16, {v(vU+k)}")
        A(f"v_lshlrev_b32 {v(vP+4*k+1)}, 16, {v(vU+4+k)}")
        A(f"v_and_b32 {v(vP+4*k+2)}, 0xffff0000, {v(vU+k)}")
        A(f"v_and_b32 {v(vP+4*k+3)}, 0xffff0000, {v(vU+4+k)}")
    A(f"s_add_u32 {s(sTAG)}, {s(sTAG)}, 0x{TAG_DELTA:x}")
    def allreduce2(r0, r1, t0, t1, op="v_add_f32"):
        for sh in (8, 4, 2, 1):
            A.nop(1)
            A(f"{op}_dpp {v(r0)}, {v(r0)}, {v(r0)} row_ror:{sh} row_mask:0xf bank_mask:0xf")
            A(f"{op}_dpp {v(r1)}, {v(r1)}, {v(r1)} row_ror:{sh} row_mask:0xf bank_mask:0xf")
        for sw in ("v_permlane16_swap_b32", "v_permlane32_swap_b32"):
            A(f"v_mov_b32 {v(t0)}, {v(r0)}")
            A(f"v_mov_b32 {v(t1)}, {v(r1)}")
            A.nop(1)
            A(f"{sw} {v(r0)}, {v(t0)}")
            A(f"{sw} {v(r1)}, {v(t1)}")
            A(f"{op} {v(r0)}, {v(r0)}, {v(t0)}")
            A(f"{op} {v(r1)}, {v(r1)}, {v(t1)}")
    A(f"v_pk_add_f32 {v(vT0,2)}, {v(vP,2)}, {v(vP+2,2)}")
    A(f"v_pk_add_f32 {v(vT2,2)}, {v(vP+4,2)}, {v(vP+6,2)}")
    A(f"v_pk_add_f32 {v(vT4,2)}, {v(vP+8,2)}, {v(vP+10,2)}")
    A(f"v_pk_add_f32 {v(vU,2)}, {v(vP+12,2)}, {v(vP+14,2)}")
    A(f"v_pk_add_f32 {v(vT0,2)}, {v(vT0,2)}, {v(vT2,2)}")
    A(f"v_pk_add_f32 {v(vT4,2)}, {v(vT4,2)}, {v(vU,2)}")
    A(f"v_pk_add_f32 {v(vT0,2)}, {v(vT0,2)}, {v(vT4,2)}")
    A.nop(1)
    allreduce2(vT0, vT0+1, vT2, vT3)
    A(f"v_mul_f32 {v(vT0)}, 0x3b000000, {v(vT0)}")
    A(f"v_mul_f32 {v(vT0+1)}, 0x3b000000, {v(vT0+1)}")
    for i in range(8):
        A(f"v_pk_add_f32 {v(vP+2*i,2)}, {v(vP+2*i,2)}, {v(vT0,2)} neg_lo:[0,1] neg_hi:[0,1]")
    A(f"v_pk_mul_f32 {v(vT2,2)}, {v(vP,2)}, {v(vP,2)}")
    A(f"v_pk_mul_f32 {v(vT4,2)}, {v(vP+2,2)}, {v(vP+2,2)}")
    for i in range(2, 8):
        acc = vT2 if i % 2 == 0 else vT4
        A(f"v_pk_fma_f32 {v(acc,2)}, {v(vP+2*i,2)}, {v(vP+2*i,2)}, {v(acc,2)}")
    A(f"v_pk_add_f32 {v(vT2,2)}, {v(vT2,2)}, {v(vT4,2)}")
    A(f"v_lshlrev_b32 {v(vP)}, 16, {v(vXS)}")
    A(f"v_lshlrev_b32 {v(vP+1)}, 16, {v(vXS+1)}")
    A(f"v_and_b32 {v(vP+2)}, 0xffff0000, {v(vXS)}")
    A(f"v_and_b32 {v(vP+3)}, 0xffff0000, {v(vXS+1)}")
    allreduce2(vT2, vT3, vT4, vT5)
    A(f"v_mul_f32 {v(vT2)}, 0x3b000000, {v(vT2)}")
    A(f"v_mul_f32 {v(vT3)}, 0x3b000000, {v(vT3)}")
    rnd_pair(vT0, vT6)
    rnd_pair(vT2, vT6)
    A(f"v_add_f32 {v(vT2)}, 0x3727c5ac, {v(vT2)}")
    A(f"v_add_f32 {v(vT3)}, 0x3727c5ac, {v(vT3)}")
    A(f"v_pk_add_f32 {v(vP,2)}, {v(vP,2)}, {v(vT0,2)} neg_lo:[0,1] neg_hi:[0,1]")
    A(f"v_pk_add_f32 {v(vP+2,2)}, {v(vP+2,2)}, {v(vT0,2)} neg_lo:[0,1] neg_hi:[0,1]")
    rnd_pair(vT2, vT6)
    A(f"v_sqrt_f32 {v(vT2)}, {v(vT2)}")
    A(f"v_sqrt_f32 {v(vT3)}, {v(vT3)}")
    rnd_pair(vP, vT6)
    rnd_pair(vP+2, vT6)
    rnd_pair(vT2, vT6)
    A(f"v_rcp_f32 {v(vT2)}, {v(vT2)}")
    A(f"v_rcp_f32 {v(vT3)}, {v(vT3)}")
    A.nop(1)
    A(f"v_pk_mul_f32 {v(vP,2)}, {v(vP,2)}, {v(vT2,2)}")
    A(f"v_pk_mul_f32 {v(vP+2,2)}, {v(vP+2,2)}, {v(vT2,2)}")
    for k in range(4):
        A(f"v_cvt_pk_bf16_f32 {v(vP+k)}, {v(vP+k)}, {v(vP+k)}")
    A(f"""
      ds_write_b32 {v(vAX)}, {v(vP)} offset:{L_XB}
      ds_write_b32 {v(vAX)}, {v(vP+1)} offset:{L_XB+512}
      ds_write_b32 {v(vAX)}, {v(vP+2)} offset:{L_XB+64}
      ds_write_b32 {v(vAX)}, {v(vP+3)} offset:{L_XB+512+64}
    """)
    for k in range(4):
        A(f"ds_read_b128 {v(vS+4*k,4)}, {v(vAX+1)} offset:{L_XB + 16*k}")
    ts("issW")
    for k in range(4):
        A(f"s_waitcnt lgkmcnt({3-k})")
        for j in range(4):
            i = 4*k + j
            A(f"v_and_b32 {v(vWIN+4*i+2)}, {v(vS+i)}, {v(vM0)}")
            A(f"v_and_b32 {v(vWIN+4*i+3)}, {v(vS+i)}, {v(vM1)}")
    A(f"v_mov_b32 {v(vU+1)}, {s(sTAG)}")
    A(f"v_mov_b32 {v(vU+3)}, {s(sTAG)}")
    for i in range(16):
        A(f"s_waitcnt vmcnt({15 - i})")
        c0 = "0" if i == 0 else v(vDL,4)
        c1 = "0" if i == 0 else v(vDH,4)
        A(f"v_mfma_f32_16x16x32_bf16 {v(vDL,4)}, {v(vWIN+4*i+2,4)}, {v(vK+4*i,4)}, {c0}")
        A(f"v_mfma_f32_16x16x32_bf16 {v(vDH,4)}, {v(vWIN+4*i,4)}, {v(vK+4*i,4)}, {c1}")
    ts("Kdone")
    A(f"""
      s_mov_b32 exec_lo, 0x00ff00ff
      s_mov_b32 exec_hi, 0xff00ff00
    """)
    A.nop(6)
    A(f"""
      ds_write_b128 {v(vAX+2)}, {v(vDL,4)} offset:{L_TR}
      ds_write_b128 {v(vAX+2)}, {v(vDH,4)} offset:{L_TR+16}
      s_mov_b64 exec, -1
      ds_read_b64 {v(vT0,2)}, {v(vAX+3)} offset:{L_TR}
      ds_read_b64 {v(vT2,2)}, {v(vAX+3)} offset:{L_TR+512}
      s_waitcnt lgkmcnt(0)
      v_add_f32 {v(vU)}, {v(vT0)}, {v(vT2)}
      v_add_f32 {v(vU+2)}, {v(vT0+1)}, {v(vT3)}
      global_store_dwordx4 {v(vAX+4)}, {v(vU,4)}, {s(sWS,2)} sc1
      s_cmp_lg_u32 {s(sROLE)}, 0
      s_cbranch_scc1 Laux_h
      s_lshl_b32 {s(sT0)}, {s(sKVH)}, 8
      s_lshl_b32 {s(sT1)}, {s(sA)}, 3
      s_add_u32 {s(sT0)}, {s(sT0)}, {s(sT1)}
      s_add_u32 {s(sT0)}, {s(sT0)}, {WS_XG}
      v_mov_b32 {v(vT0)}, {s(sT0)}
      v_mov_b32 {v(vT2)}, {s(sXCC)}
      v_mov_b32 {v(vT3)}, {s(sTAG)}
      s_mov_b64 exec, 1
      global_store_dwordx2 {v(vT0)}, {v(vT2,2)}, {s(sWS,2)} sc1
    """)
    ts("p_done")
    A("s_branch Lend")
    A("Laux_h:")
    ts("p_done")
    vGP = vU
    A(f"""
      s_lshl_b32 {s(sT0)}, s2, 10
      s_add_u32 {s(sT0)}, {s(sT0)}, {WS_GG}
      v_lshlrev_b32 {v(vT4)}, 4, {v(vL)}
      v_add_u32 {v(vAX+5)}, {s(sT0)}, {v(vT4)}
      v_mov_b32 {v(vCT)}, 0
      v_mov_b32 {v(vONE)}, 1
    """)
    def issue_g():
        A(f"global_load_dwordx4 {v(vGP,4)}, {v(vAX+5)}, {s(sWS,2)} sc1")
    wait_prog(QT)
    issue_g()
    poll_simple(issue_g, [vGP+1, vGP+3], "g", 0)
    for r in (vGP, vGP+2):
        A.nop(2)
        A(f"v_add_f32_dpp {v(r)}, {v(r)}, {v(r)} row_ror:8 row_mask:0xf bank_mask:0xf")
        A(f"v_mov_b32 {v(vT0)}, {v(r)}")
        A.nop(2)
        A(f"v_permlane16_swap_b32 {v(r)}, {v(vT0)}")
        A(f"v_add_f32 {v(r)}, {v(r)}, {v(vT0)}")
    for r, tt in ((vGP, vGP+1), (vGP+2, vGP+3)):
        A(f"v_mov_b32 {v(tt)}, {v(r)}")
        A.nop(2)
        A(f"v_permlane32_swap_b32 {v(r)}, {v(tt)}")
    A(f"""
      v_cvt_pk_bf16_f32 {v(vT6)}, {v(vGP)}, {v(vGP+2)}
      v_cvt_pk_bf16_f32 {v(vT7)}, {v(vGP+1)}, {v(vGP+3)}
      v_lshlrev_b32 {v(vS+8)}, 16, {v(vT6)}
      v_and_b32 {v(vS+9)}, 0xffff0000, {v(vT6)}
      v_lshlrev_b32 {v(vS+10)}, 16, {v(vT7)}
      v_and_b32 {v(vS+11)}, 0xffff0000, {v(vT7)}
      s_mov_b32 {s(sC0)}, 0xbfb8aa3b
      v_mul_f32 {v(vS+8)}, {s(sC0)}, {v(vS+8)}
      v_mul_f32 {v(vS+9)}, {s(sC0)}, {v(vS+9)}
      v_exp_f32 {v(vS+8)}, {v(vS+8)}
      v_exp_f32 {v(vS+9)}, {v(vS+9)}
      s_nop 0
      v_add_f32 {v(vS+8)}, 1.0, {v(vS+8)}
      v_add_f32 {v(vS+9)}, 1.0, {v(vS+9)}
      v_rcp_f32 {v(vS+8)}, {v(vS+8)}
      v_rcp_f32 {v(vS+9)}, {v(vS+9)}
      s_nop 0
      v_cvt_pk_bf16_f32 {v(vT6)}, {v(vS+8)}, {v(vS+9)}
      v_lshlrev_b32 {v(vS+8)}, 16, {v(vT6)}
      v_and_b32 {v(vS+9)}, 0xffff0000, {v(vT6)}
      v_pk_mul_f32 {v(vS+8,2)}, {v(vS+8,2)}, {v(vS+10,2)}
      v_cvt_pk_bf16_f32 {v(vS+12)}, {v(vS+8)}, {v(vS+8)}
      v_cvt_pk_bf16_f32 {v(vS+13)}, {v(vS+9)}, {v(vS+9)}
      v_bfe_u32 {v(vT4)}, {v(vL)}, 2, 1
      v_lshlrev_b32 {v(vT4)}, 6, {v(vT4)}
      v_and_b32 {v(vT5)}, 1, {v(vL)}
      v_lshl_add_u32 {v(vT4)}, {v(vT5)}, 5, {v(vT4)}
      v_bfe_u32 {v(vT5)}, {v(vL)}, 1, 1
      v_lshl_add_u32 {v(vT4)}, {v(vT5)}, 2, {v(vT4)}
      ds_write_b32 {v(vT4)}, {v(vS+12)} offset:{L_HV}
      ds_write_b32 {v(vT4)}, {v(vS+13)} offset:{L_HV+16}
      ds_write_b32 {v(vCT)}, {v(vONE)} offset:{L_CT + 16}
    """)
    ts("h_done")
    A("s_branch Lend")
    A("Lload:")
    role[0] = "X"
    A("s_setprio 3")
    A(f"""
      s_lshl_b32 {s(sT0)}, {s(sB)}, 3
      s_add_u32 {s(sT0)}, {s(sT0)}, {s(sKVH)}
      s_lshl_b32 {s(sT0)}, {s(sT0)}, 23
      s_and_b32 {s(sT1)}, {s(sA)}, 15
      s_lshl_b32 {s(sT1)}, {s(sT1)}, 16
      s_add_u32 {s(sT0)}, {s(sT0)}, {s(sT1)}
      s_add_u32 {s(sT2)}, {s(sT0)}, 0x700000
      v_lshlrev_b32 {v(vT4)}, 2, {v(vGq)}
      v_xor_b32 {v(vT4)}, {v(vT4)}, {v(vN)}
      v_lshlrev_b32 {v(vT5)}, 8, {v(vGq)}
      v_lshlrev_b32 {v(vQ+4)}, 4, {v(vL)}
      v_lshlrev_b32 {v(vT0)}, 2, {v(vL)}
      v_mov_b32 {v(vT1)}, 0
      s_mov_b64 exec, 0xff
      ds_write_b32 {v(vT0)}, {v(vT1)} offset:{L_CT}
      s_mov_b64 exec, -1
    """)
    for i in range(4):
        A(f"v_xor_b32 {v(vT6)}, {i}, {v(vT4)}")
        A(f"v_lshl_add_u32 {v(vQ+i)}, {v(vT6)}, 4, {v(vT5)}")
    A(f"""
      s_mov_b32 {s(sSRK+2)}, 0x10000
      s_mov_b32 {s(sSRK+3)}, 0x20000
      s_mov_b32 {s(sSRV+2)}, 0x10000
      s_mov_b32 {s(sSRV+3)}, 0x20000
      s_waitcnt lgkmcnt(0)
      s_add_u32 {s(sSRK)}, {s(sK)}, {s(sT2)}
      s_addc_u32 {s(sSRK+1)}, {s(sK+1)}, 0
      s_and_b32 {s(sSRK+1)}, {s(sSRK+1)}, 0xffff
      s_add_u32 {s(sSRV)}, {s(sV)}, {s(sT2)}
      s_addc_u32 {s(sSRV+1)}, {s(sV+1)}, 0
      s_and_b32 {s(sSRV+1)}, {s(sSRV+1)}, 0xffff
      s_mov_b32 {s(sT3)}, 0
      s_mov_b32 {s(sTILE)}, {L_KL}
      s_barrier
    """)
    ts("issK")
    for ph, srd in ((0, sSRK), (1, sSRV)):
        w = WT if ph == 0 else WT2
        Ll = A.label("ld")
        A(f"{Ll}:")
        A(f"""
          s_add_u32 {s(sT0)}, {s(sT3)}, {s(sA)}
          s_and_b32 {s(sT0)}, {s(sT0)}, 15
          s_lshl_b32 {s(sT0)}, {s(sT0)}, 12
          s_sub_u32 {s(sT2)}, {s(sT3)}, {w - 1}
          s_max_i32 {s(sT2)}, {s(sT2)}, {s(sPROG)}
          s_waitcnt vmcnt({4*(w-1)})
          s_mov_b32 {s(sPROG)}, {s(sT2)}
          v_mov_b32 {v(vT1)}, {s(sT2)}
          ds_write_b32 {v(vCT)}, {v(vT1)} offset:{L_CT}
        """)
        for i in range(4):
            A(f"s_add_u32 m0, {s(sTILE)}, {1024*i}")
            A(f"s_add_u32 {s(sT1)}, {s(sT0)}, {1024*i}")
            off = vQ + i if ph == 0 else vQ + 4
            A(f"buffer_load_dwordx4 {v(off)}, {s(srd,4)}, {s(sT1)} offen{NT} lds")
        A(f"""
          s_add_u32 {s(sTILE)}, {s(sTILE)}, 4096
          s_add_u32 {s(sT3)}, {s(sT3)}, 1
          s_cmp_lt_u32 {s(sT3)}, {16*(ph+1)}
          s_cbranch_scc1 {Ll}
        """)
        ts("issV" if ph == 0 else "issW")
    for k in range(WT2 - 1, -1, -1):
        A(f"s_waitcnt vmcnt({4*k})")
        A(f"v_mov_b32 {v(vT1)}, {32 - k}")
        A(f"ds_write_b32 {v(vCT)}, {v(vT1)} offset:{L_CT}")
    ts("Kdone")
    A("Lend:")
    if TS:
        ts("end")
        A("s_waitcnt lgkmcnt(0)")
        A(f"""
          s_mov_b64 exec, 1
          s_mul_i32 {s(sT0)}, s2, 7
          s_add_u32 {s(sT0)}, {s(sT0)}, {s(sWAVE)}
          s_lshl_b32 {s(sT0)}, {s(sT0)}, 7
          s_add_u32 {s(sT0)}, {s(sT0)}, {WS_TS}
          v_mov_b32 {v(vT4)}, {s(sT0)}
        """)
        for k in range(19):
            A(f"v_mov_b32 {v(vT5)}, {s(64+2*k)}")
            A(f"global_store_dword {v(vT4)}, {v(vT5)}, {s(sWS,2)} offset:{4*k}")
    A("Lexit:")
    A("s_endpgm")
    A("Lcode_end:")
    A(f".set CODE_CHUNKS, (Lcode_end-{NAME})/1024")
    hdr = f"""; fused decode kernel: layernorm -> {{windowed GQA attention + out proj}} + {{sigmoid GLU}} + residual
; @launch grid=(256,1,1) block=(448,1,1) lds={LDS_BYTES}
.amdgcn_target "amdgcn-amd-amdhsa--gfx950"
.text
.globl {NAME}
.p2align 8
.type {NAME},@function
{NAME}:
"""
    ftr = f"""
.section .rodata,"a"
.p2align 6
.amdhsa_kernel {NAME}
  .amdhsa_next_free_vgpr {NV}
  .amdhsa_next_free_sgpr 102
  .amdhsa_accum_offset {NV}
  .amdhsa_group_segment_fixed_size 0
  .amdhsa_kernarg_size 96
  .amdhsa_user_sgpr_count 2
  .amdhsa_user_sgpr_kernarg_segment_ptr 1
  .amdhsa_system_sgpr_workgroup_id_x 1
.end_amdhsa_kernel
"""
    return hdr + A.text() + ftr, (ts_map if TS else None)

if __name__ == "__main__":
    out = sys.argv[1]
    opt = {}
    for a in sys.argv[2:]:
        k, val = a.split("=")
        opt[k] = int(val)
    txt, slots = gen(opt)
    open(out, "w").write(txt)
    print("wrote", out, "ts slots:", slots)
```

```python
import sys

NAME = "parallel_sum__sliding_block_cached__glu_gated_glu__decode_kernel"
NWAVES = 7
NAWAVES = 4

class Asm:
    def __init__(self):
        self.lines = []
        self.uid = 0
    def __call__(self, s):
        for ln in s.strip("\n").split("\n"):
            t = ln.strip()
            if not t: continue
            self.lines.append(t if t.endswith(":") else "  " + t)
    def label(self, base):
        self.uid += 1
        return f"L{base}_{self.uid}"
    def nop(self, n):
        while n > 0:
            k = min(n, 16)
            self(f"s_nop {k-1}")
            n -= k
    def text(self):
        return "\n".join(self.lines) + "\n"

def v(i, n=1):
    return f"v{i}" if n == 1 else f"v[{i}:{i+n-1}]"
def s(i, n=1):
    return f"s{i}" if n == 1 else f"s[{i}:{i+n-1}]"

WS_EPOCH = 0
WS_XG = 0x8000
WS_SG = 0x10000
WS_QG = 0x40000
WS_GG = 0x80000
WS_OG = 0x100000
WS_RG = 0x200000
WS_FG = 0x300000
WS_TS = 0x800000
TAG_DELTA = 0x9E3779B9

L_XB = 0
L_TR = 2048
L_QB = 4096
L_MX = 5120
L_LS = 5184
L_HV = 5248
L_CT = 5440
L_ZB = 5504
L_OP = 6144
L_KL = 16384
L_VL = 81920
LDS_BYTES = 147456

def gen(opt):
    A = Asm()
    TS = opt.get("ts", 0)
    LTS = opt.get("lts", 0)
    NT = " nt" if opt.get("nt", 1) else ""
    WIN = opt.get("win", 8)
    NTH = opt.get("nth", 17)
    QT = opt.get("qt", 8)
    WT = opt.get("wt", 8)
    WT2 = opt.get("wt2", 11)
    SPIN = opt.get("spin", 400000)
    CPF = opt.get("cpf", 1)
    FASTOK = opt.get("fast", 1)
    D1 = opt.get("d1", 1)
    D2 = opt.get("d2", 1)
    PGS = opt.get("pgs", 4352)
    role = ["A"]
    ts_map = {"A": ["start"], "X": ["start"]}
    SKIP = set(opt.get("_skip", ["issK", "q_done", "h_done", "q_n", "st_n"] + (["h1_n", "h2_n", "h3_n", "issQ"] if opt.get("det") else ["s_issued", "preM", "barM", "preS"]) + ["issV"]))
    def slot(name):
        if name == "start": return 0
        if name == "end": return 18
        l = ts_map[role[0]]
        if name not in l: l.append(name)
        assert len(l) <= 18, l
        return l.index(name)
    def ts(name):
        if TS and not (role[0] == "A" and name in SKIP):
            A(f"s_memrealtime {s(64 + 2*slot(name), 2)}")

    sX, sK, sV, sWQ, sWO, sBX, sG, sU = 4, 6, 8, 10, 12, 14, 16, 18
    sWD, sOUT, sDBG, sWS = 20, 22, 24, 26
    sKVH, sA, sB, sTAG, sWAVE = 28, 29, 30, 31, 32
    sT0, sT1, sT2, sT3 = 33, 34, 35, 36
    sSPIN = 37
    sC0 = 38
    sEX = 40
    sXCC, sMODE = 42, 43
    sSRK = 44
    sSRV = 48
    sWb = 52
    sWDb = 54
    sSTR = 56
    sKS = 57
    sTILE = 58
    sROLE = 62
    sPROG = 63
    vL, vN, vGq = 1, 2, 3
    vT0, vT1, vT2, vT3, vT4, vT5, vT6, vT7 = 4, 5, 6, 7, 8, 9, 10, 11
    vM0, vM1 = 12, 13
    vMK = 14
    vEP = 18
    vXR = 18
    vOA = 20
    vD3 = 28
    vQ = 32
    vS = 48
    vK = 64
    vV = 128
    vWO = 192
    vP = 216
    vU = 232
    vAX = 240
    NV = 256
    vAq, vAg, vAx, vAw0, vAw1, vAw2 = vAX, vAX+4, vAX+5, vAX+6, vAX+7, vAX+8
    vAo, vAr0, vAr1, vAog, vAst, vApo, vApg = vAX+9, vAX+10, vAX+11, vAX+12, vAX+13, vAX+14, vAX+15
    vAr, vAf = vAX+4, vP+15
    vCT, vONE = vP+14, vP+13
    vAsl, vAss = vP+12, 19
    vAk = vS + 4
    vAv = vS + 8
    vAm = vS + 9

    def xrow(r, t, op):
        for sw in ("v_permlane16_swap_b32", "v_permlane32_swap_b32"):
            A(f"v_mov_b32 {v(t)}, {v(r)}")
            A.nop(2)
            A(f"{sw} {v(r)}, {v(t)}")
            A(f"{op} {v(r)}, {v(r)}, {v(t)}")
    def rnd_pair(r, t):
        A(f"v_cvt_pk_bf16_f32 {v(t)}, {v(r)}, {v(r+1)}")
        A(f"v_lshlrev_b32 {v(r)}, 16, {v(t)}")
        A(f"v_and_b32 {v(r+1)}, 0xffff0000, {v(t)}")
    def check(regs):
        tmp = [vT6, vT7, vU+6]
        first = True
        i = 0
        regs = list(regs)
        A(f"v_xor_b32 {v(vT6)}, {s(sTAG)}, {v(regs[0])}")
        i = 1
        while i < len(regs):
            if i + 1 < len(regs):
                A(f"v_xor_b32 {v(vT7)}, {s(sTAG)}, {v(regs[i])}")
                A(f"v_xor_b32 {v(vU+6)}, {s(sTAG)}, {v(regs[i+1])}")
                A(f"v_or3_b32 {v(vT6)}, {v(vT6)}, {v(vT7)}, {v(vU+6)}")
                i += 2
            else:
                A(f"v_xor_b32 {v(vT7)}, {s(sTAG)}, {v(regs[i])}")
                A(f"v_or_b32 {v(vT6)}, {v(vT6)}, {v(vT7)}")
                i += 1
        A(f"v_cmp_ne_u32 vcc, 0, {v(vT6)}")
    def poll_simple(issue, tagregs, name, waitn):
        Lr = A.label(name + "_retry"); Lk = A.label(name + "_ok")
        if TS and name + "_n" not in SKIP and name != "g": A(f"s_mov_b32 {s(64+2*slot(name + '_n'))}, 0")
        A(f"s_waitcnt vmcnt({waitn})")
        check(tagregs)
        A(f"s_cbranch_vccz {Lk}")
        A(f"s_mov_b32 {s(sSPIN)}, {SPIN}")
        A(f"{Lr}:")
        A("s_mov_b64 exec, vcc")
        issue()
        A("s_waitcnt vmcnt(0)")
        check(tagregs)
        A(f"s_cbranch_vccz {Lk}_x")
        A(f"s_sub_u32 {s(sSPIN)}, {s(sSPIN)}, 1")
        A(f"s_cmp_lg_u32 {s(sSPIN)}, 0")
        A(f"s_cbranch_scc1 {Lr}")
        A(f"{Lk}_x:")
        A("s_mov_b64 exec, -1")
        if TS and name + "_n" not in SKIP and name != "g": A(f"s_sub_u32 {s(64+2*slot(name + '_n'))}, {SPIN+1}, {s(sSPIN)}")
        A(f"{Lk}:")
    def poll_pipe(issue, nld, tagregs, name, depth, primed, masked):
        Lr = A.label(name + "_loop"); Lk = A.label(name + "_ok"); Lf = A.label(name + "_first")
        A(f"s_mov_b32 {s(sSPIN)}, {SPIN}")
        if primed >= depth:
            A(f"s_branch {Lf}")
        else:
            for _ in range(depth - 1 - primed): issue()
        A(f"{Lr}:")
        issue()
        A(f"{Lf}:")
        A(f"s_waitcnt vmcnt({nld*(depth-1)})")
        check(tagregs)
        A(f"s_cbranch_vccz {Lk}")
        if masked: A("s_mov_b64 exec, vcc")
        A(f"s_sub_u32 {s(sSPIN)}, {s(sSPIN)}, 1")
        A(f"s_cmp_lg_u32 {s(sSPIN)}, 0")
        A(f"s_cbranch_scc1 {Lr}")
        A(f"{Lk}:")
        if masked: A("s_mov_b64 exec, -1")
        if TS and name + "_n" not in SKIP: A(f"s_sub_u32 {s(64+2*slot(name + '_n'))}, {SPIN}, {s(sSPIN)}")
    def lds_spin(off, dst, cmp_txt):
        Ll = A.label("sp"); Lx = A.label("spx")
        A(f"s_mov_b32 {s(sSPIN)}, {SPIN}")
        A(f"{Ll}:")
        A(f"ds_read_b32 {v(vT7)}, {v(vCT)} offset:{L_CT + off}")
        A(f"s_sub_u32 {s(sSPIN)}, {s(sSPIN)}, 1")
        A(f"s_cbranch_scc1 {Lx}")
        A("s_waitcnt lgkmcnt(0)")
        A(f"v_readfirstlane_b32 {s(dst)}, {v(vT7)}")
        A(cmp_txt)
        A(f"s_cbranch_scc1 {Ll}")
        A(f"{Lx}:")
        A("s_waitcnt lgkmcnt(0)")
    def wait_prog(target_txt):
        Ld = A.label("wpd")
        A(f"s_cmp_ge_u32 {s(sPROG)}, {target_txt}")
        A(f"s_cbranch_scc1 {Ld}")
        lds_spin(0, sPROG, f"s_cmp_lt_u32 {s(sPROG)}, {target_txt}")
        A(f"{Ld}:")
    def swbar(off, target):
        A("s_waitcnt lgkmcnt(0)")
        A("s_mov_b64 exec, 1")
        A(f"ds_add_u32 {v(vCT)}, {v(vONE)} offset:{L_CT + off}")
        A("s_mov_b64 exec, -1")
        lds_spin(off, sT3, f"s_cmp_lt_u32 {s(sT3)}, {target}")
    def store_mode(txt):
        if not FASTOK:
            A(txt + " sc1"); return
        La = A.label("sts"); Lb = A.label("ste")
        A(f"s_cmp_eq_u32 {s(sMODE)}, 0")
        A(f"s_cbranch_scc1 {La}")
        A(txt)
        A(f"s_branch {Lb}")
        A(f"{La}:")
        A(txt + " sc1")
        A(f"{Lb}:")

    A("s_cmp_ge_u32 s2, 256")
    A("s_cbranch_scc1 Lexit")
    A(f"s_load_dwordx16 {s(4,16)}, s[0:1], 0")
    A(f"s_load_dwordx8 {s(20,8)}, s[0:1], 64")
    ts("start")
    if LTS: A("s_memrealtime s[64:65]")
    if CPF:
        A(f"""
          s_getpc_b64 {s(sC0,2)}
        Lpc:
          v_lshrrev_b32 {v(vT0)}, 6, v0
          s_bfe_u32 {s(sT0)}, s2, 0x10003
          s_mul_i32 {s(sT0)}, {s(sT0)}, 7
          v_add_u32 {v(vT0)}, {s(sT0)}, {v(vT0)}
          v_min_u32 {v(vT0)}, CODE_CHUNKS-1, {v(vT0)}
          v_lshlrev_b32 {v(vT0)}, 10, {v(vT0)}
          v_and_b32 {v(vT1)}, 63, v0
          v_lshl_add_u32 {v(vT0)}, {v(vT1)}, 4, {v(vT0)}
          s_sub_u32 {s(sC0)}, {s(sC0)}, Lpc-{NAME}
          s_subb_u32 {s(sC0+1)}, {s(sC0+1)}, 0
          global_load_dwordx4 {v(vWO+20,4)}, {v(vT0)}, {s(sC0,2)}
        """)
    A(f"""
      v_and_b32 {v(vL)}, 63, v0
      v_lshrrev_b32 {v(vT0)}, 6, v0
      v_and_b32 {v(vN)}, 15, v0
      v_bfe_u32 {v(vGq)}, v0, 4, 2
      v_readfirstlane_b32 {s(sWAVE)}, {v(vT0)}
      s_and_b32 {s(sKVH)}, s2, 7
      s_lshr_b32 {s(sA)}, s2, 3
      s_lshr_b32 {s(sB)}, {s(sA)}, 4
      s_getreg_b32 {s(sXCC)}, hwreg(HW_REG_XCC_ID)
      s_and_b32 {s(sXCC)}, {s(sXCC)}, 15
      v_mov_b32 {v(vT7)}, 0
      v_mov_b32 {v(vCT)}, 0
      v_mov_b32 {v(vONE)}, 1
      s_mov_b32 {s(sPROG)}, 0
      s_cmp_eq_u32 {s(sWAVE)}, 6
      s_cbranch_scc1 Lload
      s_cmp_ge_u32 {s(sWAVE)}, 4
      s_cbranch_scc1 Laux
    """)
    vQP = vQ
    vXP = vOA + 4
    def issue_q():
        for ks in range(4):
            A(f"global_load_dwordx4 {v(vQP+4*ks,4)}, {v(vAq+ks)}, {s(sWS,2)} sc1")
    def issue_x():
        A(f"global_load_dwordx2 {v(vXP,2)}, {v(vAx)}, {s(sWS,2)} sc1")
    def issue_qx():
        issue_q(); issue_x()
    A(f"""
      v_and_b32 {v(vT3)}, 3, {v(vN)}
      v_lshlrev_b32 {v(vT3)}, 10, {v(vT3)}
      v_lshrrev_b32 {v(vT4)}, 2, {v(vN)}
      v_lshl_add_u32 {v(vT3)}, {v(vT4)}, 8, {v(vT3)}
      s_lshl_b32 {s(sT0)}, {s(sWAVE)}, 12
      s_add_u32 {s(sT1)}, {s(sT0)}, {L_KL}
      v_add_u32 {v(vT3)}, {s(sT1)}, {v(vT3)}
      v_xor_b32 {v(vT4)}, {v(vGq)}, {v(vN)}
    """)
    for jj in range(4):
        A(f"v_xor_b32 {v(vT5)}, {4*jj}, {v(vT4)}")
        A(f"v_lshl_add_u32 {v(vAk+jj)}, {v(vT5)}, 4, {v(vT3)}")
    A(f"""
      s_add_u32 {s(sT1)}, {s(sT0)}, {L_VL}
      v_lshlrev_b32 {v(vAv)}, 4, {v(vL)}
      v_add_u32 {v(vAv)}, {s(sT1)}, {v(vAv)}
      s_waitcnt lgkmcnt(0)
      global_load_dword {v(vEP)}, {v(vT7)}, {s(sWS,2)} sc1
    """)
    A(f"""
      s_lshl_b32 {s(sT0)}, {s(sKVH)}, 19
      s_lshl_b32 {s(sT1)}, {s(sA)}, 14
      s_add_u32 {s(sT0)}, {s(sT0)}, {s(sT1)}
      s_lshl_b32 {s(sT1)}, {s(sWAVE)}, 8
      s_add_u32 {s(sT0)}, {s(sT0)}, {s(sT1)}
      s_add_u32 {s(sWb)}, {s(sWO)}, {s(sT0)}
      s_addc_u32 {s(sWb+1)}, {s(sWO+1)}, 0
      s_cmp_lt_u32 s2, 224
      s_cselect_b32 {s(sT0)}, s2, 0
      s_lshl_b32 {s(sT0)}, {s(sT0)}, 13
      s_add_u32 {s(sT0)}, {s(sT0)}, {s(sT1)}
      s_add_u32 {s(sWDb)}, {s(sWD)}, {s(sT0)}
      s_addc_u32 {s(sWDb+1)}, {s(sWD+1)}, 0
      v_lshlrev_b32 {v(vAw0)}, 10, {v(vGq)}
      v_lshl_add_u32 {v(vAw0)}, {v(vN)}, 4, {v(vAw0)}
      v_add_u32 {v(vAw1)}, 0x1000, {v(vAw0)}
      s_lshl_b32 {s(sT0)}, {s(sKVH)}, 1
      s_add_u32 {s(sT0)}, {s(sT0)}, {s(sB)}
      s_lshl_b32 {s(sT0)}, {s(sT0)}, 14
      s_lshl_b32 {s(sT1)}, {s(sWAVE)}, 10
      s_add_u32 {s(sT0)}, {s(sT0)}, {s(sT1)}
      s_add_u32 {s(sT0)}, {s(sT0)}, {WS_QG}
      v_lshlrev_b32 {v(vT4)}, 4, {v(vL)}
      v_add_u32 {v(vAq)}, {s(sT0)}, {v(vT4)}
      v_add_u32 {v(vAq+1)}, 0x1000, {v(vAq)}
      v_add_u32 {v(vAq+2)}, 0x2000, {v(vAq)}
      v_add_u32 {v(vAq+3)}, 0x3000, {v(vAq)}
      s_lshl_b32 {s(sT0)}, {s(sKVH)}, 8
      s_add_u32 {s(sT0)}, {s(sT0)}, {WS_XG}
      v_and_b32 {v(vT4)}, 31, {v(vL)}
      v_lshlrev_b32 {v(vT4)}, 3, {v(vT4)}
      v_add_u32 {v(vAx)}, {s(sT0)}, {v(vT4)}
      s_mov_b32 {s(sT0)}, 0xffff
      s_mov_b32 {s(sT1)}, 0xffff0000
      v_and_b32 {v(vT4)}, 1, {v(vL)}
      v_cmp_eq_u32 vcc, 1, {v(vT4)}
      v_mov_b32 {v(vT5)}, {s(sT0)}
      v_mov_b32 {v(vT6)}, {s(sT1)}
      v_cndmask_b32 {v(vT5)}, {v(vT5)}, {v(vT6)}, vcc
      v_and_b32 {v(vT4)}, 2, {v(vL)}
      v_cmp_eq_u32 vcc, 0, {v(vT4)}
      s_nop 1
      v_cndmask_b32 {v(vM0)}, 0, {v(vT5)}, vcc
      v_cmp_ne_u32 vcc, 0, {v(vT4)}
      s_nop 1
      v_cndmask_b32 {v(vM1)}, 0, {v(vT5)}, vcc
      v_bfe_u32 {v(vT4)}, {v(vL)}, 1, 2
    """)
    for i in range(4):
        A(f"v_cmp_eq_u32 vcc, {i}, {v(vT4)}")
        A("s_nop 1")
        A(f"v_cndmask_b32 {v(vMK+i)}, 0, {v(vT5)}, vcc")
    A(f"""
      s_lshl_b32 {s(sT0)}, {s(sWAVE)}, 11
      s_add_u32 {s(sT0)}, {s(sT0)}, {L_OP}
      v_lshlrev_b32 {v(vAo)}, 9, {v(vGq)}
      v_lshl_add_u32 {v(vAo)}, {v(vN)}, 5, {v(vAo)}
      v_add_u32 {v(vAo)}, {s(sT0)}, {v(vAo)}
      v_lshrrev_b32 {v(vT4)}, 3, {v(vL)}
      v_lshlrev_b32 {v(vT4)}, 4, {v(vT4)}
      v_and_b32 {v(vT5)}, 1, {v(vL)}
      v_lshl_add_u32 {v(vT4)}, {v(vT5)}, 3, {v(vT4)}
      v_bfe_u32 {v(vT5)}, {v(vL)}, 1, 2
      v_add_u32 {v(vT4)}, {v(vT4)}, {v(vT5)}
      v_lshlrev_b32 {v(vT4)}, 2, {v(vT4)}
      s_lshl_b32 {s(sT0)}, {s(sWAVE)}, 9
      s_add_u32 {s(sT0)}, {s(sT0)}, {L_OP}
      v_add_u32 {v(vAr0)}, {s(sT0)}, {v(vT4)}
      v_add_u32 {v(vAr1)}, 16, {v(vAr0)}
      s_lshl_b32 {s(sT0)}, {s(sKVH)}, 16
      s_lshl_b32 {s(sT1)}, {s(sWAVE)}, 14
      s_add_u32 {s(sT0)}, {s(sT0)}, {s(sT1)}
      s_lshl_b32 {s(sT1)}, {s(sA)}, 6
      s_add_u32 {s(sT0)}, {s(sT0)}, {s(sT1)}
      s_add_u32 {s(sT0)}, {s(sT0)}, {WS_OG}
      v_lshrrev_b32 {v(vT4)}, 3, {v(vL)}
      v_lshlrev_b32 {v(vT4)}, 11, {v(vT4)}
      v_and_b32 {v(vT5)}, 7, {v(vL)}
      v_lshl_add_u32 {v(vT4)}, {v(vT5)}, 3, {v(vT4)}
      v_add_u32 {v(vAog)}, {s(sT0)}, {v(vT4)}
      s_lshl_b32 {s(sT0)}, {s(sKVH)}, 2
      s_lshr_b32 {s(sT1)}, {s(sA)}, 3
      s_add_u32 {s(sT0)}, {s(sT0)}, {s(sT1)}
      s_lshl_b32 {s(sT0)}, {s(sT0)}, 9
      s_add_u32 {s(sT0)}, {s(sT0)}, {WS_SG}
      v_bfe_u32 {v(vT4)}, {v(vL)}, 3, 1
      v_lshlrev_b32 {v(vAst)}, 8, {v(vT4)}
      v_lshl_add_u32 {v(vAst)}, {v(vT5)}, 4, {v(vAst)}
      v_add_u32 {v(vAst)}, {s(sT0)}, {v(vAst)}
      s_lshl_b32 {s(sT0)}, {s(sKVH)}, 5
      s_add_u32 {s(sT0)}, {s(sT0)}, {s(sA)}
      s_lshl_b32 {s(sT0)}, {s(sT0)}, 11
      s_add_u32 {s(sT0)}, {s(sT0)}, {WS_OG}
      v_lshlrev_b32 {v(vApo)}, 10, {v(vT4)}
      v_lshl_add_u32 {v(vApo)}, {v(vT5)}, 6, {v(vApo)}
      v_lshl_add_u32 {v(vApo)}, {v(vGq)}, 4, {v(vApo)}
      v_add_u32 {v(vApo)}, {s(sT0)}, {v(vApo)}
      s_lshl_b32 {s(sT0)}, {s(sKVH)}, 17
      s_lshl_b32 {s(sT1)}, {s(sWAVE)}, 14
      s_add_u32 {s(sT0)}, {s(sT0)}, {s(sT1)}
      s_lshl_b32 {s(sT1)}, {s(sA)}, 7
      s_add_u32 {s(sT0)}, {s(sT0)}, {s(sT1)}
      s_add_u32 {s(sT0)}, {s(sT0)}, {WS_RG}
      v_lshrrev_b32 {v(vT4)}, 1, {v(vGq)}
      v_lshlrev_b32 {v(vT4)}, 16, {v(vT4)}
      v_lshrrev_b32 {v(vT5)}, 2, {v(vN)}
      v_lshl_add_u32 {v(vT4)}, {v(vT5)}, 12, {v(vT4)}
      v_and_b32 {v(vT5)}, 3, {v(vN)}
      v_lshl_add_u32 {v(vT4)}, {v(vT5)}, 5, {v(vT4)}
      v_and_b32 {v(vT5)}, 1, {v(vGq)}
      v_lshl_add_u32 {v(vT4)}, {v(vT5)}, 4, {v(vT4)}
      v_add_u32 {v(vApg)}, {s(sT0)}, {v(vT4)}
      s_lshl_b32 {s(sT0)}, {s(sKVH)}, 5
      s_add_u32 {s(sT0)}, {s(sT0)}, {s(sA)}
      s_lshl_b32 {s(sT0)}, {s(sT0)}, 12
      s_lshl_b32 {s(sT1)}, {s(sWAVE)}, 5
      s_add_u32 {s(sT0)}, {s(sT0)}, {s(sT1)}
      s_add_u32 {s(sT0)}, {s(sT0)}, {WS_RG}
      v_lshrrev_b32 {v(vAr)}, 1, {v(vL)}
      v_lshlrev_b32 {v(vAr)}, 7, {v(vAr)}
      v_and_b32 {v(vT0)}, 1, {v(vL)}
      v_lshl_add_u32 {v(vAr)}, {v(vT0)}, 4, {v(vAr)}
      v_add_u32 {v(vAr)}, {s(sT0)}, {v(vAr)}
      s_lshl_b32 {s(sT0)}, {s(sA)}, 11
      s_lshl_b32 {s(sT1)}, {s(sKVH)}, 8
      s_add_u32 {s(sT0)}, {s(sT0)}, {s(sT1)}
      s_lshl_b32 {s(sT1)}, {s(sWAVE)}, 6
      s_add_u32 {s(sT0)}, {s(sT0)}, {s(sT1)}
      s_add_u32 {s(sT0)}, {s(sT0)}, {WS_FG}
      v_lshlrev_b32 {v(vAf)}, 5, {v(vT0)}
      v_lshl_add_u32 {v(vAf)}, {v(vGq)}, 3, {v(vAf)}
      v_add_u32 {v(vAf)}, {s(sT0)}, {v(vAf)}
      v_mov_b32 {v(vD3)}, 0
      v_mov_b32 {v(vD3+1)}, 0
      v_mov_b32 {v(vD3+2)}, 0
      v_mov_b32 {v(vD3+3)}, 0
    """)
    A(f"""
      v_lshrrev_b32 {v(vT4)}, 2, {v(vN)}
      v_lshlrev_b32 {v(vT4)}, 8, {v(vT4)}
      v_lshl_add_u32 {v(vT4)}, {v(vGq)}, 4, {v(vT4)}
      v_add_u32 {v(vT4)}, {L_QB}, {v(vT4)}
      v_lshlrev_b32 {v(vT5)}, 4, {v(vGq)}
      v_add_u32 {v(vT5)}, {L_ZB}, {v(vT5)}
      v_and_b32 {v(vT6)}, 3, {v(vN)}
    """)
    for c in range(4):
        A(f"v_cmp_eq_u32 vcc, {c}, {v(vT6)}")
        A("s_nop 1")
        A(f"v_cndmask_b32 {v(vAm+c)}, {v(vT5)}, {v(vT4)}, vcc")
    A("s_barrier")
    A(f"""
      s_waitcnt vmcnt(0)
      v_readfirstlane_b32 {s(sTAG)}, {v(vEP)}
      s_add_u32 {s(sTAG)}, {s(sTAG)}, 0x{TAG_DELTA:x}
    """)
    wait_prog(QT)
    ts("issQ")
    issue_qx()
    def kreads():
        for tt in range(4):
            for jj in range(4):
                A(f"ds_read_b128 {v(vK+16*tt+4*jj,4)}, {v(vAk+jj)} offset:{16384*tt}")
    sKR = sT2
    Lk1 = A.label("k1"); Lk2 = A.label("k2")
    A(f"""
      ds_read_b32 {v(vT7)}, {v(vCT)} offset:{L_CT}
      s_mov_b32 {s(sKR)}, 0
      s_waitcnt lgkmcnt(0)
      v_readfirstlane_b32 {s(sPROG)}, {v(vT7)}
      s_cmp_lt_u32 {s(sPROG)}, 16
      s_cbranch_scc1 {Lk1}
      s_mov_b32 {s(sKR)}, 1
    """)
    kreads()
    A(f"{Lk1}:")
    poll_simple(issue_qx, [vQP+4*i+k for i in range(4) for k in (1, 3)] + [vXP+1], "q", 0)
    ts("q_done")
    A(f"""
      v_add_f32 {v(vQP)}, {v(vQP)}, {v(vQP+4)}
      v_add_f32 {v(vQP+2)}, {v(vQP+2)}, {v(vQP+6)}
      v_add_f32 {v(vQP+8)}, {v(vQP+8)}, {v(vQP+12)}
      v_add_f32 {v(vQP+10)}, {v(vQP+10)}, {v(vQP+14)}
      v_add_f32 {v(vQP)}, {v(vQP)}, {v(vQP+8)}
      v_add_f32 {v(vQP+2)}, {v(vQP+2)}, {v(vQP+10)}
      v_cvt_pk_bf16_f32 {v(vQP)}, {v(vQP)}, {v(vQP+2)}
      v_lshlrev_b32 {v(vT4)}, 2, v0
      ds_write_b32 {v(vT4)}, {v(vQP)} offset:{L_QB}
      v_cmp_ne_u32 vcc, {s(sXCC)}, {v(vXP)}
      s_cmp_eq_u64 vcc, 0
      s_cselect_b32 {s(sMODE)}, 1, 0
      v_lshrrev_b32 {v(vT2)}, 2, {v(vN)}
      v_lshlrev_b32 {v(vT2)}, 4, {v(vT2)}
      s_lshl_b32 {s(sT0)}, {s(sWAVE)}, 2
      v_add_u32 {v(vT3)}, {s(sT0)}, {v(vT2)}
    """)
    swbar(4, 4)
    ts("barX")
    A(f"s_cmp_eq_u32 {s(sKR)}, 1")
    A(f"s_cbranch_scc1 {Lk2}")
    wait_prog(16)
    kreads()
    A(f"{Lk2}:")
    ts("k_land")
    for tt in range(4):
        for jj in range(4):
            A(f"ds_read_b128 {v(vV+16*tt+4*jj,4)}, {v(vAm+tt)} offset:{64*jj}")
    for tt in range(4):
        A(f"s_waitcnt lgkmcnt({12 - 4*tt})")
        for jj in range(4):
            c = "0" if (tt == 0 and jj == 0) else v(vS,4)
            A(f"v_mfma_f32_16x16x32_bf16 {v(vS,4)}, {v(vK+16*tt+4*jj,4)}, {v(vV+16*tt+4*jj,4)}, {c}")
    ts("s_issued")
    A(f"s_mov_b32 {s(sC0)}, 0x3db504f3")
    A(f"s_mov_b32 {s(sC0+1)}, 0x3db504f3")
    A.nop(6)
    A(f"""
      v_cvt_pk_bf16_f32 {v(vU)}, {v(vS)}, {v(vS+1)}
      v_cvt_pk_bf16_f32 {v(vU+1)}, {v(vS+2)}, {v(vS+3)}
      v_lshlrev_b32 {v(vS)}, 16, {v(vU)}
      v_and_b32 {v(vS+1)}, 0xffff0000, {v(vU)}
      v_lshlrev_b32 {v(vS+2)}, 16, {v(vU+1)}
      v_and_b32 {v(vS+3)}, 0xffff0000, {v(vU+1)}
      v_pk_mul_f32 {v(vS,2)}, {v(vS,2)}, {s(sC0,2)}
      v_pk_mul_f32 {v(vS+2,2)}, {v(vS+2,2)}, {s(sC0,2)}
      v_cvt_pk_bf16_f32 {v(vU)}, {v(vS)}, {v(vS+1)}
      v_cvt_pk_bf16_f32 {v(vU+1)}, {v(vS+2)}, {v(vS+3)}
      v_lshlrev_b32 {v(vS)}, 16, {v(vU)}
      v_and_b32 {v(vS+1)}, 0xffff0000, {v(vU)}
      v_lshlrev_b32 {v(vS+2)}, 16, {v(vU+1)}
      v_and_b32 {v(vS+3)}, 0xffff0000, {v(vU+1)}
      v_max3_f32 {v(vT0)}, {v(vS)}, {v(vS+1)}, {v(vS+2)}
      v_max_f32 {v(vT0)}, {v(vT0)}, {v(vS+3)}
    """)
    def quad(r, op):
        for ctrl in ("quad_perm:[1,0,3,2]", "quad_perm:[2,3,0,1]"):
            A.nop(2)
            A(f"{op}_dpp {v(r)}, {v(r)}, {v(r)} {ctrl} row_mask:0xf bank_mask:0xf")
    quad(vT0, "v_max_f32")
    xrow(vT0, vT1, "v_max_f32")
    A(f"ds_write_b32 {v(vT3)}, {v(vT0)} offset:{L_MX}")
    ts("preM")
    swbar(8, 4)
    ts("barM")
    A(f"""
      ds_read_b128 {v(vU,4)}, {v(vT2)} offset:{L_MX}
      s_mov_b32 {s(sC0)}, 0x3fb8aa3b
      s_waitcnt lgkmcnt(0)
      v_max3_f32 {v(vT0)}, {v(vU)}, {v(vU+1)}, {v(vU+2)}
      v_max_f32 {v(vT0)}, {v(vT0)}, {v(vU+3)}
      v_mul_f32 {v(vT0)}, {s(sC0)}, {v(vT0)}
    """)
    for i in range(4):
        A(f"v_fma_f32 {v(vS+i)}, {v(vS+i)}, {s(sC0)}, -{v(vT0)}")
    for i in range(4):
        A(f"v_exp_f32 {v(vS+i)}, {v(vS+i)}")
    A.nop(1)
    A(f"v_add_f32 {v(vU)}, {v(vS)}, {v(vS+1)}")
    A(f"v_add_f32 {v(vU+1)}, {v(vS+2)}, {v(vS+3)}")
    for i in range(4):
        A(f"v_cvt_pk_bf16_f32 {v(vS+i)}, {v(vS+i)}, {v(vS+i)}")
    A(f"v_add_f32 {v(vT1)}, {v(vU)}, {v(vU+1)}")
    for tt in range(4):
        for r in range(4):
            i = 4*tt + r
            A(f"v_and_b32_dpp {v(vK+2*i)}, {v(vS+r)}, {v(vM0)} quad_perm:[{tt},{tt},{tt},{tt}] row_mask:0xf bank_mask:0xf")
            A(f"v_and_b32_dpp {v(vK+2*i+1)}, {v(vS+r)}, {v(vM1)} quad_perm:[{tt},{tt},{tt},{tt}] row_mask:0xf bank_mask:0xf")
        if tt == 0:
            A(f"v_add_f32_dpp {v(vT1)}, {v(vT1)}, {v(vT1)} quad_perm:[1,0,3,2] row_mask:0xf bank_mask:0xf")
        if tt == 1:
            A(f"v_add_f32_dpp {v(vT1)}, {v(vT1)}, {v(vT1)} quad_perm:[2,3,0,1] row_mask:0xf bank_mask:0xf")
    xrow(vT1, vT4, "v_add_f32")
    A(f"ds_write_b32 {v(vT3)}, {v(vT1)} offset:{L_LS}")
    ts("p_done")
    vST = vQ
    def issue_st():
        A(f"global_load_dwordx4 {v(vST,4)}, {v(vAst)}, {s(sWS,2)} sc1")
        A(f"global_load_dwordx4 {v(vST+4,4)}, {v(vAst)}, {s(sWS,2)} offset:128 sc1")
    A(f"global_load_dwordx4 {v(vWO+16,4)}, {v(vAw0)}, {s(sWDb,2)}{NT}")
    A(f"global_load_dwordx4 {v(vWO+20,4)}, {v(vAw1)}, {s(sWDb,2)}{NT}")
    A(f"global_load_dwordx4 {v(vWO,4)}, {v(vAw0)}, {s(sWb,2)}{NT}")
    A(f"global_load_dwordx4 {v(vWO+4,4)}, {v(vAw1)}, {s(sWb,2)}{NT}")
    A(f"v_add_u32 {v(vAw2)}, 0x2000, {v(vAw0)}")
    A(f"global_load_dwordx4 {v(vWO+8,4)}, {v(vAw2)}, {s(sWb,2)}{NT}")
    A(f"v_add_u32 {v(vAw2)}, 0x3000, {v(vAw0)}")
    A(f"global_load_dwordx4 {v(vWO+12,4)}, {v(vAw2)}, {s(sWb,2)}{NT}")
    A(f"""
      s_lshl_b32 {s(sT0)}, {s(sWAVE)}, 4
      v_mov_b32 {v(vAsl)}, {s(sT0)}
      s_lshl_b32 {s(sT0)}, {s(sKVH)}, 2
      s_add_u32 {s(sT0)}, {s(sT0)}, {s(sWAVE)}
      s_lshl_b32 {s(sT0)}, {s(sT0)}, 9
      s_lshl_b32 {s(sT1)}, {s(sA)}, 4
      s_add_u32 {s(sT0)}, {s(sT0)}, {s(sT1)}
      s_add_u32 {s(sT0)}, {s(sT0)}, {WS_SG}
      v_mov_b32 {v(vAss)}, {s(sT0)}
    """)
    Lh = A.label("hw"); Lhd = A.label("hwd")
    A(f"s_cmp_ge_u32 s2, 224")
    A(f"s_cbranch_scc1 {Lhd}")
    lds_spin(16, sT3, f"s_cmp_eq_u32 {s(sT3)}, 0")
    A(f"{Lhd}:")
    A(f"""
      v_bfe_u32 {v(vT5)}, {v(vL)}, 3, 1
      v_lshlrev_b32 {v(vT5)}, 6, {v(vT5)}
      v_lshl_add_u32 {v(vT5)}, {v(vGq)}, 4, {v(vT5)}
      ds_read_b64 {v(vP,2)}, {v(vT5)} offset:{L_HV}
      v_mov_b32 {v(vT1)}, {s(sTAG)}
      s_waitcnt lgkmcnt(0)
    """)
    for i in range(2):
        for k in range(4):
            A(f"v_and_b32 {v(vP+4+4*i+k)}, {v(vP+i)}, {v(vMK+k)}")
    ts("h_done")
    A(f"s_add_u32 {s(sT2)}, {s(sWAVE)}, 17")
    def vreads(tau):
        for r in range(4):
            A(f"ds_read_b128 {v(vV+16*tau+4*r,4)}, {v(vAv)} offset:{16384*tau + 1024*r}")
    def pv(tau, base):
        for r in range(4):
            i = 4*tau + r
            A(f"s_waitcnt lgkmcnt({base + 3 - r})")
            c0 = "0" if i == 0 else v(vOA,4)
            c1 = "0" if i == 0 else v(vOA+4,4)
            A(f"v_mfma_f32_16x16x16_bf16 {v(vOA,4)}, {v(vK+2*i,2)}, {v(vV+16*tau+4*r,2)}, {c0}")
            A(f"v_mfma_f32_16x16x16_bf16 {v(vOA+4,4)}, {v(vK+2*i,2)}, {v(vV+16*tau+4*r+2,2)}, {c1}")
    wait_prog(s(sT2))
    vreads(0)
    for tau in range(4):
        if tau < 3:
            A(f"s_add_u32 {s(sT2)}, {s(sT2)}, 4")
            Lslow = A.label("pvs"); Ljoin = A.label("pvj")
            A(f"s_cmp_ge_u32 {s(sPROG)}, {s(sT2)}")
            A(f"s_cbranch_scc0 {Lslow}")
            vreads(tau + 1)
            pv(tau, 4)
            A(f"s_branch {Ljoin}")
            A(f"{Lslow}:")
            pv(tau, 0)
            wait_prog(s(sT2))
            vreads(tau + 1)
            A(f"{Ljoin}:")
        else:
            pv(tau, 0)
    ts("pv_done")
    A.nop(8)
    A(f"""
      ds_write_b128 {v(vAo)}, {v(vOA,4)}
      ds_write_b128 {v(vAo)}, {v(vOA+4,4)} offset:16
    """)
    if TS or opt.get("swy", 0):
        swbar(20, 4)
    else:
        A("s_waitcnt lgkmcnt(0)")
        A("s_barrier")
    A(f"""
      ds_read2st64_b32 {v(vU,2)}, {v(vAr0)} offset0:0 offset1:8
      ds_read2st64_b32 {v(vU+2,2)}, {v(vAr0)} offset0:16 offset1:24
      ds_read2st64_b32 {v(vU+4,2)}, {v(vAr1)} offset0:0 offset1:8
      ds_read2st64_b32 {v(vU+6,2)}, {v(vAr1)} offset0:16 offset1:24
      ds_read_b128 {v(vS,4)}, {v(vAsl)} offset:{L_LS}
      ds_read_b128 {v(vS+4,4)}, {v(vAsl)} offset:{L_MX}
      s_waitcnt lgkmcnt(4)
      v_pk_add_f32 {v(vU,2)}, {v(vU,2)}, {v(vU+2,2)}
      s_waitcnt lgkmcnt(2)
      v_pk_add_f32 {v(vU+4,2)}, {v(vU+4,2)}, {v(vU+6,2)}
      v_add_f32 {v(vU)}, {v(vU)}, {v(vU+1)}
      v_add_f32 {v(vU+4)}, {v(vU+4)}, {v(vU+5)}
      v_cvt_pk_bf16_f32 {v(vT0)}, {v(vU)}, {v(vU+4)}
    """)
    store_mode(f"global_store_dwordx2 {v(vAog)}, {v(vT0,2)}, {s(sWS,2)}")
    A(f"""
      s_waitcnt lgkmcnt(0)
      v_add_f32 {v(vS)}, {v(vS)}, {v(vS+1)}
      v_add_f32 {v(vS+2)}, {v(vS+2)}, {v(vS+3)}
      v_max3_f32 {v(vS+4)}, {v(vS+4)}, {v(vS+5)}, {v(vS+6)}
      v_add_f32 {v(vS+2)}, {v(vS)}, {v(vS+2)}
      v_max_f32 {v(vS)}, {v(vS+4)}, {v(vS+7)}
      v_mul_f32 {v(vS)}, {s(sC0)}, {v(vS)}
      v_mov_b32 {v(vS+1)}, {s(sTAG)}
      v_mov_b32 {v(vS+3)}, {s(sTAG)}
      s_mov_b64 exec, 1
    """)
    store_mode(f"global_store_dwordx4 {v(vAss)}, {v(vS,4)}, {s(sWS,2)}")
    A("s_mov_b64 exec, -1")
    ts("o_published")
    vOO = vV + 8
    def issue_o():
        A(f"global_load_dwordx4 {v(vOO,4)}, {v(vApo)}, {s(sWS,2)} sc1")
        A(f"global_load_dwordx4 {v(vOO+4,4)}, {v(vApo)}, {s(sWS,2)} offset:512 sc1")
    issue_st()
    issue_o()
    poll_simple(issue_st, [vST+1, vST+3, vST+5, vST+7], "st", 2)
    ts("st_done")
    def red8(regs, op):
        n = len(regs)
        for ctrl in ("quad_perm:[1,0,3,2]", "quad_perm:[2,3,0,1]", "row_half_mirror"):
            if n < 3: A.nop(3 - n)
            for r in regs:
                A(f"{op}_dpp {v(r)}, {v(r)}, {v(r)} {ctrl} row_mask:0xf bank_mask:0xf")
    A(f"v_max_f32 {v(vT2)}, {v(vST)}, {v(vST+4)}")
    red8([vT2], "v_max_f32")
    A(f"""
      v_sub_f32 {v(vT3)}, {v(vST)}, {v(vT2)}
      v_sub_f32 {v(vT4)}, {v(vST+4)}, {v(vT2)}
      v_exp_f32 {v(vT3)}, {v(vT3)}
      v_exp_f32 {v(vT4)}, {v(vT4)}
      s_nop 0
      v_mul_f32 {v(vT2)}, {v(vT3)}, {v(vST+2)}
      v_fma_f32 {v(vT2)}, {v(vT4)}, {v(vST+6)}, {v(vT2)}
    """)
    red8([vT2], "v_add_f32")
    A(f"""
      v_rcp_f32 {v(vT2)}, {v(vT2)}
      s_nop 0
      v_mul_f32 {v(vT3)}, {v(vT3)}, {v(vT2)}
      v_mul_f32 {v(vT4)}, {v(vT4)}, {v(vT2)}
    """)
    LskipB = A.label("skipB")
    A(f"s_cmp_ge_u32 s2, 224")
    A(f"s_cbranch_scc1 {LskipB}")
    for i in range(2):
        A(f"v_mfma_f32_16x16x32_bf16 {v(vD3,4)}, {v(vP+4+4*i,4)}, {v(vWO+16+4*i,4)}, {v(vD3,4)}")
    A(f"{LskipB}:")
    poll_pipe(issue_o, 2, [vOO+1, vOO+3, vOO+5, vOO+7], "h1", D1, 1, True)
    ts("h1_done")
    A(f"""
      v_lshlrev_b32 {v(vU)}, 16, {v(vOO)}
      v_and_b32 {v(vU+1)}, 0xffff0000, {v(vOO)}
      v_lshlrev_b32 {v(vU+2)}, 16, {v(vOO+2)}
      v_and_b32 {v(vU+3)}, 0xffff0000, {v(vOO+2)}
      v_lshlrev_b32 {v(vU+4)}, 16, {v(vOO+4)}
      v_and_b32 {v(vU+5)}, 0xffff0000, {v(vOO+4)}
      v_lshlrev_b32 {v(vU+6)}, 16, {v(vOO+6)}
      v_and_b32 {v(vU+7)}, 0xffff0000, {v(vOO+6)}
      v_pk_mul_f32 {v(vU,2)}, {v(vU,2)}, {v(vT3,2)} op_sel:[0,0] op_sel_hi:[1,0]
      v_pk_mul_f32 {v(vU+2,2)}, {v(vU+2,2)}, {v(vT3,2)} op_sel:[0,0] op_sel_hi:[1,0]
    """.replace(v(vT3,2), "XX")) if False else None
    A(f"""
      v_lshlrev_b32 {v(vU)}, 16, {v(vOO)}
      v_and_b32 {v(vU+1)}, 0xffff0000, {v(vOO)}
      v_lshlrev_b32 {v(vU+2)}, 16, {v(vOO+2)}
      v_and_b32 {v(vU+3)}, 0xffff0000, {v(vOO+2)}
      v_lshlrev_b32 {v(vU+4)}, 16, {v(vOO+4)}
      v_and_b32 {v(vU+5)}, 0xffff0000, {v(vOO+4)}
      v_lshlrev_b32 {v(vU+6)}, 16, {v(vOO+6)}
      v_and_b32 {v(vU+7)}, 0xffff0000, {v(vOO+6)}
    """)
    for i in range(4):
        A(f"v_mul_f32 {v(vU+i)}, {v(vU+i)}, {v(vT3)}")
    for i in range(4):
        A(f"v_fma_f32 {v(vU+i)}, {v(vU+4+i)}, {v(vT4)}, {v(vU+i)}")
    red8([vU, vU+1, vU+2, vU+3], "v_add_f32")
    for i in range(4):
        A(f"v_cvt_pk_bf16_f32 {v(vU+i)}, {v(vU+i)}, {v(vU+i)}")
    for i in range(4):
        for k in range(4):
            A(f"v_and_b32 {v(vQ+4*i+k)}, {v(vU+i)}, {v(vMK+k)}")
    A(f"v_mov_b32 {v(vU+5)}, {s(sTAG)}")
    A(f"v_mov_b32 {v(vU+7)}, {s(sTAG)}")
    for i in range(4):
        A(f"v_mfma_f32_16x16x32_bf16 {v(vD3,4)}, {v(vQ+4*i,4)}, {v(vWO+4*i,4)}, {v(vD3,4)}")
    A.nop(8)
    A(f"""
      v_cvt_pk_bf16_f32 {v(vU+4)}, {v(vD3)}, {v(vD3+1)}
      v_cvt_pk_bf16_f32 {v(vU+6)}, {v(vD3+2)}, {v(vD3+3)}
    """)
    store_mode(f"global_store_dwordx4 {v(vApg)}, {v(vU+4,4)}, {s(sWS,2)}")
    ts("p_published")
    def issue_r():
        A(f"global_load_dwordx4 {v(vK,4)}, {v(vAr)}, {s(sWS,2)} sc1")
    issue_r()
    A(f"v_mov_b32 {v(vT3)}, {s(sTAG)}")
    poll_pipe(issue_r, 1, [vK+1, vK+3], "h2", 1, 1, True)
    ts("h2_done")
    A(f"""
      v_lshlrev_b32 {v(vS)}, 16, {v(vK)}
      v_and_b32 {v(vS+1)}, 0xffff0000, {v(vK)}
      v_lshlrev_b32 {v(vS+2)}, 16, {v(vK+2)}
      v_and_b32 {v(vS+3)}, 0xffff0000, {v(vK+2)}
      s_nop 1
      v_permlane32_swap_b32 {v(vS)}, {v(vS+2)}
      v_permlane32_swap_b32 {v(vS+1)}, {v(vS+3)}
      v_add_f32 {v(vS)}, {v(vS)}, {v(vS+2)}
      v_add_f32 {v(vS+1)}, {v(vS+1)}, {v(vS+3)}
      s_nop 1
      v_permlane16_swap_b32 {v(vS)}, {v(vS+1)}
      v_add_f32 {v(vS)}, {v(vS)}, {v(vS+1)}
      s_nop 1
      v_add_f32_dpp {v(vS)}, {v(vS)}, {v(vS)} row_ror:8 row_mask:0xf bank_mask:0xf
      s_nop 1
      v_add_f32_dpp {v(vS)}, {v(vS)}, {v(vS)} row_ror:4 row_mask:0xf bank_mask:0xf
      s_nop 1
      v_add_f32_dpp {v(vT2)}, {v(vS)}, {v(vS)} quad_perm:[2,3,0,1] row_mask:0xf bank_mask:0xf
      s_mov_b64 exec, 0x0003000300030003
      global_store_dwordx2 {v(vAf)}, {v(vT2,2)}, {s(sWS,2)} sc1
      s_mov_b64 exec, -1
    """.replace("s_mov_b64 exec, 0x0003000300030003", f"s_mov_b32 exec_lo, 0x00030003\n      s_mov_b32 exec_hi, 0x00030003".replace("\\n", "\n")))
    ts("f_published")
    A(f"""
      s_and_b32 {s(sT0)}, {s(sA)}, 7
      s_cmp_lg_u32 {s(sT0)}, {s(sKVH)}
      s_cbranch_scc1 Lend
      s_cmp_lg_u32 {s(sWAVE)}, 0
      s_cbranch_scc1 Lend
      s_lshl_b32 {s(sT0)}, {s(sA)}, 11
      s_add_u32 {s(sT0)}, {s(sT0)}, {WS_FG}
      v_lshrrev_b32 {v(vT5)}, 3, {v(vL)}
      v_lshlrev_b32 {v(vT5)}, 8, {v(vT5)}
      v_and_b32 {v(vT0)}, 7, {v(vL)}
      v_lshl_add_u32 {v(vT5)}, {v(vT0)}, 4, {v(vT5)}
      v_add_u32 {v(vT5)}, {s(sT0)}, {v(vT5)}
      s_lshl_b32 {s(sT0)}, {s(sA)}, 6
      v_lshlrev_b32 {v(vT4)}, 2, {v(vT0)}
      v_add_u32 {v(vT4)}, {s(sT0)}, {v(vT4)}
      global_load_dword {v(vXR)}, {v(vT4)}, {s(sX,2)}
      global_load_dword {v(vXR+1)}, {v(vT4)}, {s(sX,2)} offset:32
    """)
    def issue_f():
        A(f"global_load_dwordx4 {v(vK+4,4)}, {v(vT5)}, {s(sWS,2)} sc1")
        A(f"global_load_dwordx4 {v(vK+8,4)}, {v(vT5)}, {s(sWS,2)} offset:128 sc1")
    poll_pipe(issue_f, 2, [vK+5, vK+7, vK+9, vK+11], "h3", 1, 0, True)
    ts("h3_done")
    A(f"""
      v_add_f32_dpp {v(vK+4)}, {v(vK+4)}, {v(vK+4)} row_ror:8 row_mask:0xf bank_mask:0xf
      v_add_f32_dpp {v(vK+6)}, {v(vK+6)}, {v(vK+6)} row_ror:8 row_mask:0xf bank_mask:0xf
      v_add_f32_dpp {v(vK+8)}, {v(vK+8)}, {v(vK+8)} row_ror:8 row_mask:0xf bank_mask:0xf
      v_add_f32_dpp {v(vK+10)}, {v(vK+10)}, {v(vK+10)} row_ror:8 row_mask:0xf bank_mask:0xf
      v_mov_b32 {v(vS)}, {v(vK+4)}
      v_mov_b32 {v(vS+1)}, {v(vK+6)}
      v_mov_b32 {v(vS+2)}, {v(vK+8)}
      v_mov_b32 {v(vS+3)}, {v(vK+10)}
      v_mov_b32 {v(vS+4)}, {v(vK+4)}
      v_mov_b32 {v(vS+5)}, {v(vK+6)}
      v_mov_b32 {v(vS+6)}, {v(vK+8)}
      v_mov_b32 {v(vS+7)}, {v(vK+10)}
      s_nop 1
    """)
    for sw in ("v_permlane16_swap_b32", "v_permlane32_swap_b32"):
        for i in range(4):
            A(f"{sw} {v(vS+i)}, {v(vS+4+i)}")
        for i in range(4):
            A(f"v_add_f32 {v(vS+i)}, {v(vS+i)}, {v(vS+4+i)}")
        if sw.startswith("v_permlane16"):
            for i in range(4):
                A(f"v_mov_b32 {v(vS+4+i)}, {v(vS+i)}")
            A.nop(1)
    A(f"""
      v_lshlrev_b32 {v(vS+8)}, 16, {v(vXR)}
      v_and_b32 {v(vS+9)}, 0xffff0000, {v(vXR)}
      v_lshlrev_b32 {v(vS+10)}, 16, {v(vXR+1)}
      v_and_b32 {v(vS+11)}, 0xffff0000, {v(vXR+1)}
      v_pk_add_f32 {v(vS,2)}, {v(vS,2)}, {v(vS+8,2)}
      v_pk_add_f32 {v(vS+2,2)}, {v(vS+2,2)}, {v(vS+10,2)}
      v_cvt_pk_bf16_f32 {v(vS)}, {v(vS)}, {v(vS+1)}
      v_cvt_pk_bf16_f32 {v(vS+2)}, {v(vS+2)}, {v(vS+3)}
      s_mov_b64 exec, 0xff
      global_store_dword {v(vT4)}, {v(vS)}, {s(sOUT,2)}
      global_store_dword {v(vT4)}, {v(vS+2)}, {s(sOUT,2)} offset:32
      s_cmp_lg_u32 {s(sA)}, 0
      s_cbranch_scc1 Lend
      v_mov_b32 {v(vT4)}, 0
      v_mov_b32 {v(vT5)}, {s(sTAG)}
      s_mov_b64 exec, 1
      global_store_dword {v(vT4)}, {v(vT5)}, {s(sWS,2)} sc1
      s_branch Lend
    """)
    A("Laux:")
    role[0] = "X"
    A("s_setprio 3")
    vWIN = vV
    vXS = vQ
    vDL, vDH = vOA, vOA + 4
    A(f"""
      s_sub_u32 {s(sROLE)}, {s(sWAVE)}, 4
      s_cmp_eq_u32 {s(sROLE)}, 0
      s_cselect_b32 {s(sT0)}, 0, s2
      s_cmp_ge_u32 {s(sT0)}, 224
      s_cbranch_scc1 Lend
      v_lshlrev_b32 {v(vT1)}, 4, {v(vL)}
      v_lshrrev_b32 {v(vT2)}, 3, {v(vL)}
      v_and_b32 {v(vT3)}, 7, {v(vL)}
      s_and_b32 {s(sKS)}, {s(sA)}, 3
      s_lshr_b32 {s(sT0)}, {s(sA)}, 2
      s_lshl_b32 {s(sT1)}, {s(sKVH)}, 3
      s_add_u32 {s(sT0)}, {s(sT0)}, {s(sT1)}
      s_lshl_b32 {s(sT0)}, {s(sT0)}, 7
      s_lshl_b32 {s(sT1)}, {s(sKS)}, 20
      s_add_u32 {s(sT2)}, {s(sT0)}, {s(sT1)}
      s_movk_i32 {s(sSTR)}, 0x2000
      s_cmp_eq_u32 {s(sROLE)}, 0
      s_cbranch_scc1 Laux_w
      s_and_b32 {s(sKS)}, s2, 3
      s_lshr_b32 {s(sT0)}, s2, 2
      s_cmp_ge_u32 {s(sT0)}, 28
      s_cselect_b32 {s(sT3)}, 1, 0
      s_cselect_b32 {s(sT1)}, 28, 0
      s_sub_u32 {s(sT0)}, {s(sT0)}, {s(sT1)}
      s_lshl_b32 {s(sT2)}, {s(sT0)}, 7
      s_mul_i32 {s(sT1)}, {s(sKS)}, {128*3584}
      s_add_u32 {s(sT2)}, {s(sT2)}, {s(sT1)}
      s_movk_i32 {s(sSTR)}, 3584
      s_mov_b32 {s(sTILE)}, {s(sT0)}
      s_mov_b32 {s(sTILE+1)}, {s(sT3)}
      s_waitcnt lgkmcnt(0)
      s_cmp_eq_u32 {s(sT3)}, 0
      s_cselect_b32 {s(sWQ)}, {s(sG)}, {s(sU)}
      s_cselect_b32 {s(sWQ+1)}, {s(sG+1)}, {s(sU+1)}
    """)
    A("Laux_w:")
    A(f"""
      v_mul_lo_u32 {v(vT2)}, {v(vT2)}, {s(sSTR)}
      v_lshl_add_u32 {v(vT2)}, {v(vT3)}, 4, {v(vT2)}
      s_lshl_b32 {s(sT0)}, {s(sKS)}, 8
      v_lshlrev_b32 {v(vT0)}, 2, {v(vL)}
      v_add_u32 {v(vT0)}, {s(sT0)}, {v(vT0)}
      s_lshl_b32 {s(sT0)}, {s(sSTR)}, 3
      s_waitcnt lgkmcnt(0)
      s_add_u32 {s(sWb)}, {s(sWQ)}, {s(sT2)}
      s_addc_u32 {s(sWb+1)}, {s(sWQ+1)}, 0
      global_load_dwordx4 {v(vU,4)}, {v(vT1)}, {s(sX,2)}
      global_load_dwordx4 {v(vU+4,4)}, {v(vT1)}, {s(sX,2)} offset:1024
      global_load_dword {v(vEP)}, {v(vT7)}, {s(sWS,2)} sc1
      global_load_dword {v(vXS)}, {v(vT0)}, {s(sX,2)}
      global_load_dword {v(vXS+1)}, {v(vT0)}, {s(sX,2)} offset:1024
    """)
    for i in range(16):
        A(f"global_load_dwordx4 {v(vK+4*i,4)}, {v(vT2)}, {s(sWb,2)}{NT}")
        if i < 15:
            A(f"v_add_u32 {v(vT2)}, {s(sT0)}, {v(vT2)}")
    ts("issK")
    A("s_barrier")
    for i in range(17):
        A(f"v_mov_b32 {v(vWIN+4*i)}, 0")
        A(f"v_mov_b32 {v(vWIN+4*i+1)}, 0")
    A(f"""
      s_mov_b32 {s(sT0)}, 0xffff
      s_mov_b32 {s(sT1)}, 0xffff0000
      v_and_b32 {v(vT4)}, 1, {v(vL)}
      v_cmp_eq_u32 vcc, 1, {v(vT4)}
      v_mov_b32 {v(vT5)}, {s(sT0)}
      v_mov_b32 {v(vT6)}, {s(sT1)}
      v_cndmask_b32 {v(vT5)}, {v(vT5)}, {v(vT6)}, vcc
      v_and_b32 {v(vT4)}, 2, {v(vL)}
      v_cmp_eq_u32 vcc, 0, {v(vT4)}
      s_nop 1
      v_cndmask_b32 {v(vM0)}, 0, {v(vT5)}, vcc
      v_cmp_ne_u32 vcc, 0, {v(vT4)}
      s_nop 1
      v_cndmask_b32 {v(vM1)}, 0, {v(vT5)}, vcc
    """)
    A(f"""
      s_lshl_b32 {s(sT0)}, {s(sROLE)}, 10
      v_and_b32 {v(vAX)}, 3, {v(vL)}
      v_lshlrev_b32 {v(vAX)}, 7, {v(vAX)}
      v_lshrrev_b32 {v(vT4)}, 2, {v(vL)}
      v_lshl_add_u32 {v(vAX)}, {v(vT4)}, 2, {v(vAX)}
      v_add_u32 {v(vAX)}, {s(sT0)}, {v(vAX)}
      v_bfe_u32 {v(vAX+1)}, {v(vL)}, 2, 1
      v_lshlrev_b32 {v(vAX+1)}, 9, {v(vAX+1)}
      v_lshl_add_u32 {v(vAX+1)}, {v(vGq)}, 7, {v(vAX+1)}
      v_bfe_u32 {v(vT4)}, {v(vL)}, 3, 1
      v_lshl_add_u32 {v(vAX+1)}, {v(vT4)}, 6, {v(vAX+1)}
      v_add_u32 {v(vAX+1)}, {s(sT0)}, {v(vAX+1)}
      v_lshlrev_b32 {v(vAX+2)}, 8, {v(vGq)}
      v_and_b32 {v(vT4)}, 7, {v(vL)}
      v_lshl_add_u32 {v(vAX+2)}, {v(vT4)}, 5, {v(vAX+2)}
      v_add_u32 {v(vAX+2)}, {s(sT0)}, {v(vAX+2)}
    """)
    A(f"""
      s_cmp_eq_u32 {s(sROLE)}, 0
      s_cbranch_scc0 Laux_g1
      v_and_b32 {v(vT5)}, 31, {v(vL)}
      v_lshrrev_b32 {v(vT6)}, 5, {v(vL)}
      v_lshlrev_b32 {v(vAX+3)}, 3, {v(vT5)}
      v_lshl_add_u32 {v(vAX+3)}, {v(vT6)}, 8, {v(vAX+3)}
      s_lshl_b32 {s(sT1)}, {s(sKVH)}, 15
      s_lshl_b32 {s(sT2)}, {s(sKS)}, 12
      s_add_u32 {s(sT1)}, {s(sT1)}, {s(sT2)}
      s_lshr_b32 {s(sT2)}, {s(sA)}, 2
      s_lshl_b32 {s(sT2)}, {s(sT2)}, 9
      s_add_u32 {s(sT1)}, {s(sT1)}, {s(sT2)}
      s_add_u32 {s(sT1)}, {s(sT1)}, {WS_QG}
      v_lshlrev_b32 {v(vT6)}, 14, {v(vT6)}
      v_lshl_add_u32 {v(vT5)}, {v(vT5)}, 4, {v(vT6)}
      v_add_u32 {v(vAX+4)}, {s(sT1)}, {v(vT5)}
      s_branch Laux_g2
    """)
    A("Laux_g1:")
    A(f"""
      v_lshrrev_b32 {v(vT5)}, 3, {v(vL)}
      v_and_b32 {v(vT6)}, 3, {v(vL)}
      v_lshl_add_u32 {v(vAX+3)}, {v(vT5)}, 2, {v(vT6)}
      v_lshlrev_b32 {v(vAX+3)}, 3, {v(vAX+3)}
      v_bfe_u32 {v(vT6)}, {v(vL)}, 2, 1
      v_lshl_add_u32 {v(vAX+3)}, {v(vT6)}, 8, {v(vAX+3)}
      v_add_u32 {v(vAX+3)}, 1024, {v(vAX+3)}
      s_lshl_b32 {s(sT1)}, {s(sTILE)}, 13
      s_lshl_b32 {s(sT2)}, {s(sTILE+1)}, 2
      s_add_u32 {s(sT2)}, {s(sT2)}, {s(sKS)}
      s_lshl_b32 {s(sT2)}, {s(sT2)}, 7
      s_add_u32 {s(sT1)}, {s(sT1)}, {s(sT2)}
      s_add_u32 {s(sT1)}, {s(sT1)}, {WS_GG}
      v_lshlrev_b32 {v(vT5)}, 10, {v(vT5)}
      v_and_b32 {v(vT6)}, 7, {v(vL)}
      v_lshl_add_u32 {v(vT5)}, {v(vT6)}, 4, {v(vT5)}
      v_add_u32 {v(vAX+4)}, {s(sT1)}, {v(vT5)}
    """)
    A("Laux_g2:")
    A("s_waitcnt vmcnt(16)")
    ts("issV")
    A(f"v_readfirstlane_b32 {s(sTAG)}, {v(vEP)}")
    for k in range(4):
        A(f"v_lshlrev_b32 {v(vP+4*k)}, 16, {v(vU+k)}")
        A(f"v_lshlrev_b32 {v(vP+4*k+1)}, 16, {v(vU+4+k)}")
        A(f"v_and_b32 {v(vP+4*k+2)}, 0xffff0000, {v(vU+k)}")
        A(f"v_and_b32 {v(vP+4*k+3)}, 0xffff0000, {v(vU+4+k)}")
    A(f"s_add_u32 {s(sTAG)}, {s(sTAG)}, 0x{TAG_DELTA:x}")
    def allreduce2(r0, r1, t0, t1, op="v_add_f32"):
        for sh in (8, 4, 2, 1):
            A.nop(1)
            A(f"{op}_dpp {v(r0)}, {v(r0)}, {v(r0)} row_ror:{sh} row_mask:0xf bank_mask:0xf")
            A(f"{op}_dpp {v(r1)}, {v(r1)}, {v(r1)} row_ror:{sh} row_mask:0xf bank_mask:0xf")
        for sw in ("v_permlane16_swap_b32", "v_permlane32_swap_b32"):
            A(f"v_mov_b32 {v(t0)}, {v(r0)}")
            A(f"v_mov_b32 {v(t1)}, {v(r1)}")
            A.nop(1)
            A(f"{sw} {v(r0)}, {v(t0)}")
            A(f"{sw} {v(r1)}, {v(t1)}")
            A(f"{op} {v(r0)}, {v(r0)}, {v(t0)}")
            A(f"{op} {v(r1)}, {v(r1)}, {v(t1)}")
    A(f"v_pk_add_f32 {v(vT0,2)}, {v(vP,2)}, {v(vP+2,2)}")
    A(f"v_pk_add_f32 {v(vT2,2)}, {v(vP+4,2)}, {v(vP+6,2)}")
    A(f"v_pk_add_f32 {v(vT4,2)}, {v(vP+8,2)}, {v(vP+10,2)}")
    A(f"v_pk_add_f32 {v(vU,2)}, {v(vP+12,2)}, {v(vP+14,2)}")
    A(f"v_pk_add_f32 {v(vT0,2)}, {v(vT0,2)}, {v(vT2,2)}")
    A(f"v_pk_add_f32 {v(vT4,2)}, {v(vT4,2)}, {v(vU,2)}")
    A(f"v_pk_add_f32 {v(vT0,2)}, {v(vT0,2)}, {v(vT4,2)}")
    A.nop(1)
    allreduce2(vT0, vT0+1, vT2, vT3)
    A(f"v_mul_f32 {v(vT0)}, 0x3b000000, {v(vT0)}")
    A(f"v_mul_f32 {v(vT0+1)}, 0x3b000000, {v(vT0+1)}")
    for i in range(8):
        A(f"v_pk_add_f32 {v(vP+2*i,2)}, {v(vP+2*i,2)}, {v(vT0,2)} neg_lo:[0,1] neg_hi:[0,1]")
    A(f"v_pk_mul_f32 {v(vT2,2)}, {v(vP,2)}, {v(vP,2)}")
    A(f"v_pk_mul_f32 {v(vT4,2)}, {v(vP+2,2)}, {v(vP+2,2)}")
    for i in range(2, 8):
        acc = vT2 if i % 2 == 0 else vT4
        A(f"v_pk_fma_f32 {v(acc,2)}, {v(vP+2*i,2)}, {v(vP+2*i,2)}, {v(acc,2)}")
    A(f"v_pk_add_f32 {v(vT2,2)}, {v(vT2,2)}, {v(vT4,2)}")
    A(f"v_lshlrev_b32 {v(vP)}, 16, {v(vXS)}")
    A(f"v_lshlrev_b32 {v(vP+1)}, 16, {v(vXS+1)}")
    A(f"v_and_b32 {v(vP+2)}, 0xffff0000, {v(vXS)}")
    A(f"v_and_b32 {v(vP+3)}, 0xffff0000, {v(vXS+1)}")
    allreduce2(vT2, vT3, vT4, vT5)
    A(f"v_mul_f32 {v(vT2)}, 0x3b000000, {v(vT2)}")
    A(f"v_mul_f32 {v(vT3)}, 0x3b000000, {v(vT3)}")
    rnd_pair(vT0, vT6)
    rnd_pair(vT2, vT6)
    A(f"v_add_f32 {v(vT2)}, 0x3727c5ac, {v(vT2)}")
    A(f"v_add_f32 {v(vT3)}, 0x3727c5ac, {v(vT3)}")
    A(f"v_pk_add_f32 {v(vP,2)}, {v(vP,2)}, {v(vT0,2)} neg_lo:[0,1] neg_hi:[0,1]")
    A(f"v_pk_add_f32 {v(vP+2,2)}, {v(vP+2,2)}, {v(vT0,2)} neg_lo:[0,1] neg_hi:[0,1]")
    rnd_pair(vT2, vT6)
    A(f"v_sqrt_f32 {v(vT2)}, {v(vT2)}")
    A(f"v_sqrt_f32 {v(vT3)}, {v(vT3)}")
    rnd_pair(vP, vT6)
    rnd_pair(vP+2, vT6)
    rnd_pair(vT2, vT6)
    A(f"v_rcp_f32 {v(vT2)}, {v(vT2)}")
    A(f"v_rcp_f32 {v(vT3)}, {v(vT3)}")
    A.nop(1)
    A(f"v_pk_mul_f32 {v(vP,2)}, {v(vP,2)}, {v(vT2,2)}")
    A(f"v_pk_mul_f32 {v(vP+2,2)}, {v(vP+2,2)}, {v(vT2,2)}")
    for k in range(4):
        A(f"v_cvt_pk_bf16_f32 {v(vP+k)}, {v(vP+k)}, {v(vP+k)}")
    A(f"""
      ds_write_b32 {v(vAX)}, {v(vP)} offset:{L_XB}
      ds_write_b32 {v(vAX)}, {v(vP+1)} offset:{L_XB+512}
      ds_write_b32 {v(vAX)}, {v(vP+2)} offset:{L_XB+64}
      ds_write_b32 {v(vAX)}, {v(vP+3)} offset:{L_XB+512+64}
    """)
    for k in range(4):
        A(f"ds_read_b128 {v(vS+4*k,4)}, {v(vAX+1)} offset:{L_XB + 16*k}")
    ts("issW")
    for k in range(4):
        A(f"s_waitcnt lgkmcnt({3-k})")
        for j in range(4):
            i = 4*k + j
            A(f"v_and_b32 {v(vWIN+4*i+2)}, {v(vS+i)}, {v(vM0)}")
            A(f"v_and_b32 {v(vWIN+4*i+3)}, {v(vS+i)}, {v(vM1)}")
    A(f"v_mov_b32 {v(vU+1)}, {s(sTAG)}")
    A(f"v_mov_b32 {v(vU+3)}, {s(sTAG)}")
    for i in range(16):
        A(f"s_waitcnt vmcnt({15 - i})")
        c0 = "0" if i == 0 else v(vDL,4)
        c1 = "0" if i == 0 else v(vDH,4)
        A(f"v_mfma_f32_16x16x32_bf16 {v(vDL,4)}, {v(vWIN+4*i+2,4)}, {v(vK+4*i,4)}, {c0}")
        A(f"v_mfma_f32_16x16x32_bf16 {v(vDH,4)}, {v(vWIN+4*i,4)}, {v(vK+4*i,4)}, {c1}")
    ts("Kdone")
    A(f"""
      s_mov_b32 exec_lo, 0x00ff00ff
      s_mov_b32 exec_hi, 0xff00ff00
    """)
    A.nop(6)
    A(f"""
      ds_write_b128 {v(vAX+2)}, {v(vDL,4)} offset:{L_TR}
      ds_write_b128 {v(vAX+2)}, {v(vDH,4)} offset:{L_TR+16}
      s_mov_b64 exec, -1
      ds_read_b64 {v(vT0,2)}, {v(vAX+3)} offset:{L_TR}
      ds_read_b64 {v(vT2,2)}, {v(vAX+3)} offset:{L_TR+512}
      s_waitcnt lgkmcnt(0)
      v_add_f32 {v(vU)}, {v(vT0)}, {v(vT2)}
      v_add_f32 {v(vU+2)}, {v(vT0+1)}, {v(vT3)}
      global_store_dwordx4 {v(vAX+4)}, {v(vU,4)}, {s(sWS,2)} sc1
      s_cmp_lg_u32 {s(sROLE)}, 0
      s_cbranch_scc1 Laux_h
      s_lshl_b32 {s(sT0)}, {s(sKVH)}, 8
      s_lshl_b32 {s(sT1)}, {s(sA)}, 3
      s_add_u32 {s(sT0)}, {s(sT0)}, {s(sT1)}
      s_add_u32 {s(sT0)}, {s(sT0)}, {WS_XG}
      v_mov_b32 {v(vT0)}, {s(sT0)}
      v_mov_b32 {v(vT2)}, {s(sXCC)}
      v_mov_b32 {v(vT3)}, {s(sTAG)}
      s_mov_b64 exec, 1
      global_store_dwordx2 {v(vT0)}, {v(vT2,2)}, {s(sWS,2)} sc1
    """)
    ts("p_done")
    A("s_branch Lend")
    A("Laux_h:")
    ts("p_done")
    vGP = vU
    A(f"""
      s_lshl_b32 {s(sT0)}, s2, 10
      s_add_u32 {s(sT0)}, {s(sT0)}, {WS_GG}
      v_lshlrev_b32 {v(vT4)}, 4, {v(vL)}
      v_add_u32 {v(vAX+5)}, {s(sT0)}, {v(vT4)}
      v_mov_b32 {v(vCT)}, 0
      v_mov_b32 {v(vONE)}, 1
    """)
    def issue_g():
        A(f"global_load_dwordx4 {v(vGP,4)}, {v(vAX+5)}, {s(sWS,2)} sc1")
    wait_prog(QT)
    issue_g()
    poll_simple(issue_g, [vGP+1, vGP+3], "g", 0)
    for r in (vGP, vGP+2):
        A.nop(2)
        A(f"v_add_f32_dpp {v(r)}, {v(r)}, {v(r)} row_ror:8 row_mask:0xf bank_mask:0xf")
        A(f"v_mov_b32 {v(vT0)}, {v(r)}")
        A.nop(2)
        A(f"v_permlane16_swap_b32 {v(r)}, {v(vT0)}")
        A(f"v_add_f32 {v(r)}, {v(r)}, {v(vT0)}")
    for r, tt in ((vGP, vGP+1), (vGP+2, vGP+3)):
        A(f"v_mov_b32 {v(tt)}, {v(r)}")
        A.nop(2)
        A(f"v_permlane32_swap_b32 {v(r)}, {v(tt)}")
    A(f"""
      v_cvt_pk_bf16_f32 {v(vT6)}, {v(vGP)}, {v(vGP+2)}
      v_cvt_pk_bf16_f32 {v(vT7)}, {v(vGP+1)}, {v(vGP+3)}
      v_lshlrev_b32 {v(vS+8)}, 16, {v(vT6)}
      v_and_b32 {v(vS+9)}, 0xffff0000, {v(vT6)}
      v_lshlrev_b32 {v(vS+10)}, 16, {v(vT7)}
      v_and_b32 {v(vS+11)}, 0xffff0000, {v(vT7)}
      s_mov_b32 {s(sC0)}, 0xbfb8aa3b
      v_mul_f32 {v(vS+8)}, {s(sC0)}, {v(vS+8)}
      v_mul_f32 {v(vS+9)}, {s(sC0)}, {v(vS+9)}
      v_exp_f32 {v(vS+8)}, {v(vS+8)}
      v_exp_f32 {v(vS+9)}, {v(vS+9)}
      s_nop 0
      v_add_f32 {v(vS+8)}, 1.0, {v(vS+8)}
      v_add_f32 {v(vS+9)}, 1.0, {v(vS+9)}
      v_rcp_f32 {v(vS+8)}, {v(vS+8)}
      v_rcp_f32 {v(vS+9)}, {v(vS+9)}
      s_nop 0
      v_cvt_pk_bf16_f32 {v(vT6)}, {v(vS+8)}, {v(vS+9)}
      v_lshlrev_b32 {v(vS+8)}, 16, {v(vT6)}
      v_and_b32 {v(vS+9)}, 0xffff0000, {v(vT6)}
      v_pk_mul_f32 {v(vS+8,2)}, {v(vS+8,2)}, {v(vS+10,2)}
      v_cvt_pk_bf16_f32 {v(vS+12)}, {v(vS+8)}, {v(vS+8)}
      v_cvt_pk_bf16_f32 {v(vS+13)}, {v(vS+9)}, {v(vS+9)}
      v_bfe_u32 {v(vT4)}, {v(vL)}, 2, 1
      v_lshlrev_b32 {v(vT4)}, 6, {v(vT4)}
      v_and_b32 {v(vT5)}, 1, {v(vL)}
      v_lshl_add_u32 {v(vT4)}, {v(vT5)}, 5, {v(vT4)}
      v_bfe_u32 {v(vT5)}, {v(vL)}, 1, 1
      v_lshl_add_u32 {v(vT4)}, {v(vT5)}, 2, {v(vT4)}
      ds_write_b32 {v(vT4)}, {v(vS+12)} offset:{L_HV}
      ds_write_b32 {v(vT4)}, {v(vS+13)} offset:{L_HV+16}
      ds_write_b32 {v(vCT)}, {v(vONE)} offset:{L_CT + 16}
    """)
    ts("h_done")
    A("s_branch Lend")
    A("Lload:")
    role[0] = "X"
    A("s_setprio 3")
    A(f"""
      s_lshl_b32 {s(sT0)}, {s(sB)}, 3
      s_add_u32 {s(sT0)}, {s(sT0)}, {s(sKVH)}
      s_lshl_b32 {s(sT0)}, {s(sT0)}, 23
      s_and_b32 {s(sT1)}, {s(sA)}, 15
      s_lshl_b32 {s(sT1)}, {s(sT1)}, 16
      s_add_u32 {s(sT0)}, {s(sT0)}, {s(sT1)}
      s_add_u32 {s(sT2)}, {s(sT0)}, 0x700000
      v_lshlrev_b32 {v(vT4)}, 2, {v(vGq)}
      v_xor_b32 {v(vT4)}, {v(vT4)}, {v(vN)}
      v_lshlrev_b32 {v(vT5)}, 8, {v(vGq)}
      v_lshlrev_b32 {v(vQ+4)}, 4, {v(vL)}
      v_lshlrev_b32 {v(vT0)}, 2, {v(vL)}
      v_mov_b32 {v(vT1)}, 0
      ds_write_b32 {v(vT0)}, {v(vT1)} offset:{L_ZB}
      s_mov_b64 exec, 0xff
      ds_write_b32 {v(vT0)}, {v(vT1)} offset:{L_CT}
      s_mov_b64 exec, -1
    """)
    for i in range(4):
        A(f"v_xor_b32 {v(vT6)}, {i}, {v(vT4)}")
        A(f"v_lshl_add_u32 {v(vQ+i)}, {v(vT6)}, 4, {v(vT5)}")
    A(f"""
      s_mov_b32 {s(sSRK+2)}, 0x10000
      s_mov_b32 {s(sSRK+3)}, 0x20000
      s_mov_b32 {s(sSRV+2)}, 0x10000
      s_mov_b32 {s(sSRV+3)}, 0x20000
      s_waitcnt lgkmcnt(0)
      s_add_u32 {s(sSRK)}, {s(sK)}, {s(sT2)}
      s_addc_u32 {s(sSRK+1)}, {s(sK+1)}, 0
      s_and_b32 {s(sSRK+1)}, {s(sSRK+1)}, 0xffff
      s_add_u32 {s(sSRV)}, {s(sV)}, {s(sT2)}
      s_addc_u32 {s(sSRV+1)}, {s(sV+1)}, 0
      s_and_b32 {s(sSRV+1)}, {s(sSRV+1)}, 0xffff
      s_mov_b32 {s(sT3)}, 0
      s_mov_b32 {s(sTILE)}, {L_KL}
      s_barrier
    """)
    ts("issK")
    for ph, srd in ((0, sSRK), (1, sSRV)):
        w = WT if ph == 0 else WT2
        Ll = A.label("ld")
        A(f"{Ll}:")
        A(f"""
          s_add_u32 {s(sT0)}, {s(sT3)}, {s(sA)}
          s_and_b32 {s(sT0)}, {s(sT0)}, 15
          s_lshl_b32 {s(sT0)}, {s(sT0)}, 12
          s_sub_u32 {s(sT2)}, {s(sT3)}, {w - 1}
          s_max_i32 {s(sT2)}, {s(sT2)}, {s(sPROG)}
          s_waitcnt vmcnt({4*(w-1)})
          s_mov_b32 {s(sPROG)}, {s(sT2)}
          v_mov_b32 {v(vT1)}, {s(sT2)}
          ds_write_b32 {v(vCT)}, {v(vT1)} offset:{L_CT}
        """)
        for i in range(4):
            A(f"s_add_u32 m0, {s(sTILE)}, {1024*i}")
            A(f"s_add_u32 {s(sT1)}, {s(sT0)}, {1024*i}")
            off = vQ + i if ph == 0 else vQ + 4
            A(f"buffer_load_dwordx4 {v(off)}, {s(srd,4)}, {s(sT1)} offen{NT} lds")
        A(f"""
          s_add_u32 {s(sTILE)}, {s(sTILE)}, 4096
          s_add_u32 {s(sT3)}, {s(sT3)}, 1
          s_cmp_lt_u32 {s(sT3)}, {16*(ph+1)}
          s_cbranch_scc1 {Ll}
        """)
        ts("issV" if ph == 0 else "issW")
    for k in range(WT2 - 1, -1, -1):
        A(f"s_waitcnt vmcnt({4*k})")
        A(f"v_mov_b32 {v(vT1)}, {32 - k}")
        A(f"ds_write_b32 {v(vCT)}, {v(vT1)} offset:{L_CT}")
    ts("Kdone")
    A("Lend:")
    if TS:
        ts("end")
        A("s_waitcnt lgkmcnt(0)")
        A(f"""
          s_mov_b64 exec, 1
          s_mul_i32 {s(sT0)}, s2, 7
          s_add_u32 {s(sT0)}, {s(sT0)}, {s(sWAVE)}
          s_lshl_b32 {s(sT0)}, {s(sT0)}, 7
          s_add_u32 {s(sT0)}, {s(sT0)}, {WS_TS}
          v_mov_b32 {v(vT4)}, {s(sT0)}
        """)
        for k in range(19):
            A(f"v_mov_b32 {v(vT5)}, {s(64+2*k)}")
            A(f"global_store_dword {v(vT4)}, {v(vT5)}, {s(sWS,2)} offset:{4*k}")
    if LTS:
        Ll = A.label("lts")
        A(f"""
          s_cmp_lg_u32 {s(sWAVE)}, 0
          s_cbranch_scc1 {Ll}
          s_memrealtime s[66:67]
          s_lshl_b32 {s(sT0)}, s2, 3
          s_add_u32 {s(sT0)}, {s(sT0)}, {WS_TS}
          v_mov_b32 {v(vT4)}, {s(sT0)}
          s_waitcnt lgkmcnt(0)
          v_mov_b32 {v(vT0)}, s64
          v_mov_b32 {v(vT1)}, s66
          s_mov_b64 exec, 1
          global_store_dwordx2 {v(vT4)}, {v(vT0,2)}, {s(sWS,2)}
        """)
        A(f"{Ll}:")
    A("Lexit:")
    A("s_endpgm")
    A("Lcode_end:")
    A(f".set CODE_CHUNKS, (Lcode_end-{NAME})/1024")
    hdr = f"""; Fused decode step:  out = x + Attn(LN(x)) @ wo + (sigmoid(LN(x) Wg) * (LN(x) Wu)) @ Wd      (generated by gen/gen10.py)
;
; @launch grid=(256,1,1) block=(448,1,1) lds={LDS_BYTES}
.amdgcn_target "amdgcn-amd-amdhsa--gfx950"
.text
.globl {NAME}
.p2align 8
.type {NAME},@function
{NAME}:
"""
    ftr = f"""
.section .rodata,"a"
.p2align 6
.amdhsa_kernel {NAME}
  .amdhsa_next_free_vgpr {NV}
  .amdhsa_next_free_sgpr 102
  .amdhsa_accum_offset {NV}
  .amdhsa_group_segment_fixed_size 0
  .amdhsa_kernarg_size 96
  .amdhsa_user_sgpr_count 2
  .amdhsa_user_sgpr_kernarg_segment_ptr 1
  .amdhsa_system_sgpr_workgroup_id_x 1
.end_amdhsa_kernel
"""
    return hdr + A.text() + ftr, (ts_map if TS else None)

if __name__ == "__main__":
    out = sys.argv[1]
    opt = {}
    for a in sys.argv[2:]:
        k, val = a.split("=")
        opt[k] = int(val)
    txt, slots = gen(opt)
    open(out, "w").write(txt)
    print("wrote", out, "ts slots:", slots)
```

```python
import sys

NAME = "parallel_sum__sliding_block_cached__glu_gated_glu__decode_kernel"
NWAVES = 7
NAWAVES = 4

class Asm:
    def __init__(self):
        self.lines = []
        self.uid = 0
    def __call__(self, s):
        for ln in s.strip("\n").split("\n"):
            t = ln.strip()
            if not t: continue
            self.lines.append(t if t.endswith(":") else "  " + t)
    def label(self, base):
        self.uid += 1
        return f"L{base}_{self.uid}"
    def nop(self, n):
        while n > 0:
            k = min(n, 16)
            self(f"s_nop {k-1}")
            n -= k
    def text(self):
        return "\n".join(self.lines) + "\n"

def v(i, n=1):
    return f"v{i}" if n == 1 else f"v[{i}:{i+n-1}]"
def s(i, n=1):
    return f"s{i}" if n == 1 else f"s[{i}:{i+n-1}]"

WS_EPOCH = 0
WS_XG = 0x8000
WS_SG = 0x10000
WS_QG = 0x40000
WS_GG = 0x80000
WS_OG = 0x100000
WS_RG = 0x200000
WS_FG = 0x300000
WS_TS = 0x800000
TAG_DELTA = 0x9E3779B9

L_XB = 0
L_TR = 2048
L_QB = 4096
L_MX = 5120
L_LS = 5184
L_HV = 5248
L_CT = 5440
L_ZB = 5504
L_OP = 6144
L_KL = 16384
L_VL = 81920
LDS_BYTES = 147456

def gen(opt):
    A = Asm()
    TS = opt.get("ts", 0)
    LTS = opt.get("lts", 0)
    NT = " nt" if opt.get("nt", 1) else ""
    WIN = opt.get("win", 8)
    NTH = opt.get("nth", 17)
    QT = opt.get("qt", 8)
    WT = opt.get("wt", 8)
    WT2 = opt.get("wt2", 11)
    PT = opt.get("pt", 1)
    SPIN = opt.get("spin", 400000)
    CPF = opt.get("cpf", 1)
    FASTOK = opt.get("fast", 1)
    D1 = opt.get("d1", 2)
    D2 = opt.get("d2", 1)
    PGS = opt.get("pgs", 4352)
    role = ["A"]
    ts_map = {"A": ["start"], "X": ["start"]}
    SKIP = set(opt.get("_skip", ["issK", "q_done", "h_done", "q_n", "st_n"] + (["h1_n", "h2_n", "h3_n", "issQ"] if opt.get("det") else ["s_issued", "preM", "barM", "preS"]) + ["issV"]))
    def slot(name):
        if name == "start": return 0
        if name == "end": return 18
        l = ts_map[role[0]]
        if name not in l: l.append(name)
        assert len(l) <= 18, l
        return l.index(name)
    def ts(name):
        if TS and not (role[0] == "A" and name in SKIP):
            A(f"s_memrealtime {s(64 + 2*slot(name), 2)}")

    sX, sK, sV, sWQ, sWO, sBX, sG, sU = 4, 6, 8, 10, 12, 14, 16, 18
    sWD, sOUT, sDBG, sWS = 20, 22, 24, 26
    sKVH, sA, sB, sTAG, sWAVE = 28, 29, 30, 31, 32
    sT0, sT1, sT2, sT3 = 33, 34, 35, 36
    sSPIN = 37
    sC0 = 38
    sEX = 40
    sXCC, sMODE = 42, 43
    sSRK = 44
    sSRV = 48
    sWb = 52
    sWDb = 54
    sSTR = 56
    sKS = 57
    sTILE = 58
    sROLE = 62
    sPROG = 63
    vL, vN, vGq = 1, 2, 3
    vT0, vT1, vT2, vT3, vT4, vT5, vT6, vT7 = 4, 5, 6, 7, 8, 9, 10, 11
    vM0, vM1 = 12, 13
    vMK = 14
    vEP = 18
    vXR = 18
    vOA = 20
    vD3 = 28
    vQ = 32
    vS = 48
    vK = 64
    vV = 128
    vWO = 192
    vP = 216
    vU = 232
    vAX = 240
    NV = 256
    vAq, vAg, vAx, vAw0, vAw1, vAw2 = vAX, vAX+4, vAX+5, vAX+6, vAX+7, vAX+8
    vAo, vAr0, vAr1, vAog, vAst, vApo, vApg = vAX+9, vAX+10, vAX+11, vAX+12, vAX+13, vAX+14, vAX+15
    vAr, vAf = vAX+4, vP+15
    vCT, vONE = vP+14, vP+13
    vAsl, vAss = vP+12, 19
    vAk = vS + 4
    vAv = vS + 8
    vAm = vS + 9

    def xrow(r, t, op):
        for sw in ("v_permlane16_swap_b32", "v_permlane32_swap_b32"):
            A(f"v_mov_b32 {v(t)}, {v(r)}")
            A.nop(2)
            A(f"{sw} {v(r)}, {v(t)}")
            A(f"{op} {v(r)}, {v(r)}, {v(t)}")
    def rnd_pair(r, t):
        A(f"v_cvt_pk_bf16_f32 {v(t)}, {v(r)}, {v(r+1)}")
        A(f"v_lshlrev_b32 {v(r)}, 16, {v(t)}")
        A(f"v_and_b32 {v(r+1)}, 0xffff0000, {v(t)}")
    def check(regs):
        tmp = [vT6, vT7, vU+6]
        first = True
        i = 0
        regs = list(regs)
        A(f"v_xor_b32 {v(vT6)}, {s(sTAG)}, {v(regs[0])}")
        i = 1
        while i < len(regs):
            if i + 1 < len(regs):
                A(f"v_xor_b32 {v(vT7)}, {s(sTAG)}, {v(regs[i])}")
                A(f"v_xor_b32 {v(vU+6)}, {s(sTAG)}, {v(regs[i+1])}")
                A(f"v_or3_b32 {v(vT6)}, {v(vT6)}, {v(vT7)}, {v(vU+6)}")
                i += 2
            else:
                A(f"v_xor_b32 {v(vT7)}, {s(sTAG)}, {v(regs[i])}")
                A(f"v_or_b32 {v(vT6)}, {v(vT6)}, {v(vT7)}")
                i += 1
        A(f"v_cmp_ne_u32 vcc, 0, {v(vT6)}")
    def poll_simple(issue, tagregs, name, waitn):
        Lr = A.label(name + "_retry"); Lk = A.label(name + "_ok")
        if TS and name + "_n" not in SKIP and name != "g": A(f"s_mov_b32 {s(64+2*slot(name + '_n'))}, 0")
        A(f"s_waitcnt vmcnt({waitn})")
        check(tagregs)
        A(f"s_cbranch_vccz {Lk}")
        A(f"s_mov_b32 {s(sSPIN)}, {SPIN}")
        A(f"{Lr}:")
        A("s_mov_b64 exec, vcc")
        issue()
        A("s_waitcnt vmcnt(0)")
        check(tagregs)
        A(f"s_cbranch_vccz {Lk}_x")
        A(f"s_sub_u32 {s(sSPIN)}, {s(sSPIN)}, 1")
        A(f"s_cmp_lg_u32 {s(sSPIN)}, 0")
        A(f"s_cbranch_scc1 {Lr}")
        A(f"{Lk}_x:")
        A("s_mov_b64 exec, -1")
        if TS and name + "_n" not in SKIP and name != "g": A(f"s_sub_u32 {s(64+2*slot(name + '_n'))}, {SPIN+1}, {s(sSPIN)}")
        A(f"{Lk}:")
    def poll_pipe(issue, nld, tagregs, name, depth, primed, masked):
        Lr = A.label(name + "_loop"); Lk = A.label(name + "_ok"); Lf = A.label(name + "_first")
        A(f"s_mov_b32 {s(sSPIN)}, {SPIN}")
        if primed >= depth:
            A(f"s_branch {Lf}")
        else:
            for _ in range(depth - 1 - primed): issue()
        A(f"{Lr}:")
        issue()
        A(f"{Lf}:")
        A(f"s_waitcnt vmcnt({nld*(depth-1)})")
        check(tagregs)
        A(f"s_cbranch_vccz {Lk}")
        if masked: A("s_mov_b64 exec, vcc")
        A(f"s_sub_u32 {s(sSPIN)}, {s(sSPIN)}, 1")
        A(f"s_cmp_lg_u32 {s(sSPIN)}, 0")
        A(f"s_cbranch_scc1 {Lr}")
        A(f"{Lk}:")
        if masked: A("s_mov_b64 exec, -1")
        if TS and name + "_n" not in SKIP: A(f"s_sub_u32 {s(64+2*slot(name + '_n'))}, {SPIN}, {s(sSPIN)}")
    def lds_spin(off, dst, cmp_txt):
        Ll = A.label("sp"); Lx = A.label("spx")
        A(f"s_mov_b32 {s(sSPIN)}, {SPIN}")
        A(f"{Ll}:")
        A(f"ds_read_b32 {v(vT7)}, {v(vCT)} offset:{L_CT + off}")
        A(f"s_sub_u32 {s(sSPIN)}, {s(sSPIN)}, 1")
        A(f"s_cbranch_scc1 {Lx}")
        A("s_waitcnt lgkmcnt(0)")
        A(f"v_readfirstlane_b32 {s(dst)}, {v(vT7)}")
        A(cmp_txt)
        A(f"s_cbranch_scc1 {Ll}")
        A(f"{Lx}:")
        A("s_waitcnt lgkmcnt(0)")
    def wait_prog(target_txt):
        Ld = A.label("wpd")
        A(f"s_cmp_ge_u32 {s(sPROG)}, {target_txt}")
        A(f"s_cbranch_scc1 {Ld}")
        lds_spin(0, sPROG, f"s_cmp_lt_u32 {s(sPROG)}, {target_txt}")
        A(f"{Ld}:")
    def swbar(off, target):
        A("s_waitcnt lgkmcnt(0)")
        A("s_mov_b64 exec, 1")
        A(f"ds_add_u32 {v(vCT)}, {v(vONE)} offset:{L_CT + off}")
        A("s_mov_b64 exec, -1")
        lds_spin(off, sT3, f"s_cmp_lt_u32 {s(sT3)}, {target}")
    def pretouch():
        Lp = A.label("pt"); Lq = A.label("ptf")
        A(f"""
          s_cmp_lg_u32 {s(sWAVE)}, 0
          s_cbranch_scc1 {Lp}
          global_load_dwordx4 {v(vWO,4)}, {v(vAst)}, {s(sWS,2)} sc1
          global_load_dwordx4 {v(vWO+4,4)}, {v(vAst)}, {s(sWS,2)} offset:128 sc1
          global_load_dwordx4 {v(vWO+8,4)}, {v(vApo)}, {s(sWS,2)} sc1
          global_load_dwordx4 {v(vWO+12,4)}, {v(vApo)}, {s(sWS,2)} offset:512 sc1
          v_lshlrev_b32 {v(vT4)}, 4, {v(vL)}
          v_and_b32 {v(vT5)}, 0xfffff000, {v(vAr)}
          v_add_u32 {v(vT4)}, {v(vT5)}, {v(vT4)}
          global_load_dwordx4 {v(vWO,4)}, {v(vT4)}, {s(sWS,2)} sc1
          global_load_dwordx4 {v(vWO+4,4)}, {v(vT4)}, {s(sWS,2)} offset:1024 sc1
          global_load_dwordx4 {v(vWO+8,4)}, {v(vT4)}, {s(sWS,2)} offset:2048 sc1
          global_load_dwordx4 {v(vWO+12,4)}, {v(vT4)}, {s(sWS,2)} offset:3072 sc1
          s_and_b32 {s(sT0)}, {s(sA)}, 7
          s_cmp_lg_u32 {s(sT0)}, {s(sKVH)}
          s_cbranch_scc1 {Lp}
          s_lshl_b32 {s(sT0)}, {s(sA)}, 11
          s_add_u32 {s(sT0)}, {s(sT0)}, {WS_FG}
          v_lshlrev_b32 {v(vT4)}, 4, {v(vL)}
          v_add_u32 {v(vT4)}, {s(sT0)}, {v(vT4)}
          global_load_dwordx4 {v(vWO,4)}, {v(vT4)}, {s(sWS,2)} sc1
          global_load_dwordx4 {v(vWO+4,4)}, {v(vT4)}, {s(sWS,2)} offset:1024 sc1
        """)
        A(f"{Lp}:")
    def store_mode(txt):
        if not FASTOK:
            A(txt + " sc1"); return
        La = A.label("sts"); Lb = A.label("ste")
        A(f"s_cmp_eq_u32 {s(sMODE)}, 0")
        A(f"s_cbranch_scc1 {La}")
        A(txt)
        A(f"s_branch {Lb}")
        A(f"{La}:")
        A(txt + " sc1")
        A(f"{Lb}:")

    A("s_cmp_ge_u32 s2, 256")
    A("s_cbranch_scc1 Lexit")
    A(f"s_load_dwordx16 {s(4,16)}, s[0:1], 0")
    A(f"s_load_dwordx8 {s(20,8)}, s[0:1], 64")
    ts("start")
    if LTS: A("s_memrealtime s[64:65]")
    if CPF:
        A(f"""
          s_getpc_b64 {s(sC0,2)}
        Lpc:
          v_lshrrev_b32 {v(vT0)}, 6, v0
          s_bfe_u32 {s(sT0)}, s2, 0x10003
          s_mul_i32 {s(sT0)}, {s(sT0)}, 7
          v_add_u32 {v(vT0)}, {s(sT0)}, {v(vT0)}
          v_min_u32 {v(vT0)}, CODE_CHUNKS-1, {v(vT0)}
          v_lshlrev_b32 {v(vT0)}, 10, {v(vT0)}
          v_and_b32 {v(vT1)}, 63, v0
          v_lshl_add_u32 {v(vT0)}, {v(vT1)}, 4, {v(vT0)}
          s_sub_u32 {s(sC0)}, {s(sC0)}, Lpc-{NAME}
          s_subb_u32 {s(sC0+1)}, {s(sC0+1)}, 0
          global_load_dwordx4 {v(vWO+20,4)}, {v(vT0)}, {s(sC0,2)}
        """)
    A(f"""
      v_and_b32 {v(vL)}, 63, v0
      v_lshrrev_b32 {v(vT0)}, 6, v0
      v_and_b32 {v(vN)}, 15, v0
      v_bfe_u32 {v(vGq)}, v0, 4, 2
      v_readfirstlane_b32 {s(sWAVE)}, {v(vT0)}
      s_and_b32 {s(sKVH)}, s2, 7
      s_lshr_b32 {s(sA)}, s2, 3
      s_lshr_b32 {s(sB)}, {s(sA)}, 4
      s_getreg_b32 {s(sXCC)}, hwreg(HW_REG_XCC_ID)
      s_and_b32 {s(sXCC)}, {s(sXCC)}, 15
      v_mov_b32 {v(vT7)}, 0
      v_mov_b32 {v(vCT)}, 0
      v_mov_b32 {v(vONE)}, 1
      s_mov_b32 {s(sPROG)}, 0
      s_cmp_eq_u32 {s(sWAVE)}, 6
      s_cbranch_scc1 Lload
      s_cmp_ge_u32 {s(sWAVE)}, 4
      s_cbranch_scc1 Laux
    """)
    vQP = vQ
    vXP = vOA + 4
    def issue_q():
        for ks in range(4):
            A(f"global_load_dwordx4 {v(vQP+4*ks,4)}, {v(vAq+ks)}, {s(sWS,2)} sc1")
    def issue_x():
        A(f"global_load_dwordx2 {v(vXP,2)}, {v(vAx)}, {s(sWS,2)} sc1")
    def issue_qx():
        issue_q(); issue_x()
    A(f"""
      v_and_b32 {v(vT3)}, 3, {v(vN)}
      v_lshlrev_b32 {v(vT3)}, 10, {v(vT3)}
      v_lshrrev_b32 {v(vT4)}, 2, {v(vN)}
      v_lshl_add_u32 {v(vT3)}, {v(vT4)}, 8, {v(vT3)}
      s_lshl_b32 {s(sT0)}, {s(sWAVE)}, 12
      s_add_u32 {s(sT1)}, {s(sT0)}, {L_KL}
      v_add_u32 {v(vT3)}, {s(sT1)}, {v(vT3)}
      v_xor_b32 {v(vT4)}, {v(vGq)}, {v(vN)}
    """)
    for jj in range(4):
        A(f"v_xor_b32 {v(vT5)}, {4*jj}, {v(vT4)}")
        A(f"v_lshl_add_u32 {v(vAk+jj)}, {v(vT5)}, 4, {v(vT3)}")
    A(f"""
      s_add_u32 {s(sT1)}, {s(sT0)}, {L_VL}
      v_lshlrev_b32 {v(vAv)}, 4, {v(vL)}
      v_add_u32 {v(vAv)}, {s(sT1)}, {v(vAv)}
      s_waitcnt lgkmcnt(0)
      global_load_dword {v(vEP)}, {v(vT7)}, {s(sWS,2)} sc1
    """)
    A(f"""
      s_lshl_b32 {s(sT0)}, {s(sKVH)}, 19
      s_lshl_b32 {s(sT1)}, {s(sA)}, 14
      s_add_u32 {s(sT0)}, {s(sT0)}, {s(sT1)}
      s_lshl_b32 {s(sT1)}, {s(sWAVE)}, 8
      s_add_u32 {s(sT0)}, {s(sT0)}, {s(sT1)}
      s_add_u32 {s(sWb)}, {s(sWO)}, {s(sT0)}
      s_addc_u32 {s(sWb+1)}, {s(sWO+1)}, 0
      s_cmp_lt_u32 s2, 224
      s_cselect_b32 {s(sT0)}, s2, 0
      s_lshl_b32 {s(sT0)}, {s(sT0)}, 13
      s_add_u32 {s(sT0)}, {s(sT0)}, {s(sT1)}
      s_add_u32 {s(sWDb)}, {s(sWD)}, {s(sT0)}
      s_addc_u32 {s(sWDb+1)}, {s(sWD+1)}, 0
      v_lshlrev_b32 {v(vAw0)}, 10, {v(vGq)}
      v_lshl_add_u32 {v(vAw0)}, {v(vN)}, 4, {v(vAw0)}
      v_add_u32 {v(vAw1)}, 0x1000, {v(vAw0)}
      s_lshl_b32 {s(sT0)}, {s(sKVH)}, 1
      s_add_u32 {s(sT0)}, {s(sT0)}, {s(sB)}
      s_lshl_b32 {s(sT0)}, {s(sT0)}, 14
      s_lshl_b32 {s(sT1)}, {s(sWAVE)}, 10
      s_add_u32 {s(sT0)}, {s(sT0)}, {s(sT1)}
      s_add_u32 {s(sT0)}, {s(sT0)}, {WS_QG}
      v_lshlrev_b32 {v(vT4)}, 4, {v(vL)}
      v_add_u32 {v(vAq)}, {s(sT0)}, {v(vT4)}
      v_add_u32 {v(vAq+1)}, 0x1000, {v(vAq)}
      v_add_u32 {v(vAq+2)}, 0x2000, {v(vAq)}
      v_add_u32 {v(vAq+3)}, 0x3000, {v(vAq)}
      s_lshl_b32 {s(sT0)}, {s(sKVH)}, 8
      s_add_u32 {s(sT0)}, {s(sT0)}, {WS_XG}
      v_and_b32 {v(vT4)}, 31, {v(vL)}
      v_lshlrev_b32 {v(vT4)}, 3, {v(vT4)}
      v_add_u32 {v(vAx)}, {s(sT0)}, {v(vT4)}
      s_mov_b32 {s(sT0)}, 0xffff
      s_mov_b32 {s(sT1)}, 0xffff0000
      v_and_b32 {v(vT4)}, 1, {v(vL)}
      v_cmp_eq_u32 vcc, 1, {v(vT4)}
      v_mov_b32 {v(vT5)}, {s(sT0)}
      v_mov_b32 {v(vT6)}, {s(sT1)}
      v_cndmask_b32 {v(vT5)}, {v(vT5)}, {v(vT6)}, vcc
      v_and_b32 {v(vT4)}, 2, {v(vL)}
      v_cmp_eq_u32 vcc, 0, {v(vT4)}
      s_nop 1
      v_cndmask_b32 {v(vM0)}, 0, {v(vT5)}, vcc
      v_cmp_ne_u32 vcc, 0, {v(vT4)}
      s_nop 1
      v_cndmask_b32 {v(vM1)}, 0, {v(vT5)}, vcc
      v_bfe_u32 {v(vT4)}, {v(vL)}, 1, 2
    """)
    for i in range(4):
        A(f"v_cmp_eq_u32 vcc, {i}, {v(vT4)}")
        A("s_nop 1")
        A(f"v_cndmask_b32 {v(vMK+i)}, 0, {v(vT5)}, vcc")
    A(f"""
      s_lshl_b32 {s(sT0)}, {s(sWAVE)}, 11
      s_add_u32 {s(sT0)}, {s(sT0)}, {L_OP}
      v_lshlrev_b32 {v(vAo)}, 9, {v(vGq)}
      v_lshl_add_u32 {v(vAo)}, {v(vN)}, 5, {v(vAo)}
      v_add_u32 {v(vAo)}, {s(sT0)}, {v(vAo)}
      v_lshrrev_b32 {v(vT4)}, 3, {v(vL)}
      v_lshlrev_b32 {v(vT4)}, 4, {v(vT4)}
      v_and_b32 {v(vT5)}, 1, {v(vL)}
      v_lshl_add_u32 {v(vT4)}, {v(vT5)}, 3, {v(vT4)}
      v_bfe_u32 {v(vT5)}, {v(vL)}, 1, 2
      v_add_u32 {v(vT4)}, {v(vT4)}, {v(vT5)}
      v_lshlrev_b32 {v(vT4)}, 2, {v(vT4)}
      s_lshl_b32 {s(sT0)}, {s(sWAVE)}, 9
      s_add_u32 {s(sT0)}, {s(sT0)}, {L_OP}
      v_add_u32 {v(vAr0)}, {s(sT0)}, {v(vT4)}
      v_add_u32 {v(vAr1)}, 16, {v(vAr0)}
      s_lshl_b32 {s(sT0)}, {s(sKVH)}, 16
      s_lshl_b32 {s(sT1)}, {s(sWAVE)}, 14
      s_add_u32 {s(sT0)}, {s(sT0)}, {s(sT1)}
      s_lshl_b32 {s(sT1)}, {s(sA)}, 6
      s_add_u32 {s(sT0)}, {s(sT0)}, {s(sT1)}
      s_add_u32 {s(sT0)}, {s(sT0)}, {WS_OG}
      v_lshrrev_b32 {v(vT4)}, 3, {v(vL)}
      v_lshlrev_b32 {v(vT4)}, 11, {v(vT4)}
      v_and_b32 {v(vT5)}, 7, {v(vL)}
      v_lshl_add_u32 {v(vT4)}, {v(vT5)}, 3, {v(vT4)}
      v_add_u32 {v(vAog)}, {s(sT0)}, {v(vT4)}
      s_lshl_b32 {s(sT0)}, {s(sKVH)}, 2
      s_lshr_b32 {s(sT1)}, {s(sA)}, 3
      s_add_u32 {s(sT0)}, {s(sT0)}, {s(sT1)}
      s_lshl_b32 {s(sT0)}, {s(sT0)}, 9
      s_add_u32 {s(sT0)}, {s(sT0)}, {WS_SG}
      v_bfe_u32 {v(vT4)}, {v(vL)}, 3, 1
      v_lshlrev_b32 {v(vAst)}, 8, {v(vT4)}
      v_lshl_add_u32 {v(vAst)}, {v(vT5)}, 4, {v(vAst)}
      v_add_u32 {v(vAst)}, {s(sT0)}, {v(vAst)}
      s_lshl_b32 {s(sT0)}, {s(sKVH)}, 5
      s_add_u32 {s(sT0)}, {s(sT0)}, {s(sA)}
      s_lshl_b32 {s(sT0)}, {s(sT0)}, 11
      s_add_u32 {s(sT0)}, {s(sT0)}, {WS_OG}
      v_lshlrev_b32 {v(vApo)}, 10, {v(vT4)}
      v_lshl_add_u32 {v(vApo)}, {v(vT5)}, 6, {v(vApo)}
      v_lshl_add_u32 {v(vApo)}, {v(vGq)}, 4, {v(vApo)}
      v_add_u32 {v(vApo)}, {s(sT0)}, {v(vApo)}
      s_lshl_b32 {s(sT0)}, {s(sKVH)}, 17
      s_lshl_b32 {s(sT1)}, {s(sWAVE)}, 14
      s_add_u32 {s(sT0)}, {s(sT0)}, {s(sT1)}
      s_lshl_b32 {s(sT1)}, {s(sA)}, 7
      s_add_u32 {s(sT0)}, {s(sT0)}, {s(sT1)}
      s_add_u32 {s(sT0)}, {s(sT0)}, {WS_RG}
      v_lshrrev_b32 {v(vT4)}, 1, {v(vGq)}
      v_lshlrev_b32 {v(vT4)}, 16, {v(vT4)}
      v_lshrrev_b32 {v(vT5)}, 2, {v(vN)}
      v_lshl_add_u32 {v(vT4)}, {v(vT5)}, 12, {v(vT4)}
      v_and_b32 {v(vT5)}, 3, {v(vN)}
      v_lshl_add_u32 {v(vT4)}, {v(vT5)}, 5, {v(vT4)}
      v_and_b32 {v(vT5)}, 1, {v(vGq)}
      v_lshl_add_u32 {v(vT4)}, {v(vT5)}, 4, {v(vT4)}
      v_add_u32 {v(vApg)}, {s(sT0)}, {v(vT4)}
      s_lshl_b32 {s(sT0)}, {s(sKVH)}, 5
      s_add_u32 {s(sT0)}, {s(sT0)}, {s(sA)}
      s_lshl_b32 {s(sT0)}, {s(sT0)}, 12
      s_lshl_b32 {s(sT1)}, {s(sWAVE)}, 5
      s_add_u32 {s(sT0)}, {s(sT0)}, {s(sT1)}
      s_add_u32 {s(sT0)}, {s(sT0)}, {WS_RG}
      v_lshrrev_b32 {v(vAr)}, 1, {v(vL)}
      v_lshlrev_b32 {v(vAr)}, 7, {v(vAr)}
      v_and_b32 {v(vT0)}, 1, {v(vL)}
      v_lshl_add_u32 {v(vAr)}, {v(vT0)}, 4, {v(vAr)}
      v_add_u32 {v(vAr)}, {s(sT0)}, {v(vAr)}
      s_lshl_b32 {s(sT0)}, {s(sA)}, 11
      s_lshl_b32 {s(sT1)}, {s(sKVH)}, 8
      s_add_u32 {s(sT0)}, {s(sT0)}, {s(sT1)}
      s_lshl_b32 {s(sT1)}, {s(sWAVE)}, 6
      s_add_u32 {s(sT0)}, {s(sT0)}, {s(sT1)}
      s_add_u32 {s(sT0)}, {s(sT0)}, {WS_FG}
      v_lshlrev_b32 {v(vAf)}, 5, {v(vT0)}
      v_lshl_add_u32 {v(vAf)}, {v(vGq)}, 3, {v(vAf)}
      v_add_u32 {v(vAf)}, {s(sT0)}, {v(vAf)}
      v_mov_b32 {v(vD3)}, 0
      v_mov_b32 {v(vD3+1)}, 0
      v_mov_b32 {v(vD3+2)}, 0
      v_mov_b32 {v(vD3+3)}, 0
    """)
    A(f"""
      v_lshrrev_b32 {v(vT4)}, 2, {v(vN)}
      v_lshlrev_b32 {v(vT4)}, 8, {v(vT4)}
      v_lshl_add_u32 {v(vT4)}, {v(vGq)}, 4, {v(vT4)}
      v_add_u32 {v(vT4)}, {L_QB}, {v(vT4)}
      v_lshlrev_b32 {v(vT5)}, 4, {v(vGq)}
      v_add_u32 {v(vT5)}, {L_ZB}, {v(vT5)}
      v_and_b32 {v(vT6)}, 3, {v(vN)}
    """)
    for c in range(4):
        A(f"v_cmp_eq_u32 vcc, {c}, {v(vT6)}")
        A("s_nop 1")
        A(f"v_cndmask_b32 {v(vAm+c)}, {v(vT5)}, {v(vT4)}, vcc")
    A("s_barrier")
    A(f"""
      s_waitcnt vmcnt(0)
      v_readfirstlane_b32 {s(sTAG)}, {v(vEP)}
      s_add_u32 {s(sTAG)}, {s(sTAG)}, 0x{TAG_DELTA:x}
    """)
    wait_prog(QT)
    ts("issQ")
    issue_qx()
    def kreads():
        for tt in range(4):
            for jj in range(4):
                A(f"ds_read_b128 {v(vK+16*tt+4*jj,4)}, {v(vAk+jj)} offset:{16384*tt}")
    sKR = sT2
    Lk1 = A.label("k1"); Lk2 = A.label("k2")
    A(f"""
      ds_read_b32 {v(vT7)}, {v(vCT)} offset:{L_CT}
      s_mov_b32 {s(sKR)}, 0
      s_waitcnt lgkmcnt(0)
      v_readfirstlane_b32 {s(sPROG)}, {v(vT7)}
      s_cmp_lt_u32 {s(sPROG)}, 16
      s_cbranch_scc1 {Lk1}
      s_mov_b32 {s(sKR)}, 1
    """)
    kreads()
    A(f"{Lk1}:")
    poll_simple(issue_qx, [vQP+4*i+k for i in range(4) for k in (1, 3)] + [vXP+1], "q", 0)
    ts("q_done")
    A(f"""
      v_add_f32 {v(vQP)}, {v(vQP)}, {v(vQP+4)}
      v_add_f32 {v(vQP+2)}, {v(vQP+2)}, {v(vQP+6)}
      v_add_f32 {v(vQP+8)}, {v(vQP+8)}, {v(vQP+12)}
      v_add_f32 {v(vQP+10)}, {v(vQP+10)}, {v(vQP+14)}
      v_add_f32 {v(vQP)}, {v(vQP)}, {v(vQP+8)}
      v_add_f32 {v(vQP+2)}, {v(vQP+2)}, {v(vQP+10)}
      v_cvt_pk_bf16_f32 {v(vQP)}, {v(vQP)}, {v(vQP+2)}
      v_lshlrev_b32 {v(vT4)}, 2, v0
      ds_write_b32 {v(vT4)}, {v(vQP)} offset:{L_QB}
      v_cmp_ne_u32 vcc, {s(sXCC)}, {v(vXP)}
      s_cmp_eq_u64 vcc, 0
      s_cselect_b32 {s(sMODE)}, 1, 0
      v_lshrrev_b32 {v(vT2)}, 2, {v(vN)}
      v_lshlrev_b32 {v(vT2)}, 4, {v(vT2)}
      s_lshl_b32 {s(sT0)}, {s(sWAVE)}, 2
      v_add_u32 {v(vT3)}, {s(sT0)}, {v(vT2)}
    """)
    swbar(4, 4)
    ts("barX")
    if PT == 3: pretouch()
    A(f"s_cmp_eq_u32 {s(sKR)}, 1")
    A(f"s_cbranch_scc1 {Lk2}")
    wait_prog(16)
    kreads()
    A(f"{Lk2}:")
    ts("k_land")
    for tt in range(4):
        for jj in range(4):
            A(f"ds_read_b128 {v(vV+16*tt+4*jj,4)}, {v(vAm+tt)} offset:{64*jj}")
    for tt in range(4):
        A(f"s_waitcnt lgkmcnt({12 - 4*tt})")
        for jj in range(4):
            c = "0" if (tt == 0 and jj == 0) else v(vS,4)
            A(f"v_mfma_f32_16x16x32_bf16 {v(vS,4)}, {v(vK+16*tt+4*jj,4)}, {v(vV+16*tt+4*jj,4)}, {c}")
    ts("s_issued")
    A(f"s_mov_b32 {s(sC0)}, 0x3db504f3")
    A(f"s_mov_b32 {s(sC0+1)}, 0x3db504f3")
    A.nop(6)
    A(f"""
      v_cvt_pk_bf16_f32 {v(vU)}, {v(vS)}, {v(vS+1)}
      v_cvt_pk_bf16_f32 {v(vU+1)}, {v(vS+2)}, {v(vS+3)}
      v_lshlrev_b32 {v(vS)}, 16, {v(vU)}
      v_and_b32 {v(vS+1)}, 0xffff0000, {v(vU)}
      v_lshlrev_b32 {v(vS+2)}, 16, {v(vU+1)}
      v_and_b32 {v(vS+3)}, 0xffff0000, {v(vU+1)}
      v_pk_mul_f32 {v(vS,2)}, {v(vS,2)}, {s(sC0,2)}
      v_pk_mul_f32 {v(vS+2,2)}, {v(vS+2,2)}, {s(sC0,2)}
      v_cvt_pk_bf16_f32 {v(vU)}, {v(vS)}, {v(vS+1)}
      v_cvt_pk_bf16_f32 {v(vU+1)}, {v(vS+2)}, {v(vS+3)}
      v_lshlrev_b32 {v(vS)}, 16, {v(vU)}
      v_and_b32 {v(vS+1)}, 0xffff0000, {v(vU)}
      v_lshlrev_b32 {v(vS+2)}, 16, {v(vU+1)}
      v_and_b32 {v(vS+3)}, 0xffff0000, {v(vU+1)}
      v_max3_f32 {v(vT0)}, {v(vS)}, {v(vS+1)}, {v(vS+2)}
      v_max_f32 {v(vT0)}, {v(vT0)}, {v(vS+3)}
    """)
    def quad(r, op):
        for ctrl in ("quad_perm:[1,0,3,2]", "quad_perm:[2,3,0,1]"):
            A.nop(2)
            A(f"{op}_dpp {v(r)}, {v(r)}, {v(r)} {ctrl} row_mask:0xf bank_mask:0xf")
    quad(vT0, "v_max_f32")
    xrow(vT0, vT1, "v_max_f32")
    A(f"ds_write_b32 {v(vT3)}, {v(vT0)} offset:{L_MX}")
    ts("preM")
    swbar(8, 4)
    ts("barM")
    A(f"""
      ds_read_b128 {v(vU,4)}, {v(vT2)} offset:{L_MX}
      s_mov_b32 {s(sC0)}, 0x3fb8aa3b
      s_waitcnt lgkmcnt(0)
      v_max3_f32 {v(vT0)}, {v(vU)}, {v(vU+1)}, {v(vU+2)}
      v_max_f32 {v(vT0)}, {v(vT0)}, {v(vU+3)}
      v_mul_f32 {v(vT0)}, {s(sC0)}, {v(vT0)}
    """)
    for i in range(4):
        A(f"v_fma_f32 {v(vS+i)}, {v(vS+i)}, {s(sC0)}, -{v(vT0)}")
    for i in range(4):
        A(f"v_exp_f32 {v(vS+i)}, {v(vS+i)}")
    A.nop(1)
    A(f"v_add_f32 {v(vU)}, {v(vS)}, {v(vS+1)}")
    A(f"v_add_f32 {v(vU+1)}, {v(vS+2)}, {v(vS+3)}")
    for i in range(4):
        A(f"v_cvt_pk_bf16_f32 {v(vS+i)}, {v(vS+i)}, {v(vS+i)}")
    A(f"v_add_f32 {v(vT1)}, {v(vU)}, {v(vU+1)}")
    for tt in range(4):
        for r in range(4):
            i = 4*tt + r
            A(f"v_and_b32_dpp {v(vK+2*i)}, {v(vS+r)}, {v(vM0)} quad_perm:[{tt},{tt},{tt},{tt}] row_mask:0xf bank_mask:0xf")
            A(f"v_and_b32_dpp {v(vK+2*i+1)}, {v(vS+r)}, {v(vM1)} quad_perm:[{tt},{tt},{tt},{tt}] row_mask:0xf bank_mask:0xf")
        if tt == 0:
            A(f"v_add_f32_dpp {v(vT1)}, {v(vT1)}, {v(vT1)} quad_perm:[1,0,3,2] row_mask:0xf bank_mask:0xf")
        if tt == 1:
            A(f"v_add_f32_dpp {v(vT1)}, {v(vT1)}, {v(vT1)} quad_perm:[2,3,0,1] row_mask:0xf bank_mask:0xf")
    xrow(vT1, vT4, "v_add_f32")
    A(f"ds_write_b32 {v(vT3)}, {v(vT1)} offset:{L_LS}")
    A(f"""
      s_lshl_b32 {s(sT0)}, {s(sWAVE)}, 4
      v_mov_b32 {v(vAsl)}, {s(sT0)}
      s_lshl_b32 {s(sT0)}, {s(sKVH)}, 2
      s_add_u32 {s(sT0)}, {s(sT0)}, {s(sWAVE)}
      s_lshl_b32 {s(sT0)}, {s(sT0)}, 9
      s_lshl_b32 {s(sT1)}, {s(sA)}, 4
      s_add_u32 {s(sT0)}, {s(sT0)}, {s(sT1)}
      s_add_u32 {s(sT0)}, {s(sT0)}, {WS_SG}
      v_mov_b32 {v(vAss)}, {s(sT0)}
    """)
    swbar(12, 4)
    A(f"""
      ds_read_b128 {v(vU,4)}, {v(vAsl)} offset:{L_LS}
      ds_read_b128 {v(vU+4,4)}, {v(vAsl)} offset:{L_MX}
      s_waitcnt lgkmcnt(0)
      v_add_f32 {v(vU)}, {v(vU)}, {v(vU+1)}
      v_add_f32 {v(vU+2)}, {v(vU+2)}, {v(vU+3)}
      v_max3_f32 {v(vU+4)}, {v(vU+4)}, {v(vU+5)}, {v(vU+6)}
      v_add_f32 {v(vU+2)}, {v(vU)}, {v(vU+2)}
      v_max_f32 {v(vU)}, {v(vU+4)}, {v(vU+7)}
      v_mul_f32 {v(vU)}, {s(sC0)}, {v(vU)}
      v_mov_b32 {v(vU+1)}, {s(sTAG)}
      v_mov_b32 {v(vU+3)}, {s(sTAG)}
      s_mov_b64 exec, 1
    """)
    store_mode(f"global_store_dwordx4 {v(vAss)}, {v(vU,4)}, {s(sWS,2)}")
    A("s_mov_b64 exec, -1")
    ts("p_done")
    vST = vQ
    def issue_st():
        A(f"global_load_dwordx4 {v(vST,4)}, {v(vAst)}, {s(sWS,2)} sc1")
        A(f"global_load_dwordx4 {v(vST+4,4)}, {v(vAst)}, {s(sWS,2)} offset:128 sc1")
    Lh = A.label("hw"); Lhd = A.label("hwd")
    A(f"s_cmp_ge_u32 s2, 224")
    A(f"s_cbranch_scc1 {Lhd}")
    lds_spin(16, sT3, f"s_cmp_eq_u32 {s(sT3)}, 0")
    A(f"{Lhd}:")
    A(f"""
      v_bfe_u32 {v(vT5)}, {v(vL)}, 3, 1
      v_lshlrev_b32 {v(vT5)}, 6, {v(vT5)}
      v_lshl_add_u32 {v(vT5)}, {v(vGq)}, 4, {v(vT5)}
      ds_read_b64 {v(vP,2)}, {v(vT5)} offset:{L_HV}
      v_mov_b32 {v(vT1)}, {s(sTAG)}
      s_waitcnt lgkmcnt(0)
    """)
    for i in range(2):
        for k in range(4):
            A(f"v_and_b32 {v(vP+4+4*i+k)}, {v(vP+i)}, {v(vMK+k)}")
    if PT == 1: pretouch()
    issue_st()
    A(f"global_load_dwordx4 {v(vWO+16,4)}, {v(vAw0)}, {s(sWDb,2)}{NT}")
    A(f"global_load_dwordx4 {v(vWO+20,4)}, {v(vAw1)}, {s(sWDb,2)}{NT}")
    A(f"global_load_dwordx4 {v(vWO,4)}, {v(vAw0)}, {s(sWb,2)}{NT}")
    A(f"global_load_dwordx4 {v(vWO+4,4)}, {v(vAw1)}, {s(sWb,2)}{NT}")
    A(f"v_add_u32 {v(vAw2)}, 0x2000, {v(vAw0)}")
    A(f"global_load_dwordx4 {v(vWO+8,4)}, {v(vAw2)}, {s(sWb,2)}{NT}")
    A(f"v_add_u32 {v(vAw2)}, 0x3000, {v(vAw0)}")
    A(f"global_load_dwordx4 {v(vWO+12,4)}, {v(vAw2)}, {s(sWb,2)}{NT}")
    ts("h_done")
    A(f"s_add_u32 {s(sT2)}, {s(sWAVE)}, 17")
    def vreads(tau):
        for r in range(4):
            A(f"ds_read_b128 {v(vV+16*tau+4*r,4)}, {v(vAv)} offset:{16384*tau + 1024*r}")
    def pv(tau, base):
        for r in range(4):
            i = 4*tau + r
            A(f"s_waitcnt lgkmcnt({base + 3 - r})")
            c0 = "0" if i == 0 else v(vOA,4)
            c1 = "0" if i == 0 else v(vOA+4,4)
            A(f"v_mfma_f32_16x16x16_bf16 {v(vOA,4)}, {v(vK+2*i,2)}, {v(vV+16*tau+4*r,2)}, {c0}")
            A(f"v_mfma_f32_16x16x16_bf16 {v(vOA+4,4)}, {v(vK+2*i,2)}, {v(vV+16*tau+4*r+2,2)}, {c1}")
    wait_prog(s(sT2))
    vreads(0)
    for tau in range(4):
        if tau < 3:
            A(f"s_add_u32 {s(sT2)}, {s(sT2)}, 4")
            Lslow = A.label("pvs"); Ljoin = A.label("pvj")
            A(f"s_cmp_ge_u32 {s(sPROG)}, {s(sT2)}")
            A(f"s_cbranch_scc0 {Lslow}")
            vreads(tau + 1)
            pv(tau, 4)
            A(f"s_branch {Ljoin}")
            A(f"{Lslow}:")
            pv(tau, 0)
            wait_prog(s(sT2))
            vreads(tau + 1)
            A(f"{Ljoin}:")
        else:
            pv(tau, 0)
    ts("pv_done")
    A.nop(8)
    A(f"""
      ds_write_b128 {v(vAo)}, {v(vOA,4)}
      ds_write_b128 {v(vAo)}, {v(vOA+4,4)} offset:16
    """)
    if TS or opt.get("swy", 0):
        swbar(20, 4)
    else:
        A("s_waitcnt lgkmcnt(0)")
        A("s_barrier")
    A(f"""
      ds_read2st64_b32 {v(vU,2)}, {v(vAr0)} offset0:0 offset1:8
      ds_read2st64_b32 {v(vU+2,2)}, {v(vAr0)} offset0:16 offset1:24
      ds_read2st64_b32 {v(vU+4,2)}, {v(vAr1)} offset0:0 offset1:8
      ds_read2st64_b32 {v(vU+6,2)}, {v(vAr1)} offset0:16 offset1:24
      s_waitcnt lgkmcnt(2)
      v_pk_add_f32 {v(vU,2)}, {v(vU,2)}, {v(vU+2,2)}
      s_waitcnt lgkmcnt(0)
      v_pk_add_f32 {v(vU+4,2)}, {v(vU+4,2)}, {v(vU+6,2)}
      v_add_f32 {v(vU)}, {v(vU)}, {v(vU+1)}
      v_add_f32 {v(vU+4)}, {v(vU+4)}, {v(vU+5)}
      v_cvt_pk_bf16_f32 {v(vT0)}, {v(vU)}, {v(vU+4)}
    """)
    store_mode(f"global_store_dwordx2 {v(vAog)}, {v(vT0,2)}, {s(sWS,2)}")
    ts("o_published")
    vOO = vV + 8
    def issue_o():
        A(f"global_load_dwordx4 {v(vOO,4)}, {v(vApo)}, {s(sWS,2)} sc1")
        A(f"global_load_dwordx4 {v(vOO+4,4)}, {v(vApo)}, {s(sWS,2)} offset:512 sc1")
    issue_o()
    poll_simple(issue_st, [vST+1, vST+3, vST+5, vST+7], "st", 9)
    ts("st_done")
    def red8(regs, op):
        n = len(regs)
        for ctrl in ("quad_perm:[1,0,3,2]", "quad_perm:[2,3,0,1]", "row_half_mirror"):
            if n < 3: A.nop(3 - n)
            for r in regs:
                A(f"{op}_dpp {v(r)}, {v(r)}, {v(r)} {ctrl} row_mask:0xf bank_mask:0xf")
    A(f"v_max_f32 {v(vT2)}, {v(vST)}, {v(vST+4)}")
    red8([vT2], "v_max_f32")
    A(f"""
      v_sub_f32 {v(vT3)}, {v(vST)}, {v(vT2)}
      v_sub_f32 {v(vT4)}, {v(vST+4)}, {v(vT2)}
      v_exp_f32 {v(vT3)}, {v(vT3)}
      v_exp_f32 {v(vT4)}, {v(vT4)}
      s_nop 0
      v_mul_f32 {v(vT2)}, {v(vT3)}, {v(vST+2)}
      v_fma_f32 {v(vT2)}, {v(vT4)}, {v(vST+6)}, {v(vT2)}
    """)
    red8([vT2], "v_add_f32")
    A(f"""
      v_rcp_f32 {v(vT2)}, {v(vT2)}
      s_nop 0
      v_mul_f32 {v(vT3)}, {v(vT3)}, {v(vT2)}
      v_mul_f32 {v(vT4)}, {v(vT4)}, {v(vT2)}
    """)
    LskipB = A.label("skipB")
    A(f"s_cmp_ge_u32 s2, 224")
    A(f"s_cbranch_scc1 {LskipB}")
    A("s_waitcnt vmcnt(7)")
    for i in range(2):
        A(f"v_mfma_f32_16x16x32_bf16 {v(vD3,4)}, {v(vP+4+4*i,4)}, {v(vWO+16+4*i,4)}, {v(vD3,4)}")
    A(f"{LskipB}:")
    poll_pipe(issue_o, 2, [vOO+1, vOO+3, vOO+5, vOO+7], "h1", D1, 1, True)
    ts("h1_done")
    A(f"""
      v_lshlrev_b32 {v(vU)}, 16, {v(vOO)}
      v_and_b32 {v(vU+1)}, 0xffff0000, {v(vOO)}
      v_lshlrev_b32 {v(vU+2)}, 16, {v(vOO+2)}
      v_and_b32 {v(vU+3)}, 0xffff0000, {v(vOO+2)}
      v_lshlrev_b32 {v(vU+4)}, 16, {v(vOO+4)}
      v_and_b32 {v(vU+5)}, 0xffff0000, {v(vOO+4)}
      v_lshlrev_b32 {v(vU+6)}, 16, {v(vOO+6)}
      v_and_b32 {v(vU+7)}, 0xffff0000, {v(vOO+6)}
      v_pk_mul_f32 {v(vU,2)}, {v(vU,2)}, {v(vT3,2)} op_sel:[0,0] op_sel_hi:[1,0]
      v_pk_mul_f32 {v(vU+2,2)}, {v(vU+2,2)}, {v(vT3,2)} op_sel:[0,0] op_sel_hi:[1,0]
    """.replace(v(vT3,2), "XX")) if False else None
    A(f"""
      v_lshlrev_b32 {v(vU)}, 16, {v(vOO)}
      v_and_b32 {v(vU+1)}, 0xffff0000, {v(vOO)}
      v_lshlrev_b32 {v(vU+2)}, 16, {v(vOO+2)}
      v_and_b32 {v(vU+3)}, 0xffff0000, {v(vOO+2)}
      v_lshlrev_b32 {v(vU+4)}, 16, {v(vOO+4)}
      v_and_b32 {v(vU+5)}, 0xffff0000, {v(vOO+4)}
      v_lshlrev_b32 {v(vU+6)}, 16, {v(vOO+6)}
      v_and_b32 {v(vU+7)}, 0xffff0000, {v(vOO+6)}
    """)
    for i in range(4):
        A(f"v_mul_f32 {v(vU+i)}, {v(vU+i)}, {v(vT3)}")
    for i in range(4):
        A(f"v_fma_f32 {v(vU+i)}, {v(vU+4+i)}, {v(vT4)}, {v(vU+i)}")
    red8([vU, vU+1, vU+2, vU+3], "v_add_f32")
    for i in range(4):
        A(f"v_cvt_pk_bf16_f32 {v(vU+i)}, {v(vU+i)}, {v(vU+i)}")
    for i in range(4):
        for k in range(4):
            A(f"v_and_b32 {v(vQ+4*i+k)}, {v(vU+i)}, {v(vMK+k)}")
    A(f"v_mov_b32 {v(vU+5)}, {s(sTAG)}")
    A(f"v_mov_b32 {v(vU+7)}, {s(sTAG)}")
    for i in range(4):
        A(f"v_mfma_f32_16x16x32_bf16 {v(vD3,4)}, {v(vQ+4*i,4)}, {v(vWO+4*i,4)}, {v(vD3,4)}")
    A.nop(8)
    A(f"""
      v_cvt_pk_bf16_f32 {v(vU+4)}, {v(vD3)}, {v(vD3+1)}
      v_cvt_pk_bf16_f32 {v(vU+6)}, {v(vD3+2)}, {v(vD3+3)}
    """)
    store_mode(f"global_store_dwordx4 {v(vApg)}, {v(vU+4,4)}, {s(sWS,2)}")
    ts("p_published")
    def issue_r():
        A(f"global_load_dwordx4 {v(vK,4)}, {v(vAr)}, {s(sWS,2)} sc1")
    issue_r()
    A(f"v_mov_b32 {v(vT3)}, {s(sTAG)}")
    poll_pipe(issue_r, 1, [vK+1, vK+3], "h2", 1, 1, True)
    ts("h2_done")
    A(f"""
      v_lshlrev_b32 {v(vS)}, 16, {v(vK)}
      v_and_b32 {v(vS+1)}, 0xffff0000, {v(vK)}
      v_lshlrev_b32 {v(vS+2)}, 16, {v(vK+2)}
      v_and_b32 {v(vS+3)}, 0xffff0000, {v(vK+2)}
      s_nop 1
      v_permlane32_swap_b32 {v(vS)}, {v(vS+2)}
      v_permlane32_swap_b32 {v(vS+1)}, {v(vS+3)}
      v_add_f32 {v(vS)}, {v(vS)}, {v(vS+2)}
      v_add_f32 {v(vS+1)}, {v(vS+1)}, {v(vS+3)}
      s_nop 1
      v_permlane16_swap_b32 {v(vS)}, {v(vS+1)}
      v_add_f32 {v(vS)}, {v(vS)}, {v(vS+1)}
      s_nop 1
      v_add_f32_dpp {v(vS)}, {v(vS)}, {v(vS)} row_ror:8 row_mask:0xf bank_mask:0xf
      s_nop 1
      v_add_f32_dpp {v(vS)}, {v(vS)}, {v(vS)} row_ror:4 row_mask:0xf bank_mask:0xf
      s_nop 1
      v_add_f32_dpp {v(vT2)}, {v(vS)}, {v(vS)} quad_perm:[2,3,0,1] row_mask:0xf bank_mask:0xf
      s_mov_b64 exec, 0x0003000300030003
      global_store_dwordx2 {v(vAf)}, {v(vT2,2)}, {s(sWS,2)} sc1
      s_mov_b64 exec, -1
    """.replace("s_mov_b64 exec, 0x0003000300030003", f"s_mov_b32 exec_lo, 0x00030003\n      s_mov_b32 exec_hi, 0x00030003".replace("\\n", "\n")))
    ts("f_published")
    A(f"""
      s_and_b32 {s(sT0)}, {s(sA)}, 7
      s_cmp_lg_u32 {s(sT0)}, {s(sKVH)}
      s_cbranch_scc1 Lend
      s_cmp_lg_u32 {s(sWAVE)}, 0
      s_cbranch_scc1 Lend
      s_lshl_b32 {s(sT0)}, {s(sA)}, 11
      s_add_u32 {s(sT0)}, {s(sT0)}, {WS_FG}
      v_lshrrev_b32 {v(vT5)}, 3, {v(vL)}
      v_lshlrev_b32 {v(vT5)}, 8, {v(vT5)}
      v_and_b32 {v(vT0)}, 7, {v(vL)}
      v_lshl_add_u32 {v(vT5)}, {v(vT0)}, 4, {v(vT5)}
      v_add_u32 {v(vT5)}, {s(sT0)}, {v(vT5)}
      s_lshl_b32 {s(sT0)}, {s(sA)}, 6
      v_lshlrev_b32 {v(vT4)}, 2, {v(vT0)}
      v_add_u32 {v(vT4)}, {s(sT0)}, {v(vT4)}
      global_load_dword {v(vXR)}, {v(vT4)}, {s(sX,2)}
      global_load_dword {v(vXR+1)}, {v(vT4)}, {s(sX,2)} offset:32
    """)
    def issue_f():
        A(f"global_load_dwordx4 {v(vK+4,4)}, {v(vT5)}, {s(sWS,2)} sc1")
        A(f"global_load_dwordx4 {v(vK+8,4)}, {v(vT5)}, {s(sWS,2)} offset:128 sc1")
    poll_pipe(issue_f, 2, [vK+5, vK+7, vK+9, vK+11], "h3", 1, 0, True)
    ts("h3_done")
    A(f"""
      v_add_f32_dpp {v(vK+4)}, {v(vK+4)}, {v(vK+4)} row_ror:8 row_mask:0xf bank_mask:0xf
      v_add_f32_dpp {v(vK+6)}, {v(vK+6)}, {v(vK+6)} row_ror:8 row_mask:0xf bank_mask:0xf
      v_add_f32_dpp {v(vK+8)}, {v(vK+8)}, {v(vK+8)} row_ror:8 row_mask:0xf bank_mask:0xf
      v_add_f32_dpp {v(vK+10)}, {v(vK+10)}, {v(vK+10)} row_ror:8 row_mask:0xf bank_mask:0xf
      v_mov_b32 {v(vS)}, {v(vK+4)}
      v_mov_b32 {v(vS+1)}, {v(vK+6)}
      v_mov_b32 {v(vS+2)}, {v(vK+8)}
      v_mov_b32 {v(vS+3)}, {v(vK+10)}
      v_mov_b32 {v(vS+4)}, {v(vK+4)}
      v_mov_b32 {v(vS+5)}, {v(vK+6)}
      v_mov_b32 {v(vS+6)}, {v(vK+8)}
      v_mov_b32 {v(vS+7)}, {v(vK+10)}
      s_nop 1
    """)
    for sw in ("v_permlane16_swap_b32", "v_permlane32_swap_b32"):
        for i in range(4):
            A(f"{sw} {v(vS+i)}, {v(vS+4+i)}")
        for i in range(4):
            A(f"v_add_f32 {v(vS+i)}, {v(vS+i)}, {v(vS+4+i)}")
        if sw.startswith("v_permlane16"):
            for i in range(4):
                A(f"v_mov_b32 {v(vS+4+i)}, {v(vS+i)}")
            A.nop(1)
    A(f"""
      v_lshlrev_b32 {v(vS+8)}, 16, {v(vXR)}
      v_and_b32 {v(vS+9)}, 0xffff0000, {v(vXR)}
      v_lshlrev_b32 {v(vS+10)}, 16, {v(vXR+1)}
      v_and_b32 {v(vS+11)}, 0xffff0000, {v(vXR+1)}
      v_pk_add_f32 {v(vS,2)}, {v(vS,2)}, {v(vS+8,2)}
      v_pk_add_f32 {v(vS+2,2)}, {v(vS+2,2)}, {v(vS+10,2)}
      v_cvt_pk_bf16_f32 {v(vS)}, {v(vS)}, {v(vS+1)}
      v_cvt_pk_bf16_f32 {v(vS+2)}, {v(vS+2)}, {v(vS+3)}
      s_mov_b64 exec, 0xff
      global_store_dword {v(vT4)}, {v(vS)}, {s(sOUT,2)}
      global_store_dword {v(vT4)}, {v(vS+2)}, {s(sOUT,2)} offset:32
      s_cmp_lg_u32 {s(sA)}, 0
      s_cbranch_scc1 Lend
      v_mov_b32 {v(vT4)}, 0
      v_mov_b32 {v(vT5)}, {s(sTAG)}
      s_mov_b64 exec, 1
      global_store_dword {v(vT4)}, {v(vT5)}, {s(sWS,2)} sc1
      s_branch Lend
    """)
    A("Laux:")
    role[0] = "X"
    A("s_setprio 3")
    vWIN = vV
    vXS = vQ
    vDL, vDH = vOA, vOA + 4
    A(f"""
      s_sub_u32 {s(sROLE)}, {s(sWAVE)}, 4
      s_cmp_eq_u32 {s(sROLE)}, 0
      s_cselect_b32 {s(sT0)}, 0, s2
      s_cmp_ge_u32 {s(sT0)}, 224
      s_cbranch_scc1 Lend
      v_lshlrev_b32 {v(vT1)}, 4, {v(vL)}
      v_lshrrev_b32 {v(vT2)}, 3, {v(vL)}
      v_and_b32 {v(vT3)}, 7, {v(vL)}
      s_and_b32 {s(sKS)}, {s(sA)}, 3
      s_lshr_b32 {s(sT0)}, {s(sA)}, 2
      s_lshl_b32 {s(sT1)}, {s(sKVH)}, 3
      s_add_u32 {s(sT0)}, {s(sT0)}, {s(sT1)}
      s_lshl_b32 {s(sT0)}, {s(sT0)}, 7
      s_lshl_b32 {s(sT1)}, {s(sKS)}, 20
      s_add_u32 {s(sT2)}, {s(sT0)}, {s(sT1)}
      s_movk_i32 {s(sSTR)}, 0x2000
      s_cmp_eq_u32 {s(sROLE)}, 0
      s_cbranch_scc1 Laux_w
      s_and_b32 {s(sKS)}, s2, 3
      s_lshr_b32 {s(sT0)}, s2, 2
      s_cmp_ge_u32 {s(sT0)}, 28
      s_cselect_b32 {s(sT3)}, 1, 0
      s_cselect_b32 {s(sT1)}, 28, 0
      s_sub_u32 {s(sT0)}, {s(sT0)}, {s(sT1)}
      s_lshl_b32 {s(sT2)}, {s(sT0)}, 7
      s_mul_i32 {s(sT1)}, {s(sKS)}, {128*3584}
      s_add_u32 {s(sT2)}, {s(sT2)}, {s(sT1)}
      s_movk_i32 {s(sSTR)}, 3584
      s_mov_b32 {s(sTILE)}, {s(sT0)}
      s_mov_b32 {s(sTILE+1)}, {s(sT3)}
      s_waitcnt lgkmcnt(0)
      s_cmp_eq_u32 {s(sT3)}, 0
      s_cselect_b32 {s(sWQ)}, {s(sG)}, {s(sU)}
      s_cselect_b32 {s(sWQ+1)}, {s(sG+1)}, {s(sU+1)}
    """)
    A("Laux_w:")
    A(f"""
      v_mul_lo_u32 {v(vT2)}, {v(vT2)}, {s(sSTR)}
      v_lshl_add_u32 {v(vT2)}, {v(vT3)}, 4, {v(vT2)}
      s_lshl_b32 {s(sT0)}, {s(sKS)}, 8
      v_lshlrev_b32 {v(vT0)}, 2, {v(vL)}
      v_add_u32 {v(vT0)}, {s(sT0)}, {v(vT0)}
      s_lshl_b32 {s(sT0)}, {s(sSTR)}, 3
      s_waitcnt lgkmcnt(0)
      s_add_u32 {s(sWb)}, {s(sWQ)}, {s(sT2)}
      s_addc_u32 {s(sWb+1)}, {s(sWQ+1)}, 0
      global_load_dwordx4 {v(vU,4)}, {v(vT1)}, {s(sX,2)}
      global_load_dwordx4 {v(vU+4,4)}, {v(vT1)}, {s(sX,2)} offset:1024
      global_load_dword {v(vEP)}, {v(vT7)}, {s(sWS,2)} sc1
      global_load_dword {v(vXS)}, {v(vT0)}, {s(sX,2)}
      global_load_dword {v(vXS+1)}, {v(vT0)}, {s(sX,2)} offset:1024
    """)
    for i in range(16):
        A(f"global_load_dwordx4 {v(vK+4*i,4)}, {v(vT2)}, {s(sWb,2)}{NT}")
        if i < 15:
            A(f"v_add_u32 {v(vT2)}, {s(sT0)}, {v(vT2)}")
    ts("issK")
    A("s_barrier")
    for i in range(17):
        A(f"v_mov_b32 {v(vWIN+4*i)}, 0")
        A(f"v_mov_b32 {v(vWIN+4*i+1)}, 0")
    A(f"""
      s_mov_b32 {s(sT0)}, 0xffff
      s_mov_b32 {s(sT1)}, 0xffff0000
      v_and_b32 {v(vT4)}, 1, {v(vL)}
      v_cmp_eq_u32 vcc, 1, {v(vT4)}
      v_mov_b32 {v(vT5)}, {s(sT0)}
      v_mov_b32 {v(vT6)}, {s(sT1)}
      v_cndmask_b32 {v(vT5)}, {v(vT5)}, {v(vT6)}, vcc
      v_and_b32 {v(vT4)}, 2, {v(vL)}
      v_cmp_eq_u32 vcc, 0, {v(vT4)}
      s_nop 1
      v_cndmask_b32 {v(vM0)}, 0, {v(vT5)}, vcc
      v_cmp_ne_u32 vcc, 0, {v(vT4)}
      s_nop 1
      v_cndmask_b32 {v(vM1)}, 0, {v(vT5)}, vcc
    """)
    A(f"""
      s_lshl_b32 {s(sT0)}, {s(sROLE)}, 10
      v_and_b32 {v(vAX)}, 3, {v(vL)}
      v_lshlrev_b32 {v(vAX)}, 7, {v(vAX)}
      v_lshrrev_b32 {v(vT4)}, 2, {v(vL)}
      v_lshl_add_u32 {v(vAX)}, {v(vT4)}, 2, {v(vAX)}
      v_add_u32 {v(vAX)}, {s(sT0)}, {v(vAX)}
      v_bfe_u32 {v(vAX+1)}, {v(vL)}, 2, 1
      v_lshlrev_b32 {v(vAX+1)}, 9, {v(vAX+1)}
      v_lshl_add_u32 {v(vAX+1)}, {v(vGq)}, 7, {v(vAX+1)}
      v_bfe_u32 {v(vT4)}, {v(vL)}, 3, 1
      v_lshl_add_u32 {v(vAX+1)}, {v(vT4)}, 6, {v(vAX+1)}
      v_add_u32 {v(vAX+1)}, {s(sT0)}, {v(vAX+1)}
      v_lshlrev_b32 {v(vAX+2)}, 8, {v(vGq)}
      v_and_b32 {v(vT4)}, 7, {v(vL)}
      v_lshl_add_u32 {v(vAX+2)}, {v(vT4)}, 5, {v(vAX+2)}
      v_add_u32 {v(vAX+2)}, {s(sT0)}, {v(vAX+2)}
    """)
    A(f"""
      s_cmp_eq_u32 {s(sROLE)}, 0
      s_cbranch_scc0 Laux_g1
      v_and_b32 {v(vT5)}, 31, {v(vL)}
      v_lshrrev_b32 {v(vT6)}, 5, {v(vL)}
      v_lshlrev_b32 {v(vAX+3)}, 3, {v(vT5)}
      v_lshl_add_u32 {v(vAX+3)}, {v(vT6)}, 8, {v(vAX+3)}
      s_lshl_b32 {s(sT1)}, {s(sKVH)}, 15
      s_lshl_b32 {s(sT2)}, {s(sKS)}, 12
      s_add_u32 {s(sT1)}, {s(sT1)}, {s(sT2)}
      s_lshr_b32 {s(sT2)}, {s(sA)}, 2
      s_lshl_b32 {s(sT2)}, {s(sT2)}, 9
      s_add_u32 {s(sT1)}, {s(sT1)}, {s(sT2)}
      s_add_u32 {s(sT1)}, {s(sT1)}, {WS_QG}
      v_lshlrev_b32 {v(vT6)}, 14, {v(vT6)}
      v_lshl_add_u32 {v(vT5)}, {v(vT5)}, 4, {v(vT6)}
      v_add_u32 {v(vAX+4)}, {s(sT1)}, {v(vT5)}
      s_branch Laux_g2
    """)
    A("Laux_g1:")
    A(f"""
      v_lshrrev_b32 {v(vT5)}, 3, {v(vL)}
      v_and_b32 {v(vT6)}, 3, {v(vL)}
      v_lshl_add_u32 {v(vAX+3)}, {v(vT5)}, 2, {v(vT6)}
      v_lshlrev_b32 {v(vAX+3)}, 3, {v(vAX+3)}
      v_bfe_u32 {v(vT6)}, {v(vL)}, 2, 1
      v_lshl_add_u32 {v(vAX+3)}, {v(vT6)}, 8, {v(vAX+3)}
      v_add_u32 {v(vAX+3)}, 1024, {v(vAX+3)}
      s_lshl_b32 {s(sT1)}, {s(sTILE)}, 13
      s_lshl_b32 {s(sT2)}, {s(sTILE+1)}, 2
      s_add_u32 {s(sT2)}, {s(sT2)}, {s(sKS)}
      s_lshl_b32 {s(sT2)}, {s(sT2)}, 7
      s_add_u32 {s(sT1)}, {s(sT1)}, {s(sT2)}
      s_add_u32 {s(sT1)}, {s(sT1)}, {WS_GG}
      v_lshlrev_b32 {v(vT5)}, 10, {v(vT5)}
      v_and_b32 {v(vT6)}, 7, {v(vL)}
      v_lshl_add_u32 {v(vT5)}, {v(vT6)}, 4, {v(vT5)}
      v_add_u32 {v(vAX+4)}, {s(sT1)}, {v(vT5)}
    """)
    A("Laux_g2:")
    A("s_waitcnt vmcnt(16)")
    ts("issV")
    A(f"v_readfirstlane_b32 {s(sTAG)}, {v(vEP)}")
    for k in range(4):
        A(f"v_lshlrev_b32 {v(vP+4*k)}, 16, {v(vU+k)}")
        A(f"v_lshlrev_b32 {v(vP+4*k+1)}, 16, {v(vU+4+k)}")
        A(f"v_and_b32 {v(vP+4*k+2)}, 0xffff0000, {v(vU+k)}")
        A(f"v_and_b32 {v(vP+4*k+3)}, 0xffff0000, {v(vU+4+k)}")
    A(f"s_add_u32 {s(sTAG)}, {s(sTAG)}, 0x{TAG_DELTA:x}")
    def allreduce2(r0, r1, t0, t1, op="v_add_f32"):
        for sh in (8, 4, 2, 1):
            A.nop(1)
            A(f"{op}_dpp {v(r0)}, {v(r0)}, {v(r0)} row_ror:{sh} row_mask:0xf bank_mask:0xf")
            A(f"{op}_dpp {v(r1)}, {v(r1)}, {v(r1)} row_ror:{sh} row_mask:0xf bank_mask:0xf")
        for sw in ("v_permlane16_swap_b32", "v_permlane32_swap_b32"):
            A(f"v_mov_b32 {v(t0)}, {v(r0)}")
            A(f"v_mov_b32 {v(t1)}, {v(r1)}")
            A.nop(1)
            A(f"{sw} {v(r0)}, {v(t0)}")
            A(f"{sw} {v(r1)}, {v(t1)}")
            A(f"{op} {v(r0)}, {v(r0)}, {v(t0)}")
            A(f"{op} {v(r1)}, {v(r1)}, {v(t1)}")
    A(f"v_pk_add_f32 {v(vT0,2)}, {v(vP,2)}, {v(vP+2,2)}")
    A(f"v_pk_add_f32 {v(vT2,2)}, {v(vP+4,2)}, {v(vP+6,2)}")
    A(f"v_pk_add_f32 {v(vT4,2)}, {v(vP+8,2)}, {v(vP+10,2)}")
    A(f"v_pk_add_f32 {v(vU,2)}, {v(vP+12,2)}, {v(vP+14,2)}")
    A(f"v_pk_add_f32 {v(vT0,2)}, {v(vT0,2)}, {v(vT2,2)}")
    A(f"v_pk_add_f32 {v(vT4,2)}, {v(vT4,2)}, {v(vU,2)}")
    A(f"v_pk_add_f32 {v(vT0,2)}, {v(vT0,2)}, {v(vT4,2)}")
    A.nop(1)
    allreduce2(vT0, vT0+1, vT2, vT3)
    A(f"v_mul_f32 {v(vT0)}, 0x3b000000, {v(vT0)}")
    A(f"v_mul_f32 {v(vT0+1)}, 0x3b000000, {v(vT0+1)}")
    for i in range(8):
        A(f"v_pk_add_f32 {v(vP+2*i,2)}, {v(vP+2*i,2)}, {v(vT0,2)} neg_lo:[0,1] neg_hi:[0,1]")
    A(f"v_pk_mul_f32 {v(vT2,2)}, {v(vP,2)}, {v(vP,2)}")
    A(f"v_pk_mul_f32 {v(vT4,2)}, {v(vP+2,2)}, {v(vP+2,2)}")
    for i in range(2, 8):
        acc = vT2 if i % 2 == 0 else vT4
        A(f"v_pk_fma_f32 {v(acc,2)}, {v(vP+2*i,2)}, {v(vP+2*i,2)}, {v(acc,2)}")
    A(f"v_pk_add_f32 {v(vT2,2)}, {v(vT2,2)}, {v(vT4,2)}")
    A(f"v_lshlrev_b32 {v(vP)}, 16, {v(vXS)}")
    A(f"v_lshlrev_b32 {v(vP+1)}, 16, {v(vXS+1)}")
    A(f"v_and_b32 {v(vP+2)}, 0xffff0000, {v(vXS)}")
    A(f"v_and_b32 {v(vP+3)}, 0xffff0000, {v(vXS+1)}")
    allreduce2(vT2, vT3, vT4, vT5)
    A(f"v_mul_f32 {v(vT2)}, 0x3b000000, {v(vT2)}")
    A(f"v_mul_f32 {v(vT3)}, 0x3b000000, {v(vT3)}")
    rnd_pair(vT0, vT6)
    rnd_pair(vT2, vT6)
    A(f"v_add_f32 {v(vT2)}, 0x3727c5ac, {v(vT2)}")
    A(f"v_add_f32 {v(vT3)}, 0x3727c5ac, {v(vT3)}")
    A(f"v_pk_add_f32 {v(vP,2)}, {v(vP,2)}, {v(vT0,2)} neg_lo:[0,1] neg_hi:[0,1]")
    A(f"v_pk_add_f32 {v(vP+2,2)}, {v(vP+2,2)}, {v(vT0,2)} neg_lo:[0,1] neg_hi:[0,1]")
    rnd_pair(vT2, vT6)
    A(f"v_sqrt_f32 {v(vT2)}, {v(vT2)}")
    A(f"v_sqrt_f32 {v(vT3)}, {v(vT3)}")
    rnd_pair(vP, vT6)
    rnd_pair(vP+2, vT6)
    rnd_pair(vT2, vT6)
    A(f"v_rcp_f32 {v(vT2)}, {v(vT2)}")
    A(f"v_rcp_f32 {v(vT3)}, {v(vT3)}")
    A.nop(1)
    A(f"v_pk_mul_f32 {v(vP,2)}, {v(vP,2)}, {v(vT2,2)}")
    A(f"v_pk_mul_f32 {v(vP+2,2)}, {v(vP+2,2)}, {v(vT2,2)}")
    for k in range(4):
        A(f"v_cvt_pk_bf16_f32 {v(vP+k)}, {v(vP+k)}, {v(vP+k)}")
    A(f"""
      ds_write_b32 {v(vAX)}, {v(vP)} offset:{L_XB}
      ds_write_b32 {v(vAX)}, {v(vP+1)} offset:{L_XB+512}
      ds_write_b32 {v(vAX)}, {v(vP+2)} offset:{L_XB+64}
      ds_write_b32 {v(vAX)}, {v(vP+3)} offset:{L_XB+512+64}
    """)
    for k in range(4):
        A(f"ds_read_b128 {v(vS+4*k,4)}, {v(vAX+1)} offset:{L_XB + 16*k}")
    ts("issW")
    for k in range(4):
        A(f"s_waitcnt lgkmcnt({3-k})")
        for j in range(4):
            i = 4*k + j
            A(f"v_and_b32 {v(vWIN+4*i+2)}, {v(vS+i)}, {v(vM0)}")
            A(f"v_and_b32 {v(vWIN+4*i+3)}, {v(vS+i)}, {v(vM1)}")
    A(f"v_mov_b32 {v(vU+1)}, {s(sTAG)}")
    A(f"v_mov_b32 {v(vU+3)}, {s(sTAG)}")
    for i in range(16):
        A(f"s_waitcnt vmcnt({15 - i})")
        c0 = "0" if i == 0 else v(vDL,4)
        c1 = "0" if i == 0 else v(vDH,4)
        A(f"v_mfma_f32_16x16x32_bf16 {v(vDL,4)}, {v(vWIN+4*i+2,4)}, {v(vK+4*i,4)}, {c0}")
        A(f"v_mfma_f32_16x16x32_bf16 {v(vDH,4)}, {v(vWIN+4*i,4)}, {v(vK+4*i,4)}, {c1}")
    ts("Kdone")
    A(f"""
      s_mov_b32 exec_lo, 0x00ff00ff
      s_mov_b32 exec_hi, 0xff00ff00
    """)
    A.nop(6)
    A(f"""
      ds_write_b128 {v(vAX+2)}, {v(vDL,4)} offset:{L_TR}
      ds_write_b128 {v(vAX+2)}, {v(vDH,4)} offset:{L_TR+16}
      s_mov_b64 exec, -1
      ds_read_b64 {v(vT0,2)}, {v(vAX+3)} offset:{L_TR}
      ds_read_b64 {v(vT2,2)}, {v(vAX+3)} offset:{L_TR+512}
      s_waitcnt lgkmcnt(0)
      v_add_f32 {v(vU)}, {v(vT0)}, {v(vT2)}
      v_add_f32 {v(vU+2)}, {v(vT0+1)}, {v(vT3)}
      global_store_dwordx4 {v(vAX+4)}, {v(vU,4)}, {s(sWS,2)} sc1
      s_cmp_lg_u32 {s(sROLE)}, 0
      s_cbranch_scc1 Laux_h
      s_lshl_b32 {s(sT0)}, {s(sKVH)}, 8
      s_lshl_b32 {s(sT1)}, {s(sA)}, 3
      s_add_u32 {s(sT0)}, {s(sT0)}, {s(sT1)}
      s_add_u32 {s(sT0)}, {s(sT0)}, {WS_XG}
      v_mov_b32 {v(vT0)}, {s(sT0)}
      v_mov_b32 {v(vT2)}, {s(sXCC)}
      v_mov_b32 {v(vT3)}, {s(sTAG)}
      s_mov_b64 exec, 1
      global_store_dwordx2 {v(vT0)}, {v(vT2,2)}, {s(sWS,2)} sc1
    """)
    ts("p_done")
    A("s_branch Lend")
    A("Laux_h:")
    ts("p_done")
    vGP = vU
    A(f"""
      s_lshl_b32 {s(sT0)}, s2, 10
      s_add_u32 {s(sT0)}, {s(sT0)}, {WS_GG}
      v_lshlrev_b32 {v(vT4)}, 4, {v(vL)}
      v_add_u32 {v(vAX+5)}, {s(sT0)}, {v(vT4)}
      v_mov_b32 {v(vCT)}, 0
      v_mov_b32 {v(vONE)}, 1
    """)
    def issue_g():
        A(f"global_load_dwordx4 {v(vGP,4)}, {v(vAX+5)}, {s(sWS,2)} sc1")
    wait_prog(QT)
    issue_g()
    poll_simple(issue_g, [vGP+1, vGP+3], "g", 0)
    for r in (vGP, vGP+2):
        A.nop(2)
        A(f"v_add_f32_dpp {v(r)}, {v(r)}, {v(r)} row_ror:8 row_mask:0xf bank_mask:0xf")
        A(f"v_mov_b32 {v(vT0)}, {v(r)}")
        A.nop(2)
        A(f"v_permlane16_swap_b32 {v(r)}, {v(vT0)}")
        A(f"v_add_f32 {v(r)}, {v(r)}, {v(vT0)}")
    for r, tt in ((vGP, vGP+1), (vGP+2, vGP+3)):
        A(f"v_mov_b32 {v(tt)}, {v(r)}")
        A.nop(2)
        A(f"v_permlane32_swap_b32 {v(r)}, {v(tt)}")
    A(f"""
      v_cvt_pk_bf16_f32 {v(vT6)}, {v(vGP)}, {v(vGP+2)}
      v_cvt_pk_bf16_f32 {v(vT7)}, {v(vGP+1)}, {v(vGP+3)}
      v_lshlrev_b32 {v(vS+8)}, 16, {v(vT6)}
      v_and_b32 {v(vS+9)}, 0xffff0000, {v(vT6)}
      v_lshlrev_b32 {v(vS+10)}, 16, {v(vT7)}
      v_and_b32 {v(vS+11)}, 0xffff0000, {v(vT7)}
      s_mov_b32 {s(sC0)}, 0xbfb8aa3b
      v_mul_f32 {v(vS+8)}, {s(sC0)}, {v(vS+8)}
      v_mul_f32 {v(vS+9)}, {s(sC0)}, {v(vS+9)}
      v_exp_f32 {v(vS+8)}, {v(vS+8)}
      v_exp_f32 {v(vS+9)}, {v(vS+9)}
      s_nop 0
      v_add_f32 {v(vS+8)}, 1.0, {v(vS+8)}
      v_add_f32 {v(vS+9)}, 1.0, {v(vS+9)}
      v_rcp_f32 {v(vS+8)}, {v(vS+8)}
      v_rcp_f32 {v(vS+9)}, {v(vS+9)}
      s_nop 0
      v_cvt_pk_bf16_f32 {v(vT6)}, {v(vS+8)}, {v(vS+9)}
      v_lshlrev_b32 {v(vS+8)}, 16, {v(vT6)}
      v_and_b32 {v(vS+9)}, 0xffff0000, {v(vT6)}
      v_pk_mul_f32 {v(vS+8,2)}, {v(vS+8,2)}, {v(vS+10,2)}
      v_cvt_pk_bf16_f32 {v(vS+12)}, {v(vS+8)}, {v(vS+8)}
      v_cvt_pk_bf16_f32 {v(vS+13)}, {v(vS+9)}, {v(vS+9)}
      v_bfe_u32 {v(vT4)}, {v(vL)}, 2, 1
      v_lshlrev_b32 {v(vT4)}, 6, {v(vT4)}
      v_and_b32 {v(vT5)}, 1, {v(vL)}
      v_lshl_add_u32 {v(vT4)}, {v(vT5)}, 5, {v(vT4)}
      v_bfe_u32 {v(vT5)}, {v(vL)}, 1, 1
      v_lshl_add_u32 {v(vT4)}, {v(vT5)}, 2, {v(vT4)}
      ds_write_b32 {v(vT4)}, {v(vS+12)} offset:{L_HV}
      ds_write_b32 {v(vT4)}, {v(vS+13)} offset:{L_HV+16}
      ds_write_b32 {v(vCT)}, {v(vONE)} offset:{L_CT + 16}
    """)
    ts("h_done")
    A("s_branch Lend")
    A("Lload:")
    role[0] = "X"
    A("s_setprio 3")
    A(f"""
      s_lshl_b32 {s(sT0)}, {s(sB)}, 3
      s_add_u32 {s(sT0)}, {s(sT0)}, {s(sKVH)}
      s_lshl_b32 {s(sT0)}, {s(sT0)}, 23
      s_and_b32 {s(sT1)}, {s(sA)}, 15
      s_lshl_b32 {s(sT1)}, {s(sT1)}, 16
      s_add_u32 {s(sT0)}, {s(sT0)}, {s(sT1)}
      s_add_u32 {s(sT2)}, {s(sT0)}, 0x700000
      v_lshlrev_b32 {v(vT4)}, 2, {v(vGq)}
      v_xor_b32 {v(vT4)}, {v(vT4)}, {v(vN)}
      v_lshlrev_b32 {v(vT5)}, 8, {v(vGq)}
      v_lshlrev_b32 {v(vQ+4)}, 4, {v(vL)}
      v_lshlrev_b32 {v(vT0)}, 2, {v(vL)}
      v_mov_b32 {v(vT1)}, 0
      ds_write_b32 {v(vT0)}, {v(vT1)} offset:{L_ZB}
      s_mov_b64 exec, 0xff
      ds_write_b32 {v(vT0)}, {v(vT1)} offset:{L_CT}
      s_mov_b64 exec, -1
    """)
    for i in range(4):
        A(f"v_xor_b32 {v(vT6)}, {i}, {v(vT4)}")
        A(f"v_lshl_add_u32 {v(vQ+i)}, {v(vT6)}, 4, {v(vT5)}")
    A(f"""
      s_mov_b32 {s(sSRK+2)}, 0x10000
      s_mov_b32 {s(sSRK+3)}, 0x20000
      s_mov_b32 {s(sSRV+2)}, 0x10000
      s_mov_b32 {s(sSRV+3)}, 0x20000
      s_waitcnt lgkmcnt(0)
      s_add_u32 {s(sSRK)}, {s(sK)}, {s(sT2)}
      s_addc_u32 {s(sSRK+1)}, {s(sK+1)}, 0
      s_and_b32 {s(sSRK+1)}, {s(sSRK+1)}, 0xffff
      s_add_u32 {s(sSRV)}, {s(sV)}, {s(sT2)}
      s_addc_u32 {s(sSRV+1)}, {s(sV+1)}, 0
      s_and_b32 {s(sSRV+1)}, {s(sSRV+1)}, 0xffff
      s_mov_b32 {s(sT3)}, 0
      s_mov_b32 {s(sTILE)}, {L_KL}
      s_barrier
    """)
    ts("issK")
    for ph, srd in ((0, sSRK), (1, sSRV)):
        w = WT if ph == 0 else WT2
        Ll = A.label("ld")
        A(f"{Ll}:")
        A(f"""
          s_add_u32 {s(sT0)}, {s(sT3)}, {s(sA)}
          s_and_b32 {s(sT0)}, {s(sT0)}, 15
          s_lshl_b32 {s(sT0)}, {s(sT0)}, 12
          s_sub_u32 {s(sT2)}, {s(sT3)}, {w - 1}
          s_max_i32 {s(sT2)}, {s(sT2)}, {s(sPROG)}
          s_waitcnt vmcnt({4*(w-1)})
          s_mov_b32 {s(sPROG)}, {s(sT2)}
          v_mov_b32 {v(vT1)}, {s(sT2)}
          ds_write_b32 {v(vCT)}, {v(vT1)} offset:{L_CT}
        """)
        for i in range(4):
            A(f"s_add_u32 m0, {s(sTILE)}, {1024*i}")
            A(f"s_add_u32 {s(sT1)}, {s(sT0)}, {1024*i}")
            off = vQ + i if ph == 0 else vQ + 4
            A(f"buffer_load_dwordx4 {v(off)}, {s(srd,4)}, {s(sT1)} offen{NT} lds")
        A(f"""
          s_add_u32 {s(sTILE)}, {s(sTILE)}, 4096
          s_add_u32 {s(sT3)}, {s(sT3)}, 1
          s_cmp_lt_u32 {s(sT3)}, {16*(ph+1)}
          s_cbranch_scc1 {Ll}
        """)
        ts("issV" if ph == 0 else "issW")
    for k in range(WT2 - 1, -1, -1):
        A(f"s_waitcnt vmcnt({4*k})")
        A(f"v_mov_b32 {v(vT1)}, {32 - k}")
        A(f"ds_write_b32 {v(vCT)}, {v(vT1)} offset:{L_CT}")
    ts("Kdone")
    A("Lend:")
    if TS:
        ts("end")
        A("s_waitcnt lgkmcnt(0)")
        A(f"""
          s_mov_b64 exec, 1
          s_mul_i32 {s(sT0)}, s2, 7
          s_add_u32 {s(sT0)}, {s(sT0)}, {s(sWAVE)}
          s_lshl_b32 {s(sT0)}, {s(sT0)}, 7
          s_add_u32 {s(sT0)}, {s(sT0)}, {WS_TS}
          v_mov_b32 {v(vT4)}, {s(sT0)}
        """)
        for k in range(19):
            A(f"v_mov_b32 {v(vT5)}, {s(64+2*k)}")
            A(f"global_store_dword {v(vT4)}, {v(vT5)}, {s(sWS,2)} offset:{4*k}")
    if LTS:
        Ll = A.label("lts")
        A(f"""
          s_cmp_lg_u32 {s(sWAVE)}, 0
          s_cbranch_scc1 {Ll}
          s_memrealtime s[66:67]
          s_lshl_b32 {s(sT0)}, s2, 3
          s_add_u32 {s(sT0)}, {s(sT0)}, {WS_TS}
          v_mov_b32 {v(vT4)}, {s(sT0)}
          s_waitcnt lgkmcnt(0)
          v_mov_b32 {v(vT0)}, s64
          v_mov_b32 {v(vT1)}, s66
          s_mov_b64 exec, 1
          global_store_dwordx2 {v(vT4)}, {v(vT0,2)}, {s(sWS,2)}
        """)
        A(f"{Ll}:")
    A("Lexit:")
    A("s_endpgm")
    A("Lcode_end:")
    A(f".set CODE_CHUNKS, (Lcode_end-{NAME})/1024")
    hdr = f"""; Fused decode step:  out = x + Attn(LN(x)) @ wo + (sigmoid(LN(x) Wg) * (LN(x) Wu)) @ Wd      (generated by gen/gen13.py)
;
; @launch grid=(256,1,1) block=(448,1,1) lds={LDS_BYTES}
.amdgcn_target "amdgcn-amd-amdhsa--gfx950"
.text
.globl {NAME}
.p2align 8
.type {NAME},@function
{NAME}:
"""
    ftr = f"""
.section .rodata,"a"
.p2align 6
.amdhsa_kernel {NAME}
  .amdhsa_next_free_vgpr {NV}
  .amdhsa_next_free_sgpr 102
  .amdhsa_accum_offset {NV}
  .amdhsa_group_segment_fixed_size 0
  .amdhsa_kernarg_size 96
  .amdhsa_user_sgpr_count 2
  .amdhsa_user_sgpr_kernarg_segment_ptr 1
  .amdhsa_system_sgpr_workgroup_id_x 1
.end_amdhsa_kernel
"""
    return hdr + A.text() + ftr, (ts_map if TS else None)

if __name__ == "__main__":
    out = sys.argv[1]
    opt = {}
    for a in sys.argv[2:]:
        k, val = a.split("=")
        opt[k] = int(val)
    txt, slots = gen(opt)
    open(out, "w").write(txt)
    print("wrote", out, "ts slots:", slots)
```

```python
import sys

NAME = "parallel_sum__sliding_block_cached__glu_gated_glu__decode_kernel"
NWAVES = 7
NAWAVES = 4

class Asm:
    def __init__(self):
        self.lines = []
        self.uid = 0
    def __call__(self, s):
        for ln in s.strip("\n").split("\n"):
            t = ln.strip()
            if not t: continue
            self.lines.append(t if t.endswith(":") else "  " + t)
    def label(self, base):
        self.uid += 1
        return f"L{base}_{self.uid}"
    def nop(self, n):
        while n > 0:
            k = min(n, 16)
            self(f"s_nop {k-1}")
            n -= k
    def text(self):
        return "\n".join(self.lines) + "\n"

def v(i, n=1):
    return f"v{i}" if n == 1 else f"v[{i}:{i+n-1}]"
def s(i, n=1):
    return f"s{i}" if n == 1 else f"s[{i}:{i+n-1}]"

WS_EPOCH = 0
WS_XG = 0x8000
WS_SG = 0x10000
WS_QG = 0x40000
WS_GG = 0x80000
WS_OG = 0x100000
WS_RG = 0x200000
WS_FG = 0x300000
WS_TS = 0x800000
TAG_DELTA = 0x9E3779B9

L_XB = 0
L_TR = 2048
L_QB = 4096
L_MX = 5120
L_LS = 5184
L_HV = 5248
L_CT = 5440
L_ZB = 5504
L_OP = 6144
L_KL = 16384
L_VL = 81920
LDS_BYTES = 147456

def gen(opt):
    A = Asm()
    TS = opt.get("ts", 0)
    LTS = opt.get("lts", 0)
    NT = " nt" if opt.get("nt", 1) else ""
    WIN = opt.get("win", 8)
    NTH = opt.get("nth", 17)
    QT = opt.get("qt", 8)
    WT = opt.get("wt", 8)
    WT2 = opt.get("wt2", 11)
    PT = opt.get("pt", 1)
    SPIN = opt.get("spin", 400000)
    CPF = opt.get("cpf", 1)
    FASTOK = opt.get("fast", 1)
    D1 = opt.get("d1", 3)
    D2 = opt.get("d2", 1)
    PGS = opt.get("pgs", 4352)
    role = ["A"]
    ts_map = {"A": ["start"], "X": ["start"]}
    SKIP = set(opt.get("_skip", ["issK", "q_done", "h_done", "q_n", "st_n"] + (["h1_n", "h2_n", "h3_n", "issQ"] if opt.get("det") else ["s_issued", "preM", "barM", "preS"]) + ["issV"]))
    def slot(name):
        if name == "start": return 0
        if name == "end": return 18
        l = ts_map[role[0]]
        if name not in l: l.append(name)
        assert len(l) <= 18, l
        return l.index(name)
    def ts(name):
        if TS and not (role[0] == "A" and name in SKIP):
            A(f"s_memrealtime {s(64 + 2*slot(name), 2)}")

    sX, sK, sV, sWQ, sWO, sBX, sG, sU = 4, 6, 8, 10, 12, 14, 16, 18
    sWD, sOUT, sDBG, sWS = 20, 22, 24, 26
    sKVH, sA, sB, sTAG, sWAVE = 28, 29, 30, 31, 32
    sT0, sT1, sT2, sT3 = 33, 34, 35, 36
    sSPIN = 37
    sC0 = 38
    sEX = 40
    sXCC, sMODE = 42, 43
    sSRK = 44
    sSRV = 48
    sWb = 52
    sWDb = 54
    sSTR = 56
    sKS = 57
    sTILE = 58
    sROLE = 62
    sPROG = 63
    vL, vN, vGq = 1, 2, 3
    vT0, vT1, vT2, vT3, vT4, vT5, vT6, vT7 = 4, 5, 6, 7, 8, 9, 10, 11
    vM0, vM1 = 12, 13
    vMK = 14
    vEP = 18
    vXR = 18
    vOA = 20
    vD3 = 28
    vQ = 32
    vS = 48
    vK = 64
    vV = 128
    vWO = 192
    vP = 216
    vU = 232
    vAX = 240
    NV = 256
    vAq, vAg, vAx, vAw0, vAw1, vAw2 = vAX, vAX+4, vAX+5, vAX+6, vAX+7, vAX+8
    vAo, vAr0, vAr1, vAog, vAst, vApo, vApg = vAX+9, vAX+10, vAX+11, vAX+12, vAX+13, vAX+14, vAX+15
    vAr, vAf = vAX+4, vP+15
    vCT, vONE = vP+14, vP+13
    vAsl, vAss = vP+12, 19
    vAk = vS + 4
    vAv = vS + 8
    vAm = vS + 9

    def xrow(r, t, op):
        for sw in ("v_permlane16_swap_b32", "v_permlane32_swap_b32"):
            A(f"v_mov_b32 {v(t)}, {v(r)}")
            A.nop(2)
            A(f"{sw} {v(r)}, {v(t)}")
            A(f"{op} {v(r)}, {v(r)}, {v(t)}")
    def rnd_pair(r, t):
        A(f"v_cvt_pk_bf16_f32 {v(t)}, {v(r)}, {v(r+1)}")
        A(f"v_lshlrev_b32 {v(r)}, 16, {v(t)}")
        A(f"v_and_b32 {v(r+1)}, 0xffff0000, {v(t)}")
    def check(regs):
        tmp = [vT6, vT7, vU+6]
        first = True
        i = 0
        regs = list(regs)
        A(f"v_xor_b32 {v(vT6)}, {s(sTAG)}, {v(regs[0])}")
        i = 1
        while i < len(regs):
            if i + 1 < len(regs):
                A(f"v_xor_b32 {v(vT7)}, {s(sTAG)}, {v(regs[i])}")
                A(f"v_xor_b32 {v(vU+6)}, {s(sTAG)}, {v(regs[i+1])}")
                A(f"v_or3_b32 {v(vT6)}, {v(vT6)}, {v(vT7)}, {v(vU+6)}")
                i += 2
            else:
                A(f"v_xor_b32 {v(vT7)}, {s(sTAG)}, {v(regs[i])}")
                A(f"v_or_b32 {v(vT6)}, {v(vT6)}, {v(vT7)}")
                i += 1
        A(f"v_cmp_ne_u32 vcc, 0, {v(vT6)}")
    def poll_simple(issue, tagregs, name, waitn):
        Lr = A.label(name + "_retry"); Lk = A.label(name + "_ok")
        if TS and name + "_n" not in SKIP and name != "g": A(f"s_mov_b32 {s(64+2*slot(name + '_n'))}, 0")
        A(f"s_waitcnt vmcnt({waitn})")
        check(tagregs)
        A(f"s_cbranch_vccz {Lk}")
        A(f"s_mov_b32 {s(sSPIN)}, {SPIN}")
        A(f"{Lr}:")
        A("s_mov_b64 exec, vcc")
        issue()
        A("s_waitcnt vmcnt(0)")
        check(tagregs)
        A(f"s_cbranch_vccz {Lk}_x")
        A(f"s_sub_u32 {s(sSPIN)}, {s(sSPIN)}, 1")
        A(f"s_cmp_lg_u32 {s(sSPIN)}, 0")
        A(f"s_cbranch_scc1 {Lr}")
        A(f"{Lk}_x:")
        A("s_mov_b64 exec, -1")
        if TS and name + "_n" not in SKIP and name != "g": A(f"s_sub_u32 {s(64+2*slot(name + '_n'))}, {SPIN+1}, {s(sSPIN)}")
        A(f"{Lk}:")
    def poll_pipe(issue, nld, tagregs, name, depth, primed, masked):
        Lr = A.label(name + "_loop"); Lk = A.label(name + "_ok"); Lf = A.label(name + "_first")
        A(f"s_mov_b32 {s(sSPIN)}, {SPIN}")
        if primed >= depth:
            A(f"s_branch {Lf}")
        else:
            for _ in range(depth - 1 - primed): issue()
        A(f"{Lr}:")
        issue()
        A(f"{Lf}:")
        A(f"s_waitcnt vmcnt({nld*(depth-1)})")
        check(tagregs)
        A(f"s_cbranch_vccz {Lk}")
        if masked: A("s_mov_b64 exec, vcc")
        A(f"s_sub_u32 {s(sSPIN)}, {s(sSPIN)}, 1")
        A(f"s_cmp_lg_u32 {s(sSPIN)}, 0")
        A(f"s_cbranch_scc1 {Lr}")
        A(f"{Lk}:")
        if masked: A("s_mov_b64 exec, -1")
        if TS and name + "_n" not in SKIP: A(f"s_sub_u32 {s(64+2*slot(name + '_n'))}, {SPIN}, {s(sSPIN)}")
    def lds_spin(off, dst, cmp_txt):
        Ll = A.label("sp"); Lx = A.label("spx")
        A(f"s_mov_b32 {s(sSPIN)}, {SPIN}")
        A(f"{Ll}:")
        A(f"ds_read_b32 {v(vT7)}, {v(vCT)} offset:{L_CT + off}")
        A(f"s_sub_u32 {s(sSPIN)}, {s(sSPIN)}, 1")
        A(f"s_cbranch_scc1 {Lx}")
        A("s_waitcnt lgkmcnt(0)")
        A(f"v_readfirstlane_b32 {s(dst)}, {v(vT7)}")
        A(cmp_txt)
        A(f"s_cbranch_scc1 {Ll}")
        A(f"{Lx}:")
        A("s_waitcnt lgkmcnt(0)")
    def wait_prog(target_txt):
        Ld = A.label("wpd")
        A(f"s_cmp_ge_u32 {s(sPROG)}, {target_txt}")
        A(f"s_cbranch_scc1 {Ld}")
        lds_spin(0, sPROG, f"s_cmp_lt_u32 {s(sPROG)}, {target_txt}")
        A(f"{Ld}:")
    def swbar(off, target):
        A("s_waitcnt lgkmcnt(0)")
        A("s_mov_b64 exec, 1")
        A(f"ds_add_u32 {v(vCT)}, {v(vONE)} offset:{L_CT + off}")
        A("s_mov_b64 exec, -1")
        lds_spin(off, sT3, f"s_cmp_lt_u32 {s(sT3)}, {target}")
    def pretouch():
        Lp = A.label("pt"); Lq = A.label("ptf")
        A(f"""
          s_cmp_lg_u32 {s(sWAVE)}, 0
          s_cbranch_scc1 {Lp}
          global_load_dwordx4 {v(vWO,4)}, {v(vAst)}, {s(sWS,2)} sc1
          global_load_dwordx4 {v(vWO+4,4)}, {v(vAst)}, {s(sWS,2)} offset:128 sc1
          global_load_dwordx4 {v(vWO+8,4)}, {v(vApo)}, {s(sWS,2)} sc1
          global_load_dwordx4 {v(vWO+12,4)}, {v(vApo)}, {s(sWS,2)} offset:512 sc1
          v_lshlrev_b32 {v(vT4)}, 4, {v(vL)}
          v_and_b32 {v(vT5)}, 0xfffff000, {v(vAr)}
          v_add_u32 {v(vT4)}, {v(vT5)}, {v(vT4)}
          global_load_dwordx4 {v(vWO,4)}, {v(vT4)}, {s(sWS,2)} sc1
          global_load_dwordx4 {v(vWO+4,4)}, {v(vT4)}, {s(sWS,2)} offset:1024 sc1
          global_load_dwordx4 {v(vWO+8,4)}, {v(vT4)}, {s(sWS,2)} offset:2048 sc1
          global_load_dwordx4 {v(vWO+12,4)}, {v(vT4)}, {s(sWS,2)} offset:3072 sc1
          s_and_b32 {s(sT0)}, {s(sA)}, 7
          s_cmp_lg_u32 {s(sT0)}, {s(sKVH)}
          s_cbranch_scc1 {Lp}
          s_lshl_b32 {s(sT0)}, {s(sA)}, 11
          s_add_u32 {s(sT0)}, {s(sT0)}, {WS_FG}
          v_lshlrev_b32 {v(vT4)}, 4, {v(vL)}
          v_add_u32 {v(vT4)}, {s(sT0)}, {v(vT4)}
          global_load_dwordx4 {v(vWO,4)}, {v(vT4)}, {s(sWS,2)} sc1
          global_load_dwordx4 {v(vWO+4,4)}, {v(vT4)}, {s(sWS,2)} offset:1024 sc1
        """)
        A(f"{Lp}:")
    def store_mode(txt):
        if not FASTOK:
            A(txt + " sc1"); return
        La = A.label("sts"); Lb = A.label("ste")
        A(f"s_cmp_eq_u32 {s(sMODE)}, 0")
        A(f"s_cbranch_scc1 {La}")
        A(txt)
        A(f"s_branch {Lb}")
        A(f"{La}:")
        A(txt + " sc1")
        A(f"{Lb}:")

    A("s_cmp_ge_u32 s2, 256")
    A("s_cbranch_scc1 Lexit")
    A(f"s_load_dwordx16 {s(4,16)}, s[0:1], 0")
    A(f"s_load_dwordx8 {s(20,8)}, s[0:1], 64")
    ts("start")
    if LTS: A("s_memrealtime s[64:65]")
    if CPF:
        A(f"""
          s_getpc_b64 {s(sC0,2)}
        Lpc:
          v_lshrrev_b32 {v(vT0)}, 6, v0
          s_bfe_u32 {s(sT0)}, s2, 0x10003
          s_mul_i32 {s(sT0)}, {s(sT0)}, 7
          v_add_u32 {v(vT0)}, {s(sT0)}, {v(vT0)}
          v_min_u32 {v(vT0)}, CODE_CHUNKS-1, {v(vT0)}
          v_lshlrev_b32 {v(vT0)}, 10, {v(vT0)}
          v_and_b32 {v(vT1)}, 63, v0
          v_lshl_add_u32 {v(vT0)}, {v(vT1)}, 4, {v(vT0)}
          s_sub_u32 {s(sC0)}, {s(sC0)}, Lpc-{NAME}
          s_subb_u32 {s(sC0+1)}, {s(sC0+1)}, 0
          global_load_dwordx4 {v(vWO+20,4)}, {v(vT0)}, {s(sC0,2)}
        """)
    A(f"""
      v_and_b32 {v(vL)}, 63, v0
      v_lshrrev_b32 {v(vT0)}, 6, v0
      v_and_b32 {v(vN)}, 15, v0
      v_bfe_u32 {v(vGq)}, v0, 4, 2
      v_readfirstlane_b32 {s(sWAVE)}, {v(vT0)}
      s_and_b32 {s(sKVH)}, s2, 7
      s_lshr_b32 {s(sA)}, s2, 3
      s_lshr_b32 {s(sB)}, {s(sA)}, 4
      s_getreg_b32 {s(sXCC)}, hwreg(HW_REG_XCC_ID)
      s_and_b32 {s(sXCC)}, {s(sXCC)}, 15
      v_mov_b32 {v(vT7)}, 0
      v_mov_b32 {v(vCT)}, 0
      v_mov_b32 {v(vONE)}, 1
      s_mov_b32 {s(sPROG)}, 0
      s_cmp_eq_u32 {s(sWAVE)}, 6
      s_cbranch_scc1 Lload
      s_cmp_ge_u32 {s(sWAVE)}, 4
      s_cbranch_scc1 Laux
    """)
    vQP = vQ
    vXP = vOA + 4
    def issue_q():
        for ks in range(4):
            A(f"global_load_dwordx4 {v(vQP+4*ks,4)}, {v(vAq+ks)}, {s(sWS,2)} sc1")
    def issue_x():
        A(f"global_load_dwordx2 {v(vXP,2)}, {v(vAx)}, {s(sWS,2)} sc1")
    def issue_qx():
        issue_q(); issue_x()
    A(f"""
      v_and_b32 {v(vT3)}, 3, {v(vN)}
      v_lshlrev_b32 {v(vT3)}, 10, {v(vT3)}
      v_lshrrev_b32 {v(vT4)}, 2, {v(vN)}
      v_lshl_add_u32 {v(vT3)}, {v(vT4)}, 8, {v(vT3)}
      s_lshl_b32 {s(sT0)}, {s(sWAVE)}, 12
      s_add_u32 {s(sT1)}, {s(sT0)}, {L_KL}
      v_add_u32 {v(vT3)}, {s(sT1)}, {v(vT3)}
      v_xor_b32 {v(vT4)}, {v(vGq)}, {v(vN)}
    """)
    for jj in range(4):
        A(f"v_xor_b32 {v(vT5)}, {4*jj}, {v(vT4)}")
        A(f"v_lshl_add_u32 {v(vAk+jj)}, {v(vT5)}, 4, {v(vT3)}")
    A(f"""
      s_add_u32 {s(sT1)}, {s(sT0)}, {L_VL}
      v_lshlrev_b32 {v(vAv)}, 4, {v(vL)}
      v_add_u32 {v(vAv)}, {s(sT1)}, {v(vAv)}
      s_waitcnt lgkmcnt(0)
      global_load_dword {v(vEP)}, {v(vT7)}, {s(sWS,2)} sc1
    """)
    A(f"""
      s_lshl_b32 {s(sT0)}, {s(sKVH)}, 19
      s_lshl_b32 {s(sT1)}, {s(sA)}, 14
      s_add_u32 {s(sT0)}, {s(sT0)}, {s(sT1)}
      s_lshl_b32 {s(sT1)}, {s(sWAVE)}, 8
      s_add_u32 {s(sT0)}, {s(sT0)}, {s(sT1)}
      s_add_u32 {s(sWb)}, {s(sWO)}, {s(sT0)}
      s_addc_u32 {s(sWb+1)}, {s(sWO+1)}, 0
      s_cmp_lt_u32 s2, 224
      s_cselect_b32 {s(sT0)}, s2, 0
      s_lshl_b32 {s(sT0)}, {s(sT0)}, 13
      s_add_u32 {s(sT0)}, {s(sT0)}, {s(sT1)}
      s_add_u32 {s(sWDb)}, {s(sWD)}, {s(sT0)}
      s_addc_u32 {s(sWDb+1)}, {s(sWD+1)}, 0
      v_lshlrev_b32 {v(vAw0)}, 10, {v(vGq)}
      v_lshl_add_u32 {v(vAw0)}, {v(vN)}, 4, {v(vAw0)}
      v_add_u32 {v(vAw1)}, 0x1000, {v(vAw0)}
      s_lshl_b32 {s(sT0)}, {s(sKVH)}, 1
      s_add_u32 {s(sT0)}, {s(sT0)}, {s(sB)}
      s_lshl_b32 {s(sT0)}, {s(sT0)}, 14
      s_lshl_b32 {s(sT1)}, {s(sWAVE)}, 10
      s_add_u32 {s(sT0)}, {s(sT0)}, {s(sT1)}
      s_add_u32 {s(sT0)}, {s(sT0)}, {WS_QG}
      v_lshlrev_b32 {v(vT4)}, 4, {v(vL)}
      v_add_u32 {v(vAq)}, {s(sT0)}, {v(vT4)}
      v_add_u32 {v(vAq+1)}, 0x1000, {v(vAq)}
      v_add_u32 {v(vAq+2)}, 0x2000, {v(vAq)}
      v_add_u32 {v(vAq+3)}, 0x3000, {v(vAq)}
      s_lshl_b32 {s(sT0)}, {s(sKVH)}, 8
      s_add_u32 {s(sT0)}, {s(sT0)}, {WS_XG}
      v_and_b32 {v(vT4)}, 31, {v(vL)}
      v_lshlrev_b32 {v(vT4)}, 3, {v(vT4)}
      v_add_u32 {v(vAx)}, {s(sT0)}, {v(vT4)}
      s_mov_b32 {s(sT0)}, 0xffff
      s_mov_b32 {s(sT1)}, 0xffff0000
      v_and_b32 {v(vT4)}, 1, {v(vL)}
      v_cmp_eq_u32 vcc, 1, {v(vT4)}
      v_mov_b32 {v(vT5)}, {s(sT0)}
      v_mov_b32 {v(vT6)}, {s(sT1)}
      v_cndmask_b32 {v(vT5)}, {v(vT5)}, {v(vT6)}, vcc
      v_and_b32 {v(vT4)}, 2, {v(vL)}
      v_cmp_eq_u32 vcc, 0, {v(vT4)}
      s_nop 1
      v_cndmask_b32 {v(vM0)}, 0, {v(vT5)}, vcc
      v_cmp_ne_u32 vcc, 0, {v(vT4)}
      s_nop 1
      v_cndmask_b32 {v(vM1)}, 0, {v(vT5)}, vcc
      v_bfe_u32 {v(vT4)}, {v(vL)}, 1, 2
    """)
    for i in range(4):
        A(f"v_cmp_eq_u32 vcc, {i}, {v(vT4)}")
        A("s_nop 1")
        A(f"v_cndmask_b32 {v(vMK+i)}, 0, {v(vT5)}, vcc")
    A(f"""
      s_lshl_b32 {s(sT0)}, {s(sWAVE)}, 11
      s_add_u32 {s(sT0)}, {s(sT0)}, {L_OP}
      v_lshlrev_b32 {v(vAo)}, 9, {v(vGq)}
      v_lshl_add_u32 {v(vAo)}, {v(vN)}, 5, {v(vAo)}
      v_add_u32 {v(vAo)}, {s(sT0)}, {v(vAo)}
      v_lshrrev_b32 {v(vT4)}, 3, {v(vL)}
      v_lshlrev_b32 {v(vT4)}, 4, {v(vT4)}
      v_and_b32 {v(vT5)}, 1, {v(vL)}
      v_lshl_add_u32 {v(vT4)}, {v(vT5)}, 3, {v(vT4)}
      v_bfe_u32 {v(vT5)}, {v(vL)}, 1, 2
      v_add_u32 {v(vT4)}, {v(vT4)}, {v(vT5)}
      v_lshlrev_b32 {v(vT4)}, 2, {v(vT4)}
      s_lshl_b32 {s(sT0)}, {s(sWAVE)}, 9
      s_add_u32 {s(sT0)}, {s(sT0)}, {L_OP}
      v_add_u32 {v(vAr0)}, {s(sT0)}, {v(vT4)}
      v_add_u32 {v(vAr1)}, 16, {v(vAr0)}
      s_lshl_b32 {s(sT0)}, {s(sKVH)}, 16
      s_lshl_b32 {s(sT1)}, {s(sWAVE)}, 14
      s_add_u32 {s(sT0)}, {s(sT0)}, {s(sT1)}
      s_lshl_b32 {s(sT1)}, {s(sA)}, 6
      s_add_u32 {s(sT0)}, {s(sT0)}, {s(sT1)}
      s_add_u32 {s(sT0)}, {s(sT0)}, {WS_OG}
      v_lshrrev_b32 {v(vT4)}, 3, {v(vL)}
      v_lshlrev_b32 {v(vT4)}, 11, {v(vT4)}
      v_and_b32 {v(vT5)}, 7, {v(vL)}
      v_lshl_add_u32 {v(vT4)}, {v(vT5)}, 3, {v(vT4)}
      v_add_u32 {v(vAog)}, {s(sT0)}, {v(vT4)}
      s_lshl_b32 {s(sT0)}, {s(sKVH)}, 2
      s_lshr_b32 {s(sT1)}, {s(sA)}, 3
      s_add_u32 {s(sT0)}, {s(sT0)}, {s(sT1)}
      s_lshl_b32 {s(sT0)}, {s(sT0)}, 9
      s_add_u32 {s(sT0)}, {s(sT0)}, {WS_SG}
      v_bfe_u32 {v(vT4)}, {v(vL)}, 3, 1
      v_lshlrev_b32 {v(vAst)}, 8, {v(vT4)}
      v_lshl_add_u32 {v(vAst)}, {v(vT5)}, 4, {v(vAst)}
      v_add_u32 {v(vAst)}, {s(sT0)}, {v(vAst)}
      s_lshl_b32 {s(sT0)}, {s(sKVH)}, 5
      s_add_u32 {s(sT0)}, {s(sT0)}, {s(sA)}
      s_lshl_b32 {s(sT0)}, {s(sT0)}, 11
      s_add_u32 {s(sT0)}, {s(sT0)}, {WS_OG}
      v_lshlrev_b32 {v(vApo)}, 10, {v(vT4)}
      v_lshl_add_u32 {v(vApo)}, {v(vT5)}, 6, {v(vApo)}
      v_lshl_add_u32 {v(vApo)}, {v(vGq)}, 4, {v(vApo)}
      v_add_u32 {v(vApo)}, {s(sT0)}, {v(vApo)}
      s_lshl_b32 {s(sT0)}, {s(sKVH)}, 17
      s_lshl_b32 {s(sT1)}, {s(sWAVE)}, 14
      s_add_u32 {s(sT0)}, {s(sT0)}, {s(sT1)}
      s_lshl_b32 {s(sT1)}, {s(sA)}, 7
      s_add_u32 {s(sT0)}, {s(sT0)}, {s(sT1)}
      s_add_u32 {s(sT0)}, {s(sT0)}, {WS_RG}
      v_lshrrev_b32 {v(vT4)}, 1, {v(vGq)}
      v_lshlrev_b32 {v(vT4)}, 16, {v(vT4)}
      v_lshrrev_b32 {v(vT5)}, 2, {v(vN)}
      v_lshl_add_u32 {v(vT4)}, {v(vT5)}, 12, {v(vT4)}
      v_and_b32 {v(vT5)}, 3, {v(vN)}
      v_lshl_add_u32 {v(vT4)}, {v(vT5)}, 5, {v(vT4)}
      v_and_b32 {v(vT5)}, 1, {v(vGq)}
      v_lshl_add_u32 {v(vT4)}, {v(vT5)}, 4, {v(vT4)}
      v_add_u32 {v(vApg)}, {s(sT0)}, {v(vT4)}
      s_lshl_b32 {s(sT0)}, {s(sKVH)}, 5
      s_add_u32 {s(sT0)}, {s(sT0)}, {s(sA)}
      s_lshl_b32 {s(sT0)}, {s(sT0)}, 12
      s_lshl_b32 {s(sT1)}, {s(sWAVE)}, 5
      s_add_u32 {s(sT0)}, {s(sT0)}, {s(sT1)}
      s_add_u32 {s(sT0)}, {s(sT0)}, {WS_RG}
      v_lshrrev_b32 {v(vAr)}, 1, {v(vL)}
      v_lshlrev_b32 {v(vAr)}, 7, {v(vAr)}
      v_and_b32 {v(vT0)}, 1, {v(vL)}
      v_lshl_add_u32 {v(vAr)}, {v(vT0)}, 4, {v(vAr)}
      v_add_u32 {v(vAr)}, {s(sT0)}, {v(vAr)}
      s_lshl_b32 {s(sT0)}, {s(sA)}, 11
      s_lshl_b32 {s(sT1)}, {s(sKVH)}, 8
      s_add_u32 {s(sT0)}, {s(sT0)}, {s(sT1)}
      s_lshl_b32 {s(sT1)}, {s(sWAVE)}, 6
      s_add_u32 {s(sT0)}, {s(sT0)}, {s(sT1)}
      s_add_u32 {s(sT0)}, {s(sT0)}, {WS_FG}
      v_lshlrev_b32 {v(vAf)}, 5, {v(vT0)}
      v_lshl_add_u32 {v(vAf)}, {v(vGq)}, 3, {v(vAf)}
      v_add_u32 {v(vAf)}, {s(sT0)}, {v(vAf)}
      v_mov_b32 {v(vD3)}, 0
      v_mov_b32 {v(vD3+1)}, 0
      v_mov_b32 {v(vD3+2)}, 0
      v_mov_b32 {v(vD3+3)}, 0
    """)
    A(f"""
      v_lshrrev_b32 {v(vT4)}, 2, {v(vN)}
      v_lshlrev_b32 {v(vT4)}, 8, {v(vT4)}
      v_lshl_add_u32 {v(vT4)}, {v(vGq)}, 4, {v(vT4)}
      v_add_u32 {v(vT4)}, {L_QB}, {v(vT4)}
      v_lshlrev_b32 {v(vT5)}, 4, {v(vGq)}
      v_add_u32 {v(vT5)}, {L_ZB}, {v(vT5)}
      v_and_b32 {v(vT6)}, 3, {v(vN)}
    """)
    for c in range(4):
        A(f"v_cmp_eq_u32 vcc, {c}, {v(vT6)}")
        A("s_nop 1")
        A(f"v_cndmask_b32 {v(vAm+c)}, {v(vT5)}, {v(vT4)}, vcc")
    A("s_barrier")
    A(f"""
      s_waitcnt vmcnt(0)
      v_readfirstlane_b32 {s(sTAG)}, {v(vEP)}
      s_add_u32 {s(sTAG)}, {s(sTAG)}, 0x{TAG_DELTA:x}
    """)
    wait_prog(QT)
    ts("issQ")
    issue_qx()
    def kreads():
        for tt in range(4):
            for jj in range(4):
                A(f"ds_read_b128 {v(vK+16*tt+4*jj,4)}, {v(vAk+jj)} offset:{16384*tt}")
    sKR = sT2
    Lk1 = A.label("k1"); Lk2 = A.label("k2")
    A(f"""
      ds_read_b32 {v(vT7)}, {v(vCT)} offset:{L_CT}
      s_mov_b32 {s(sKR)}, 0
      s_waitcnt lgkmcnt(0)
      v_readfirstlane_b32 {s(sPROG)}, {v(vT7)}
      s_cmp_lt_u32 {s(sPROG)}, 16
      s_cbranch_scc1 {Lk1}
      s_mov_b32 {s(sKR)}, 1
    """)
    kreads()
    A(f"{Lk1}:")
    poll_simple(issue_qx, [vQP+4*i+k for i in range(4) for k in (1, 3)] + [vXP+1], "q", 0)
    ts("q_done")
    A(f"""
      v_add_f32 {v(vQP)}, {v(vQP)}, {v(vQP+4)}
      v_add_f32 {v(vQP+2)}, {v(vQP+2)}, {v(vQP+6)}
      v_add_f32 {v(vQP+8)}, {v(vQP+8)}, {v(vQP+12)}
      v_add_f32 {v(vQP+10)}, {v(vQP+10)}, {v(vQP+14)}
      v_add_f32 {v(vQP)}, {v(vQP)}, {v(vQP+8)}
      v_add_f32 {v(vQP+2)}, {v(vQP+2)}, {v(vQP+10)}
      v_cvt_pk_bf16_f32 {v(vQP)}, {v(vQP)}, {v(vQP+2)}
      v_lshlrev_b32 {v(vT4)}, 2, v0
      ds_write_b32 {v(vT4)}, {v(vQP)} offset:{L_QB}
      v_cmp_ne_u32 vcc, {s(sXCC)}, {v(vXP)}
      s_cmp_eq_u64 vcc, 0
      s_cselect_b32 {s(sMODE)}, 1, 0
      v_lshrrev_b32 {v(vT2)}, 2, {v(vN)}
      v_lshlrev_b32 {v(vT2)}, 4, {v(vT2)}
      s_lshl_b32 {s(sT0)}, {s(sWAVE)}, 2
      v_add_u32 {v(vT3)}, {s(sT0)}, {v(vT2)}
    """)
    swbar(4, 4)
    ts("barX")
    if PT == 3: pretouch()
    A(f"s_cmp_eq_u32 {s(sKR)}, 1")
    A(f"s_cbranch_scc1 {Lk2}")
    wait_prog(16)
    kreads()
    A(f"{Lk2}:")
    ts("k_land")
    for tt in range(4):
        for jj in range(4):
            A(f"ds_read_b128 {v(vV+16*tt+4*jj,4)}, {v(vAm+tt)} offset:{64*jj}")
    for tt in range(4):
        A(f"s_waitcnt lgkmcnt({12 - 4*tt})")
        for jj in range(4):
            c = "0" if (tt == 0 and jj == 0) else v(vS,4)
            A(f"v_mfma_f32_16x16x32_bf16 {v(vS,4)}, {v(vK+16*tt+4*jj,4)}, {v(vV+16*tt+4*jj,4)}, {c}")
    ts("s_issued")
    A(f"s_mov_b32 {s(sC0)}, 0x3db504f3")
    A(f"s_mov_b32 {s(sC0+1)}, 0x3db504f3")
    A.nop(6)
    A(f"""
      v_cvt_pk_bf16_f32 {v(vU)}, {v(vS)}, {v(vS+1)}
      v_cvt_pk_bf16_f32 {v(vU+1)}, {v(vS+2)}, {v(vS+3)}
      v_lshlrev_b32 {v(vS)}, 16, {v(vU)}
      v_and_b32 {v(vS+1)}, 0xffff0000, {v(vU)}
      v_lshlrev_b32 {v(vS+2)}, 16, {v(vU+1)}
      v_and_b32 {v(vS+3)}, 0xffff0000, {v(vU+1)}
      v_pk_mul_f32 {v(vS,2)}, {v(vS,2)}, {s(sC0,2)}
      v_pk_mul_f32 {v(vS+2,2)}, {v(vS+2,2)}, {s(sC0,2)}
      v_cvt_pk_bf16_f32 {v(vU)}, {v(vS)}, {v(vS+1)}
      v_cvt_pk_bf16_f32 {v(vU+1)}, {v(vS+2)}, {v(vS+3)}
      v_lshlrev_b32 {v(vS)}, 16, {v(vU)}
      v_and_b32 {v(vS+1)}, 0xffff0000, {v(vU)}
      v_lshlrev_b32 {v(vS+2)}, 16, {v(vU+1)}
      v_and_b32 {v(vS+3)}, 0xffff0000, {v(vU+1)}
      v_max3_f32 {v(vT0)}, {v(vS)}, {v(vS+1)}, {v(vS+2)}
      v_max_f32 {v(vT0)}, {v(vT0)}, {v(vS+3)}
    """)
    def quad(r, op):
        for ctrl in ("quad_perm:[1,0,3,2]", "quad_perm:[2,3,0,1]"):
            A.nop(2)
            A(f"{op}_dpp {v(r)}, {v(r)}, {v(r)} {ctrl} row_mask:0xf bank_mask:0xf")
    quad(vT0, "v_max_f32")
    xrow(vT0, vT1, "v_max_f32")
    A(f"ds_write_b32 {v(vT3)}, {v(vT0)} offset:{L_MX}")
    ts("preM")
    swbar(8, 4)
    ts("barM")
    A(f"""
      ds_read_b128 {v(vU,4)}, {v(vT2)} offset:{L_MX}
      s_mov_b32 {s(sC0)}, 0x3fb8aa3b
      s_waitcnt lgkmcnt(0)
      v_max3_f32 {v(vT0)}, {v(vU)}, {v(vU+1)}, {v(vU+2)}
      v_max_f32 {v(vT0)}, {v(vT0)}, {v(vU+3)}
      v_mul_f32 {v(vT0)}, {s(sC0)}, {v(vT0)}
    """)
    for i in range(4):
        A(f"v_fma_f32 {v(vS+i)}, {v(vS+i)}, {s(sC0)}, -{v(vT0)}")
    for i in range(4):
        A(f"v_exp_f32 {v(vS+i)}, {v(vS+i)}")
    A.nop(1)
    A(f"v_add_f32 {v(vU)}, {v(vS)}, {v(vS+1)}")
    A(f"v_add_f32 {v(vU+1)}, {v(vS+2)}, {v(vS+3)}")
    for i in range(4):
        A(f"v_cvt_pk_bf16_f32 {v(vS+i)}, {v(vS+i)}, {v(vS+i)}")
    A(f"v_add_f32 {v(vT1)}, {v(vU)}, {v(vU+1)}")
    for tt in range(4):
        for r in range(4):
            i = 4*tt + r
            A(f"v_and_b32_dpp {v(vK+2*i)}, {v(vS+r)}, {v(vM0)} quad_perm:[{tt},{tt},{tt},{tt}] row_mask:0xf bank_mask:0xf")
            A(f"v_and_b32_dpp {v(vK+2*i+1)}, {v(vS+r)}, {v(vM1)} quad_perm:[{tt},{tt},{tt},{tt}] row_mask:0xf bank_mask:0xf")
        if tt == 0:
            A(f"v_add_f32_dpp {v(vT1)}, {v(vT1)}, {v(vT1)} quad_perm:[1,0,3,2] row_mask:0xf bank_mask:0xf")
        if tt == 1:
            A(f"v_add_f32_dpp {v(vT1)}, {v(vT1)}, {v(vT1)} quad_perm:[2,3,0,1] row_mask:0xf bank_mask:0xf")
    xrow(vT1, vT4, "v_add_f32")
    A(f"ds_write_b32 {v(vT3)}, {v(vT1)} offset:{L_LS}")
    A(f"""
      s_lshl_b32 {s(sT0)}, {s(sWAVE)}, 4
      v_mov_b32 {v(vAsl)}, {s(sT0)}
      s_lshl_b32 {s(sT0)}, {s(sKVH)}, 2
      s_add_u32 {s(sT0)}, {s(sT0)}, {s(sWAVE)}
      s_lshl_b32 {s(sT0)}, {s(sT0)}, 9
      s_lshl_b32 {s(sT1)}, {s(sA)}, 4
      s_add_u32 {s(sT0)}, {s(sT0)}, {s(sT1)}
      s_add_u32 {s(sT0)}, {s(sT0)}, {WS_SG}
      v_mov_b32 {v(vAss)}, {s(sT0)}
    """)
    swbar(12, 4)
    A(f"""
      ds_read_b128 {v(vU,4)}, {v(vAsl)} offset:{L_LS}
      ds_read_b128 {v(vU+4,4)}, {v(vAsl)} offset:{L_MX}
      s_waitcnt lgkmcnt(0)
      v_add_f32 {v(vU)}, {v(vU)}, {v(vU+1)}
      v_add_f32 {v(vU+2)}, {v(vU+2)}, {v(vU+3)}
      v_max3_f32 {v(vU+4)}, {v(vU+4)}, {v(vU+5)}, {v(vU+6)}
      v_add_f32 {v(vU+2)}, {v(vU)}, {v(vU+2)}
      v_max_f32 {v(vU)}, {v(vU+4)}, {v(vU+7)}
      v_mul_f32 {v(vU)}, {s(sC0)}, {v(vU)}
      v_mov_b32 {v(vU+1)}, {s(sTAG)}
      v_mov_b32 {v(vU+3)}, {s(sTAG)}
      s_mov_b64 exec, 1
    """)
    store_mode(f"global_store_dwordx4 {v(vAss)}, {v(vU,4)}, {s(sWS,2)}")
    A("s_mov_b64 exec, -1")
    ts("p_done")
    vST = vQ
    def issue_st():
        A(f"global_load_dwordx4 {v(vST,4)}, {v(vAst)}, {s(sWS,2)} sc1")
        A(f"global_load_dwordx4 {v(vST+4,4)}, {v(vAst)}, {s(sWS,2)} offset:128 sc1")
    Lh = A.label("hw"); Lhd = A.label("hwd")
    A(f"s_cmp_ge_u32 s2, 224")
    A(f"s_cbranch_scc1 {Lhd}")
    lds_spin(16, sT3, f"s_cmp_eq_u32 {s(sT3)}, 0")
    A(f"{Lhd}:")
    A(f"""
      v_bfe_u32 {v(vT5)}, {v(vL)}, 3, 1
      v_lshlrev_b32 {v(vT5)}, 6, {v(vT5)}
      v_lshl_add_u32 {v(vT5)}, {v(vGq)}, 4, {v(vT5)}
      ds_read_b64 {v(vP,2)}, {v(vT5)} offset:{L_HV}
      v_mov_b32 {v(vT1)}, {s(sTAG)}
      s_waitcnt lgkmcnt(0)
    """)
    for i in range(2):
        for k in range(4):
            A(f"v_and_b32 {v(vP+4+4*i+k)}, {v(vP+i)}, {v(vMK+k)}")
    if PT == 1: pretouch()
    issue_st()
    A(f"global_load_dwordx4 {v(vWO+16,4)}, {v(vAw0)}, {s(sWDb,2)}{NT}")
    A(f"global_load_dwordx4 {v(vWO+20,4)}, {v(vAw1)}, {s(sWDb,2)}{NT}")
    A(f"global_load_dwordx4 {v(vWO,4)}, {v(vAw0)}, {s(sWb,2)}{NT}")
    A(f"global_load_dwordx4 {v(vWO+4,4)}, {v(vAw1)}, {s(sWb,2)}{NT}")
    A(f"v_add_u32 {v(vAw2)}, 0x2000, {v(vAw0)}")
    A(f"global_load_dwordx4 {v(vWO+8,4)}, {v(vAw2)}, {s(sWb,2)}{NT}")
    A(f"v_add_u32 {v(vAw2)}, 0x3000, {v(vAw0)}")
    A(f"global_load_dwordx4 {v(vWO+12,4)}, {v(vAw2)}, {s(sWb,2)}{NT}")
    ts("h_done")
    A(f"s_add_u32 {s(sT2)}, {s(sWAVE)}, 17")
    def vreads(tau):
        for r in range(4):
            A(f"ds_read_b128 {v(vV+16*tau+4*r,4)}, {v(vAv)} offset:{16384*tau + 1024*r}")
    def pv(tau, base):
        for r in range(4):
            i = 4*tau + r
            A(f"s_waitcnt lgkmcnt({base + 3 - r})")
            c0 = "0" if i == 0 else v(vOA,4)
            c1 = "0" if i == 0 else v(vOA+4,4)
            A(f"v_mfma_f32_16x16x16_bf16 {v(vOA,4)}, {v(vK+2*i,2)}, {v(vV+16*tau+4*r,2)}, {c0}")
            A(f"v_mfma_f32_16x16x16_bf16 {v(vOA+4,4)}, {v(vK+2*i,2)}, {v(vV+16*tau+4*r+2,2)}, {c1}")
    wait_prog(s(sT2))
    vreads(0)
    for tau in range(4):
        if tau < 3:
            A(f"s_add_u32 {s(sT2)}, {s(sT2)}, 4")
            Lslow = A.label("pvs"); Ljoin = A.label("pvj")
            A(f"s_cmp_ge_u32 {s(sPROG)}, {s(sT2)}")
            A(f"s_cbranch_scc0 {Lslow}")
            vreads(tau + 1)
            pv(tau, 4)
            A(f"s_branch {Ljoin}")
            A(f"{Lslow}:")
            pv(tau, 0)
            wait_prog(s(sT2))
            vreads(tau + 1)
            A(f"{Ljoin}:")
        else:
            pv(tau, 0)
    ts("pv_done")
    A.nop(8)
    A(f"""
      ds_write_b128 {v(vAo)}, {v(vOA,4)}
      ds_write_b128 {v(vAo)}, {v(vOA+4,4)} offset:16
    """)
    if TS or opt.get("swy", 0):
        swbar(20, 4)
    else:
        A("s_waitcnt lgkmcnt(0)")
        A("s_barrier")
    A(f"""
      ds_read2st64_b32 {v(vU,2)}, {v(vAr0)} offset0:0 offset1:8
      ds_read2st64_b32 {v(vU+2,2)}, {v(vAr0)} offset0:16 offset1:24
      ds_read2st64_b32 {v(vU+4,2)}, {v(vAr1)} offset0:0 offset1:8
      ds_read2st64_b32 {v(vU+6,2)}, {v(vAr1)} offset0:16 offset1:24
      s_waitcnt lgkmcnt(2)
      v_pk_add_f32 {v(vU,2)}, {v(vU,2)}, {v(vU+2,2)}
      s_waitcnt lgkmcnt(0)
      v_pk_add_f32 {v(vU+4,2)}, {v(vU+4,2)}, {v(vU+6,2)}
      v_add_f32 {v(vU)}, {v(vU)}, {v(vU+1)}
      v_add_f32 {v(vU+4)}, {v(vU+4)}, {v(vU+5)}
      v_cvt_pk_bf16_f32 {v(vT0)}, {v(vU)}, {v(vU+4)}
    """)
    store_mode(f"global_store_dwordx2 {v(vAog)}, {v(vT0,2)}, {s(sWS,2)}")
    ts("o_published")
    vOO = vV + 8
    def issue_o():
        A(f"global_load_dwordx4 {v(vOO,4)}, {v(vApo)}, {s(sWS,2)} sc1")
        A(f"global_load_dwordx4 {v(vOO+4,4)}, {v(vApo)}, {s(sWS,2)} offset:512 sc1")
    issue_o()
    poll_simple(issue_st, [vST+1, vST+3, vST+5, vST+7], "st", 9)
    ts("st_done")
    def red8(regs, op):
        n = len(regs)
        for ctrl in ("quad_perm:[1,0,3,2]", "quad_perm:[2,3,0,1]", "row_half_mirror"):
            if n < 3: A.nop(3 - n)
            for r in regs:
                A(f"{op}_dpp {v(r)}, {v(r)}, {v(r)} {ctrl} row_mask:0xf bank_mask:0xf")
    A(f"v_max_f32 {v(vT2)}, {v(vST)}, {v(vST+4)}")
    red8([vT2], "v_max_f32")
    A(f"""
      v_sub_f32 {v(vT3)}, {v(vST)}, {v(vT2)}
      v_sub_f32 {v(vT4)}, {v(vST+4)}, {v(vT2)}
      v_exp_f32 {v(vT3)}, {v(vT3)}
      v_exp_f32 {v(vT4)}, {v(vT4)}
      s_nop 0
      v_mul_f32 {v(vT2)}, {v(vT3)}, {v(vST+2)}
      v_fma_f32 {v(vT2)}, {v(vT4)}, {v(vST+6)}, {v(vT2)}
    """)
    red8([vT2], "v_add_f32")
    A(f"""
      v_rcp_f32 {v(vT2)}, {v(vT2)}
      s_nop 0
      v_mul_f32 {v(vT3)}, {v(vT3)}, {v(vT2)}
      v_mul_f32 {v(vT4)}, {v(vT4)}, {v(vT2)}
    """)
    LskipB = A.label("skipB")
    A(f"s_cmp_ge_u32 s2, 224")
    A(f"s_cbranch_scc1 {LskipB}")
    A("s_waitcnt vmcnt(7)")
    for i in range(2):
        A(f"v_mfma_f32_16x16x32_bf16 {v(vD3,4)}, {v(vP+4+4*i,4)}, {v(vWO+16+4*i,4)}, {v(vD3,4)}")
    A(f"{LskipB}:")
    poll_pipe(issue_o, 2, [vOO+1, vOO+3, vOO+5, vOO+7], "h1", D1, 1, True)
    ts("h1_done")
    A(f"""
      v_lshlrev_b32 {v(vU)}, 16, {v(vOO)}
      v_and_b32 {v(vU+1)}, 0xffff0000, {v(vOO)}
      v_lshlrev_b32 {v(vU+2)}, 16, {v(vOO+2)}
      v_and_b32 {v(vU+3)}, 0xffff0000, {v(vOO+2)}
      v_lshlrev_b32 {v(vU+4)}, 16, {v(vOO+4)}
      v_and_b32 {v(vU+5)}, 0xffff0000, {v(vOO+4)}
      v_lshlrev_b32 {v(vU+6)}, 16, {v(vOO+6)}
      v_and_b32 {v(vU+7)}, 0xffff0000, {v(vOO+6)}
      v_pk_mul_f32 {v(vU,2)}, {v(vU,2)}, {v(vT3,2)} op_sel:[0,0] op_sel_hi:[1,0]
      v_pk_mul_f32 {v(vU+2,2)}, {v(vU+2,2)}, {v(vT3,2)} op_sel:[0,0] op_sel_hi:[1,0]
    """.replace(v(vT3,2), "XX")) if False else None
    A(f"""
      v_lshlrev_b32 {v(vU)}, 16, {v(vOO)}
      v_and_b32 {v(vU+1)}, 0xffff0000, {v(vOO)}
      v_lshlrev_b32 {v(vU+2)}, 16, {v(vOO+2)}
      v_and_b32 {v(vU+3)}, 0xffff0000, {v(vOO+2)}
      v_lshlrev_b32 {v(vU+4)}, 16, {v(vOO+4)}
      v_and_b32 {v(vU+5)}, 0xffff0000, {v(vOO+4)}
      v_lshlrev_b32 {v(vU+6)}, 16, {v(vOO+6)}
      v_and_b32 {v(vU+7)}, 0xffff0000, {v(vOO+6)}
    """)
    for i in range(4):
        A(f"v_mul_f32 {v(vU+i)}, {v(vU+i)}, {v(vT3)}")
    for i in range(4):
        A(f"v_fma_f32 {v(vU+i)}, {v(vU+4+i)}, {v(vT4)}, {v(vU+i)}")
    red8([vU, vU+1, vU+2, vU+3], "v_add_f32")
    for i in range(4):
        A(f"v_cvt_pk_bf16_f32 {v(vU+i)}, {v(vU+i)}, {v(vU+i)}")
    for i in range(4):
        for k in range(4):
            A(f"v_and_b32 {v(vQ+4*i+k)}, {v(vU+i)}, {v(vMK+k)}")
    A(f"v_mov_b32 {v(vU+5)}, {s(sTAG)}")
    A(f"v_mov_b32 {v(vU+7)}, {s(sTAG)}")
    for i in range(4):
        A(f"v_mfma_f32_16x16x32_bf16 {v(vD3,4)}, {v(vQ+4*i,4)}, {v(vWO+4*i,4)}, {v(vD3,4)}")
    A.nop(8)
    A(f"""
      v_cvt_pk_bf16_f32 {v(vU+4)}, {v(vD3)}, {v(vD3+1)}
      v_cvt_pk_bf16_f32 {v(vU+6)}, {v(vD3+2)}, {v(vD3+3)}
    """)
    store_mode(f"global_store_dwordx4 {v(vApg)}, {v(vU+4,4)}, {s(sWS,2)}")
    ts("p_published")
    def issue_r():
        A(f"global_load_dwordx4 {v(vK,4)}, {v(vAr)}, {s(sWS,2)} sc1")
    issue_r()
    A(f"v_mov_b32 {v(vT3)}, {s(sTAG)}")
    poll_pipe(issue_r, 1, [vK+1, vK+3], "h2", opt.get("dr", 1), 1, True)
    ts("h2_done")
    A(f"""
      v_lshlrev_b32 {v(vS)}, 16, {v(vK)}
      v_and_b32 {v(vS+1)}, 0xffff0000, {v(vK)}
      v_lshlrev_b32 {v(vS+2)}, 16, {v(vK+2)}
      v_and_b32 {v(vS+3)}, 0xffff0000, {v(vK+2)}
      s_nop 1
      v_permlane32_swap_b32 {v(vS)}, {v(vS+2)}
      v_permlane32_swap_b32 {v(vS+1)}, {v(vS+3)}
      v_add_f32 {v(vS)}, {v(vS)}, {v(vS+2)}
      v_add_f32 {v(vS+1)}, {v(vS+1)}, {v(vS+3)}
      s_nop 1
      v_permlane16_swap_b32 {v(vS)}, {v(vS+1)}
      v_add_f32 {v(vS)}, {v(vS)}, {v(vS+1)}
      s_nop 1
      v_add_f32_dpp {v(vS)}, {v(vS)}, {v(vS)} row_ror:8 row_mask:0xf bank_mask:0xf
      s_nop 1
      v_add_f32_dpp {v(vS)}, {v(vS)}, {v(vS)} row_ror:4 row_mask:0xf bank_mask:0xf
      s_nop 1
      v_add_f32_dpp {v(vT2)}, {v(vS)}, {v(vS)} quad_perm:[2,3,0,1] row_mask:0xf bank_mask:0xf
      s_mov_b64 exec, 0x0003000300030003
      global_store_dwordx2 {v(vAf)}, {v(vT2,2)}, {s(sWS,2)} sc1
      s_mov_b64 exec, -1
    """.replace("s_mov_b64 exec, 0x0003000300030003", f"s_mov_b32 exec_lo, 0x00030003\n      s_mov_b32 exec_hi, 0x00030003".replace("\\n", "\n")))
    ts("f_published")
    A(f"""
      s_and_b32 {s(sT0)}, {s(sA)}, 7
      s_cmp_lg_u32 {s(sT0)}, {s(sKVH)}
      s_cbranch_scc1 Lend
      s_cmp_lg_u32 {s(sWAVE)}, 0
      s_cbranch_scc1 Lend
      s_lshl_b32 {s(sT0)}, {s(sA)}, 11
      s_add_u32 {s(sT0)}, {s(sT0)}, {WS_FG}
      v_lshrrev_b32 {v(vT5)}, 3, {v(vL)}
      v_lshlrev_b32 {v(vT5)}, 8, {v(vT5)}
      v_and_b32 {v(vT0)}, 7, {v(vL)}
      v_lshl_add_u32 {v(vT5)}, {v(vT0)}, 4, {v(vT5)}
      v_add_u32 {v(vT5)}, {s(sT0)}, {v(vT5)}
      s_lshl_b32 {s(sT0)}, {s(sA)}, 6
      v_lshlrev_b32 {v(vT4)}, 2, {v(vT0)}
      v_add_u32 {v(vT4)}, {s(sT0)}, {v(vT4)}
      global_load_dword {v(vXR)}, {v(vT4)}, {s(sX,2)}
      global_load_dword {v(vXR+1)}, {v(vT4)}, {s(sX,2)} offset:32
    """)
    def issue_f():
        A(f"global_load_dwordx4 {v(vK+4,4)}, {v(vT5)}, {s(sWS,2)} sc1")
        A(f"global_load_dwordx4 {v(vK+8,4)}, {v(vT5)}, {s(sWS,2)} offset:128 sc1")
    poll_pipe(issue_f, 2, [vK+5, vK+7, vK+9, vK+11], "h3", opt.get("df", 1), 0, True)
    ts("h3_done")
    A(f"""
      v_add_f32_dpp {v(vS)}, {v(vK+4)}, {v(vK+4)} row_ror:8 row_mask:0xf bank_mask:0xf
      v_add_f32_dpp {v(vS+1)}, {v(vK+6)}, {v(vK+6)} row_ror:8 row_mask:0xf bank_mask:0xf
      v_add_f32_dpp {v(vS+2)}, {v(vK+8)}, {v(vK+8)} row_ror:8 row_mask:0xf bank_mask:0xf
      v_add_f32_dpp {v(vS+3)}, {v(vK+10)}, {v(vK+10)} row_ror:8 row_mask:0xf bank_mask:0xf
      v_mov_b32 {v(vS+4)}, {v(vS)}
      v_mov_b32 {v(vS+5)}, {v(vS+1)}
      v_mov_b32 {v(vS+6)}, {v(vS+2)}
      v_mov_b32 {v(vS+7)}, {v(vS+3)}
      s_nop 1
    """)
    for sw in ("v_permlane16_swap_b32", "v_permlane32_swap_b32"):
        for i in range(4):
            A(f"{sw} {v(vS+i)}, {v(vS+4+i)}")
        for i in range(4):
            A(f"v_add_f32 {v(vS+i)}, {v(vS+i)}, {v(vS+4+i)}")
        if sw.startswith("v_permlane16"):
            for i in range(4):
                A(f"v_mov_b32 {v(vS+4+i)}, {v(vS+i)}")
            A.nop(1)
    A(f"""
      v_lshlrev_b32 {v(vS+8)}, 16, {v(vXR)}
      v_and_b32 {v(vS+9)}, 0xffff0000, {v(vXR)}
      v_lshlrev_b32 {v(vS+10)}, 16, {v(vXR+1)}
      v_and_b32 {v(vS+11)}, 0xffff0000, {v(vXR+1)}
      v_pk_add_f32 {v(vS,2)}, {v(vS,2)}, {v(vS+8,2)}
      v_pk_add_f32 {v(vS+2,2)}, {v(vS+2,2)}, {v(vS+10,2)}
      v_cvt_pk_bf16_f32 {v(vS)}, {v(vS)}, {v(vS+1)}
      v_cvt_pk_bf16_f32 {v(vS+2)}, {v(vS+2)}, {v(vS+3)}
      s_mov_b64 exec, 0xff
      global_store_dword {v(vT4)}, {v(vS)}, {s(sOUT,2)}
      global_store_dword {v(vT4)}, {v(vS+2)}, {s(sOUT,2)} offset:32
      s_cmp_lg_u32 {s(sA)}, 0
      s_cbranch_scc1 Lend
      v_mov_b32 {v(vT4)}, 0
      v_mov_b32 {v(vT5)}, {s(sTAG)}
      s_mov_b64 exec, 1
      global_store_dword {v(vT4)}, {v(vT5)}, {s(sWS,2)} sc1
      s_branch Lend
    """)
    A("Laux:")
    role[0] = "X"
    A("s_setprio 3")
    vWIN = vV
    vXS = vQ
    vDL, vDH = vOA, vOA + 4
    A(f"""
      s_sub_u32 {s(sROLE)}, {s(sWAVE)}, 4
      s_cmp_eq_u32 {s(sROLE)}, 0
      s_cselect_b32 {s(sT0)}, 0, s2
      s_cmp_ge_u32 {s(sT0)}, 224
      s_cbranch_scc1 Lend
      v_lshlrev_b32 {v(vT1)}, 4, {v(vL)}
      v_lshrrev_b32 {v(vT2)}, 3, {v(vL)}
      v_and_b32 {v(vT3)}, 7, {v(vL)}
      s_and_b32 {s(sKS)}, {s(sA)}, 3
      s_lshr_b32 {s(sT0)}, {s(sA)}, 2
      s_lshl_b32 {s(sT1)}, {s(sKVH)}, 3
      s_add_u32 {s(sT0)}, {s(sT0)}, {s(sT1)}
      s_lshl_b32 {s(sT0)}, {s(sT0)}, 7
      s_lshl_b32 {s(sT1)}, {s(sKS)}, 20
      s_add_u32 {s(sT2)}, {s(sT0)}, {s(sT1)}
      s_movk_i32 {s(sSTR)}, 0x2000
      s_cmp_eq_u32 {s(sROLE)}, 0
      s_cbranch_scc1 Laux_w
      s_and_b32 {s(sKS)}, s2, 3
      s_lshr_b32 {s(sT0)}, s2, 2
      s_cmp_ge_u32 {s(sT0)}, 28
      s_cselect_b32 {s(sT3)}, 1, 0
      s_cselect_b32 {s(sT1)}, 28, 0
      s_sub_u32 {s(sT0)}, {s(sT0)}, {s(sT1)}
      s_lshl_b32 {s(sT2)}, {s(sT0)}, 7
      s_mul_i32 {s(sT1)}, {s(sKS)}, {128*3584}
      s_add_u32 {s(sT2)}, {s(sT2)}, {s(sT1)}
      s_movk_i32 {s(sSTR)}, 3584
      s_mov_b32 {s(sTILE)}, {s(sT0)}
      s_mov_b32 {s(sTILE+1)}, {s(sT3)}
      s_waitcnt lgkmcnt(0)
      s_cmp_eq_u32 {s(sT3)}, 0
      s_cselect_b32 {s(sWQ)}, {s(sG)}, {s(sU)}
      s_cselect_b32 {s(sWQ+1)}, {s(sG+1)}, {s(sU+1)}
    """)
    A("Laux_w:")
    A(f"""
      v_mul_lo_u32 {v(vT2)}, {v(vT2)}, {s(sSTR)}
      v_lshl_add_u32 {v(vT2)}, {v(vT3)}, 4, {v(vT2)}
      s_lshl_b32 {s(sT0)}, {s(sKS)}, 8
      v_lshlrev_b32 {v(vT0)}, 2, {v(vL)}
      v_add_u32 {v(vT0)}, {s(sT0)}, {v(vT0)}
      s_lshl_b32 {s(sT0)}, {s(sSTR)}, 3
      s_waitcnt lgkmcnt(0)
      s_add_u32 {s(sWb)}, {s(sWQ)}, {s(sT2)}
      s_addc_u32 {s(sWb+1)}, {s(sWQ+1)}, 0
      global_load_dwordx4 {v(vU,4)}, {v(vT1)}, {s(sX,2)}
      global_load_dwordx4 {v(vU+4,4)}, {v(vT1)}, {s(sX,2)} offset:1024
      global_load_dword {v(vEP)}, {v(vT7)}, {s(sWS,2)} sc1
      global_load_dword {v(vXS)}, {v(vT0)}, {s(sX,2)}
      global_load_dword {v(vXS+1)}, {v(vT0)}, {s(sX,2)} offset:1024
    """)
    for i in range(16):
        A(f"global_load_dwordx4 {v(vK+4*i,4)}, {v(vT2)}, {s(sWb,2)}{NT}")
        if i < 15:
            A(f"v_add_u32 {v(vT2)}, {s(sT0)}, {v(vT2)}")
    ts("issK")
    A("s_barrier")
    for i in range(17):
        A(f"v_mov_b32 {v(vWIN+4*i)}, 0")
        A(f"v_mov_b32 {v(vWIN+4*i+1)}, 0")
    A(f"""
      s_mov_b32 {s(sT0)}, 0xffff
      s_mov_b32 {s(sT1)}, 0xffff0000
      v_and_b32 {v(vT4)}, 1, {v(vL)}
      v_cmp_eq_u32 vcc, 1, {v(vT4)}
      v_mov_b32 {v(vT5)}, {s(sT0)}
      v_mov_b32 {v(vT6)}, {s(sT1)}
      v_cndmask_b32 {v(vT5)}, {v(vT5)}, {v(vT6)}, vcc
      v_and_b32 {v(vT4)}, 2, {v(vL)}
      v_cmp_eq_u32 vcc, 0, {v(vT4)}
      s_nop 1
      v_cndmask_b32 {v(vM0)}, 0, {v(vT5)}, vcc
      v_cmp_ne_u32 vcc, 0, {v(vT4)}
      s_nop 1
      v_cndmask_b32 {v(vM1)}, 0, {v(vT5)}, vcc
    """)
    A(f"""
      s_lshl_b32 {s(sT0)}, {s(sROLE)}, 10
      v_and_b32 {v(vAX)}, 3, {v(vL)}
      v_lshlrev_b32 {v(vAX)}, 7, {v(vAX)}
      v_lshrrev_b32 {v(vT4)}, 2, {v(vL)}
      v_lshl_add_u32 {v(vAX)}, {v(vT4)}, 2, {v(vAX)}
      v_add_u32 {v(vAX)}, {s(sT0)}, {v(vAX)}
      v_bfe_u32 {v(vAX+1)}, {v(vL)}, 2, 1
      v_lshlrev_b32 {v(vAX+1)}, 9, {v(vAX+1)}
      v_lshl_add_u32 {v(vAX+1)}, {v(vGq)}, 7, {v(vAX+1)}
      v_bfe_u32 {v(vT4)}, {v(vL)}, 3, 1
      v_lshl_add_u32 {v(vAX+1)}, {v(vT4)}, 6, {v(vAX+1)}
      v_add_u32 {v(vAX+1)}, {s(sT0)}, {v(vAX+1)}
      v_lshlrev_b32 {v(vAX+2)}, 8, {v(vGq)}
      v_and_b32 {v(vT4)}, 7, {v(vL)}
      v_lshl_add_u32 {v(vAX+2)}, {v(vT4)}, 5, {v(vAX+2)}
      v_add_u32 {v(vAX+2)}, {s(sT0)}, {v(vAX+2)}
    """)
    A(f"""
      s_cmp_eq_u32 {s(sROLE)}, 0
      s_cbranch_scc0 Laux_g1
      v_and_b32 {v(vT5)}, 31, {v(vL)}
      v_lshrrev_b32 {v(vT6)}, 5, {v(vL)}
      v_lshlrev_b32 {v(vAX+3)}, 3, {v(vT5)}
      v_lshl_add_u32 {v(vAX+3)}, {v(vT6)}, 8, {v(vAX+3)}
      s_lshl_b32 {s(sT1)}, {s(sKVH)}, 15
      s_lshl_b32 {s(sT2)}, {s(sKS)}, 12
      s_add_u32 {s(sT1)}, {s(sT1)}, {s(sT2)}
      s_lshr_b32 {s(sT2)}, {s(sA)}, 2
      s_lshl_b32 {s(sT2)}, {s(sT2)}, 9
      s_add_u32 {s(sT1)}, {s(sT1)}, {s(sT2)}
      s_add_u32 {s(sT1)}, {s(sT1)}, {WS_QG}
      v_lshlrev_b32 {v(vT6)}, 14, {v(vT6)}
      v_lshl_add_u32 {v(vT5)}, {v(vT5)}, 4, {v(vT6)}
      v_add_u32 {v(vAX+4)}, {s(sT1)}, {v(vT5)}
      s_branch Laux_g2
    """)
    A("Laux_g1:")
    A(f"""
      v_lshrrev_b32 {v(vT5)}, 3, {v(vL)}
      v_and_b32 {v(vT6)}, 3, {v(vL)}
      v_lshl_add_u32 {v(vAX+3)}, {v(vT5)}, 2, {v(vT6)}
      v_lshlrev_b32 {v(vAX+3)}, 3, {v(vAX+3)}
      v_bfe_u32 {v(vT6)}, {v(vL)}, 2, 1
      v_lshl_add_u32 {v(vAX+3)}, {v(vT6)}, 8, {v(vAX+3)}
      v_add_u32 {v(vAX+3)}, 1024, {v(vAX+3)}
      s_lshl_b32 {s(sT1)}, {s(sTILE)}, 13
      s_lshl_b32 {s(sT2)}, {s(sTILE+1)}, 2
      s_add_u32 {s(sT2)}, {s(sT2)}, {s(sKS)}
      s_lshl_b32 {s(sT2)}, {s(sT2)}, 7
      s_add_u32 {s(sT1)}, {s(sT1)}, {s(sT2)}
      s_add_u32 {s(sT1)}, {s(sT1)}, {WS_GG}
      v_lshlrev_b32 {v(vT5)}, 10, {v(vT5)}
      v_and_b32 {v(vT6)}, 7, {v(vL)}
      v_lshl_add_u32 {v(vT5)}, {v(vT6)}, 4, {v(vT5)}
      v_add_u32 {v(vAX+4)}, {s(sT1)}, {v(vT5)}
    """)
    A("Laux_g2:")
    A("s_waitcnt vmcnt(16)")
    ts("issV")
    A(f"v_readfirstlane_b32 {s(sTAG)}, {v(vEP)}")
    for k in range(4):
        A(f"v_lshlrev_b32 {v(vP+4*k)}, 16, {v(vU+k)}")
        A(f"v_lshlrev_b32 {v(vP+4*k+1)}, 16, {v(vU+4+k)}")
        A(f"v_and_b32 {v(vP+4*k+2)}, 0xffff0000, {v(vU+k)}")
        A(f"v_and_b32 {v(vP+4*k+3)}, 0xffff0000, {v(vU+4+k)}")
    A(f"s_add_u32 {s(sTAG)}, {s(sTAG)}, 0x{TAG_DELTA:x}")
    def allreduce2(r0, r1, t0, t1, op="v_add_f32"):
        for sh in (8, 4, 2, 1):
            A.nop(1)
            A(f"{op}_dpp {v(r0)}, {v(r0)}, {v(r0)} row_ror:{sh} row_mask:0xf bank_mask:0xf")
            A(f"{op}_dpp {v(r1)}, {v(r1)}, {v(r1)} row_ror:{sh} row_mask:0xf bank_mask:0xf")
        for sw in ("v_permlane16_swap_b32", "v_permlane32_swap_b32"):
            A(f"v_mov_b32 {v(t0)}, {v(r0)}")
            A(f"v_mov_b32 {v(t1)}, {v(r1)}")
            A.nop(1)
            A(f"{sw} {v(r0)}, {v(t0)}")
            A(f"{sw} {v(r1)}, {v(t1)}")
            A(f"{op} {v(r0)}, {v(r0)}, {v(t0)}")
            A(f"{op} {v(r1)}, {v(r1)}, {v(t1)}")
    A(f"v_pk_add_f32 {v(vT0,2)}, {v(vP,2)}, {v(vP+2,2)}")
    A(f"v_pk_add_f32 {v(vT2,2)}, {v(vP+4,2)}, {v(vP+6,2)}")
    A(f"v_pk_add_f32 {v(vT4,2)}, {v(vP+8,2)}, {v(vP+10,2)}")
    A(f"v_pk_add_f32 {v(vU,2)}, {v(vP+12,2)}, {v(vP+14,2)}")
    A(f"v_pk_add_f32 {v(vT0,2)}, {v(vT0,2)}, {v(vT2,2)}")
    A(f"v_pk_add_f32 {v(vT4,2)}, {v(vT4,2)}, {v(vU,2)}")
    A(f"v_pk_add_f32 {v(vT0,2)}, {v(vT0,2)}, {v(vT4,2)}")
    A.nop(1)
    allreduce2(vT0, vT0+1, vT2, vT3)
    A(f"v_mul_f32 {v(vT0)}, 0x3b000000, {v(vT0)}")
    A(f"v_mul_f32 {v(vT0+1)}, 0x3b000000, {v(vT0+1)}")
    for i in range(8):
        A(f"v_pk_add_f32 {v(vP+2*i,2)}, {v(vP+2*i,2)}, {v(vT0,2)} neg_lo:[0,1] neg_hi:[0,1]")
    A(f"v_pk_mul_f32 {v(vT2,2)}, {v(vP,2)}, {v(vP,2)}")
    A(f"v_pk_mul_f32 {v(vT4,2)}, {v(vP+2,2)}, {v(vP+2,2)}")
    for i in range(2, 8):
        acc = vT2 if i % 2 == 0 else vT4
        A(f"v_pk_fma_f32 {v(acc,2)}, {v(vP+2*i,2)}, {v(vP+2*i,2)}, {v(acc,2)}")
    A(f"v_pk_add_f32 {v(vT2,2)}, {v(vT2,2)}, {v(vT4,2)}")
    A(f"v_lshlrev_b32 {v(vP)}, 16, {v(vXS)}")
    A(f"v_lshlrev_b32 {v(vP+1)}, 16, {v(vXS+1)}")
    A(f"v_and_b32 {v(vP+2)}, 0xffff0000, {v(vXS)}")
    A(f"v_and_b32 {v(vP+3)}, 0xffff0000, {v(vXS+1)}")
    allreduce2(vT2, vT3, vT4, vT5)
    A(f"v_mul_f32 {v(vT2)}, 0x3b000000, {v(vT2)}")
    A(f"v_mul_f32 {v(vT3)}, 0x3b000000, {v(vT3)}")
    rnd_pair(vT0, vT6)
    rnd_pair(vT2, vT6)
    A(f"v_add_f32 {v(vT2)}, 0x3727c5ac, {v(vT2)}")
    A(f"v_add_f32 {v(vT3)}, 0x3727c5ac, {v(vT3)}")
    A(f"v_pk_add_f32 {v(vP,2)}, {v(vP,2)}, {v(vT0,2)} neg_lo:[0,1] neg_hi:[0,1]")
    A(f"v_pk_add_f32 {v(vP+2,2)}, {v(vP+2,2)}, {v(vT0,2)} neg_lo:[0,1] neg_hi:[0,1]")
    rnd_pair(vT2, vT6)
    A(f"v_sqrt_f32 {v(vT2)}, {v(vT2)}")
    A(f"v_sqrt_f32 {v(vT3)}, {v(vT3)}")
    rnd_pair(vP, vT6)
    rnd_pair(vP+2, vT6)
    rnd_pair(vT2, vT6)
    A(f"v_rcp_f32 {v(vT2)}, {v(vT2)}")
    A(f"v_rcp_f32 {v(vT3)}, {v(vT3)}")
    A.nop(1)
    A(f"v_pk_mul_f32 {v(vP,2)}, {v(vP,2)}, {v(vT2,2)}")
    A(f"v_pk_mul_f32 {v(vP+2,2)}, {v(vP+2,2)}, {v(vT2,2)}")
    for k in range(4):
        A(f"v_cvt_pk_bf16_f32 {v(vP+k)}, {v(vP+k)}, {v(vP+k)}")
    A(f"""
      ds_write_b32 {v(vAX)}, {v(vP)} offset:{L_XB}
      ds_write_b32 {v(vAX)}, {v(vP+1)} offset:{L_XB+512}
      ds_write_b32 {v(vAX)}, {v(vP+2)} offset:{L_XB+64}
      ds_write_b32 {v(vAX)}, {v(vP+3)} offset:{L_XB+512+64}
    """)
    for k in range(4):
        A(f"ds_read_b128 {v(vS+4*k,4)}, {v(vAX+1)} offset:{L_XB + 16*k}")
    ts("issW")
    for k in range(4):
        A(f"s_waitcnt lgkmcnt({3-k})")
        for j in range(4):
            i = 4*k + j
            A(f"v_and_b32 {v(vWIN+4*i+2)}, {v(vS+i)}, {v(vM0)}")
            A(f"v_and_b32 {v(vWIN+4*i+3)}, {v(vS+i)}, {v(vM1)}")
    A(f"v_mov_b32 {v(vU+1)}, {s(sTAG)}")
    A(f"v_mov_b32 {v(vU+3)}, {s(sTAG)}")
    for i in range(16):
        A(f"s_waitcnt vmcnt({15 - i})")
        c0 = "0" if i == 0 else v(vDL,4)
        c1 = "0" if i == 0 else v(vDH,4)
        A(f"v_mfma_f32_16x16x32_bf16 {v(vDL,4)}, {v(vWIN+4*i+2,4)}, {v(vK+4*i,4)}, {c0}")
        A(f"v_mfma_f32_16x16x32_bf16 {v(vDH,4)}, {v(vWIN+4*i,4)}, {v(vK+4*i,4)}, {c1}")
    ts("Kdone")
    A(f"""
      s_mov_b32 exec_lo, 0x00ff00ff
      s_mov_b32 exec_hi, 0xff00ff00
    """)
    A.nop(6)
    A(f"""
      ds_write_b128 {v(vAX+2)}, {v(vDL,4)} offset:{L_TR}
      ds_write_b128 {v(vAX+2)}, {v(vDH,4)} offset:{L_TR+16}
      s_mov_b64 exec, -1
      ds_read_b64 {v(vT0,2)}, {v(vAX+3)} offset:{L_TR}
      ds_read_b64 {v(vT2,2)}, {v(vAX+3)} offset:{L_TR+512}
      s_waitcnt lgkmcnt(0)
      v_add_f32 {v(vU)}, {v(vT0)}, {v(vT2)}
      v_add_f32 {v(vU+2)}, {v(vT0+1)}, {v(vT3)}
      global_store_dwordx4 {v(vAX+4)}, {v(vU,4)}, {s(sWS,2)} sc1
      s_cmp_lg_u32 {s(sROLE)}, 0
      s_cbranch_scc1 Laux_h
      s_lshl_b32 {s(sT0)}, {s(sKVH)}, 8
      s_lshl_b32 {s(sT1)}, {s(sA)}, 3
      s_add_u32 {s(sT0)}, {s(sT0)}, {s(sT1)}
      s_add_u32 {s(sT0)}, {s(sT0)}, {WS_XG}
      v_mov_b32 {v(vT0)}, {s(sT0)}
      v_mov_b32 {v(vT2)}, {s(sXCC)}
      v_mov_b32 {v(vT3)}, {s(sTAG)}
      s_mov_b64 exec, 1
      global_store_dwordx2 {v(vT0)}, {v(vT2,2)}, {s(sWS,2)} sc1
    """)
    ts("p_done")
    A("s_branch Lend")
    A("Laux_h:")
    ts("p_done")
    vGP = vU
    A(f"""
      s_lshl_b32 {s(sT0)}, s2, 10
      s_add_u32 {s(sT0)}, {s(sT0)}, {WS_GG}
      v_lshlrev_b32 {v(vT4)}, 4, {v(vL)}
      v_add_u32 {v(vAX+5)}, {s(sT0)}, {v(vT4)}
      v_mov_b32 {v(vCT)}, 0
      v_mov_b32 {v(vONE)}, 1
    """)
    def issue_g():
        A(f"global_load_dwordx4 {v(vGP,4)}, {v(vAX+5)}, {s(sWS,2)} sc1")
    wait_prog(QT)
    issue_g()
    poll_simple(issue_g, [vGP+1, vGP+3], "g", 0)
    for r in (vGP, vGP+2):
        A.nop(2)
        A(f"v_add_f32_dpp {v(r)}, {v(r)}, {v(r)} row_ror:8 row_mask:0xf bank_mask:0xf")
        A(f"v_mov_b32 {v(vT0)}, {v(r)}")
        A.nop(2)
        A(f"v_permlane16_swap_b32 {v(r)}, {v(vT0)}")
        A(f"v_add_f32 {v(r)}, {v(r)}, {v(vT0)}")
    for r, tt in ((vGP, vGP+1), (vGP+2, vGP+3)):
        A(f"v_mov_b32 {v(tt)}, {v(r)}")
        A.nop(2)
        A(f"v_permlane32_swap_b32 {v(r)}, {v(tt)}")
    A(f"""
      v_cvt_pk_bf16_f32 {v(vT6)}, {v(vGP)}, {v(vGP+2)}
      v_cvt_pk_bf16_f32 {v(vT7)}, {v(vGP+1)}, {v(vGP+3)}
      v_lshlrev_b32 {v(vS+8)}, 16, {v(vT6)}
      v_and_b32 {v(vS+9)}, 0xffff0000, {v(vT6)}
      v_lshlrev_b32 {v(vS+10)}, 16, {v(vT7)}
      v_and_b32 {v(vS+11)}, 0xffff0000, {v(vT7)}
      s_mov_b32 {s(sC0)}, 0xbfb8aa3b
      v_mul_f32 {v(vS+8)}, {s(sC0)}, {v(vS+8)}
      v_mul_f32 {v(vS+9)}, {s(sC0)}, {v(vS+9)}
      v_exp_f32 {v(vS+8)}, {v(vS+8)}
      v_exp_f32 {v(vS+9)}, {v(vS+9)}
      s_nop 0
      v_add_f32 {v(vS+8)}, 1.0, {v(vS+8)}
      v_add_f32 {v(vS+9)}, 1.0, {v(vS+9)}
      v_rcp_f32 {v(vS+8)}, {v(vS+8)}
      v_rcp_f32 {v(vS+9)}, {v(vS+9)}
      s_nop 0
      v_cvt_pk_bf16_f32 {v(vT6)}, {v(vS+8)}, {v(vS+9)}
      v_lshlrev_b32 {v(vS+8)}, 16, {v(vT6)}
      v_and_b32 {v(vS+9)}, 0xffff0000, {v(vT6)}
      v_pk_mul_f32 {v(vS+8,2)}, {v(vS+8,2)}, {v(vS+10,2)}
      v_cvt_pk_bf16_f32 {v(vS+12)}, {v(vS+8)}, {v(vS+8)}
      v_cvt_pk_bf16_f32 {v(vS+13)}, {v(vS+9)}, {v(vS+9)}
      v_bfe_u32 {v(vT4)}, {v(vL)}, 2, 1
      v_lshlrev_b32 {v(vT4)}, 6, {v(vT4)}
      v_and_b32 {v(vT5)}, 1, {v(vL)}
      v_lshl_add_u32 {v(vT4)}, {v(vT5)}, 5, {v(vT4)}
      v_bfe_u32 {v(vT5)}, {v(vL)}, 1, 1
      v_lshl_add_u32 {v(vT4)}, {v(vT5)}, 2, {v(vT4)}
      ds_write_b32 {v(vT4)}, {v(vS+12)} offset:{L_HV}
      ds_write_b32 {v(vT4)}, {v(vS+13)} offset:{L_HV+16}
      ds_write_b32 {v(vCT)}, {v(vONE)} offset:{L_CT + 16}
    """)
    ts("h_done")
    A("s_branch Lend")
    A("Lload:")
    role[0] = "X"
    A("s_setprio 3")
    A(f"""
      s_lshl_b32 {s(sT0)}, {s(sB)}, 3
      s_add_u32 {s(sT0)}, {s(sT0)}, {s(sKVH)}
      s_lshl_b32 {s(sT0)}, {s(sT0)}, 23
      s_and_b32 {s(sT1)}, {s(sA)}, 15
      s_lshl_b32 {s(sT1)}, {s(sT1)}, 16
      s_add_u32 {s(sT0)}, {s(sT0)}, {s(sT1)}
      s_add_u32 {s(sT2)}, {s(sT0)}, 0x700000
      v_lshlrev_b32 {v(vT4)}, 2, {v(vGq)}
      v_xor_b32 {v(vT4)}, {v(vT4)}, {v(vN)}
      v_lshlrev_b32 {v(vT5)}, 8, {v(vGq)}
      v_lshlrev_b32 {v(vQ+4)}, 4, {v(vL)}
      v_lshlrev_b32 {v(vT0)}, 2, {v(vL)}
      v_mov_b32 {v(vT1)}, 0
      ds_write_b32 {v(vT0)}, {v(vT1)} offset:{L_ZB}
      s_mov_b64 exec, 0xff
      ds_write_b32 {v(vT0)}, {v(vT1)} offset:{L_CT}
      s_mov_b64 exec, -1
    """)
    for i in range(4):
        A(f"v_xor_b32 {v(vT6)}, {i}, {v(vT4)}")
        A(f"v_lshl_add_u32 {v(vQ+i)}, {v(vT6)}, 4, {v(vT5)}")
    A(f"""
      s_mov_b32 {s(sSRK+2)}, 0x10000
      s_mov_b32 {s(sSRK+3)}, 0x20000
      s_mov_b32 {s(sSRV+2)}, 0x10000
      s_mov_b32 {s(sSRV+3)}, 0x20000
      s_waitcnt lgkmcnt(0)
      s_add_u32 {s(sSRK)}, {s(sK)}, {s(sT2)}
      s_addc_u32 {s(sSRK+1)}, {s(sK+1)}, 0
      s_and_b32 {s(sSRK+1)}, {s(sSRK+1)}, 0xffff
      s_add_u32 {s(sSRV)}, {s(sV)}, {s(sT2)}
      s_addc_u32 {s(sSRV+1)}, {s(sV+1)}, 0
      s_and_b32 {s(sSRV+1)}, {s(sSRV+1)}, 0xffff
      s_mul_i32 {s(sKS)}, {s(sKVH)}, {opt.get("rk", 0)}
      s_mul_i32 {s(sT3)}, {s(sA)}, {opt.get("ra", 1)}
      s_add_u32 {s(sKS)}, {s(sKS)}, {s(sT3)}
      s_mov_b32 {s(sT3)}, 0
      s_mov_b32 {s(sTILE)}, {L_KL}
      s_barrier
    """)
    ts("issK")
    for ph, srd in ((0, sSRK), (1, sSRV)):
        w = WT if ph == 0 else WT2
        Ll = A.label("ld")
        A(f"{Ll}:")
        A(f"""
          s_add_u32 {s(sT0)}, {s(sT3)}, {s(sKS)}
          s_and_b32 {s(sT0)}, {s(sT0)}, 15
          s_lshl_b32 {s(sT0)}, {s(sT0)}, 12
          s_sub_u32 {s(sT2)}, {s(sT3)}, {w - 1}
          s_max_i32 {s(sT2)}, {s(sT2)}, {s(sPROG)}
          s_waitcnt vmcnt({4*(w-1)})
          s_mov_b32 {s(sPROG)}, {s(sT2)}
          v_mov_b32 {v(vT1)}, {s(sT2)}
          ds_write_b32 {v(vCT)}, {v(vT1)} offset:{L_CT}
        """)
        for i in range(4):
            A(f"s_add_u32 m0, {s(sTILE)}, {1024*i}")
            A(f"s_add_u32 {s(sT1)}, {s(sT0)}, {1024*i}")
            off = vQ + i if ph == 0 else vQ + 4
            A(f"buffer_load_dwordx4 {v(off)}, {s(srd,4)}, {s(sT1)} offen{NT} lds")
        A(f"""
          s_add_u32 {s(sTILE)}, {s(sTILE)}, 4096
          s_add_u32 {s(sT3)}, {s(sT3)}, 1
          s_cmp_lt_u32 {s(sT3)}, {16*(ph+1)}
          s_cbranch_scc1 {Ll}
        """)
        ts("issV" if ph == 0 else "issW")
    for k in range(WT2 - 1, -1, -1):
        A(f"s_waitcnt vmcnt({4*k})")
        A(f"v_mov_b32 {v(vT1)}, {32 - k}")
        A(f"ds_write_b32 {v(vCT)}, {v(vT1)} offset:{L_CT}")
    ts("Kdone")
    A("Lend:")
    if TS:
        ts("end")
        A("s_waitcnt lgkmcnt(0)")
        A(f"""
          s_mov_b64 exec, 1
          s_mul_i32 {s(sT0)}, s2, 7
          s_add_u32 {s(sT0)}, {s(sT0)}, {s(sWAVE)}
          s_lshl_b32 {s(sT0)}, {s(sT0)}, 7
          s_add_u32 {s(sT0)}, {s(sT0)}, {WS_TS}
          v_mov_b32 {v(vT4)}, {s(sT0)}
        """)
        for k in range(19):
            A(f"v_mov_b32 {v(vT5)}, {s(64+2*k)}")
            A(f"global_store_dword {v(vT4)}, {v(vT5)}, {s(sWS,2)} offset:{4*k}")
    if LTS:
        Ll = A.label("lts")
        A(f"""
          s_cmp_lg_u32 {s(sWAVE)}, 0
          s_cbranch_scc1 {Ll}
          s_memrealtime s[66:67]
          s_lshl_b32 {s(sT0)}, s2, 3
          s_add_u32 {s(sT0)}, {s(sT0)}, {WS_TS}
          v_mov_b32 {v(vT4)}, {s(sT0)}
          s_waitcnt lgkmcnt(0)
          v_mov_b32 {v(vT0)}, s64
          v_mov_b32 {v(vT1)}, s66
          s_mov_b64 exec, 1
          global_store_dwordx2 {v(vT4)}, {v(vT0,2)}, {s(sWS,2)}
        """)
        A(f"{Ll}:")
    A("Lexit:")
    A("s_endpgm")
    A("Lcode_end:")
    A(f".set CODE_CHUNKS, (Lcode_end-{NAME})/1024")
    hdr = f"""; Fused decode step:  out = x + Attn(LN(x)) @ wo + (sigmoid(LN(x) Wg) * (LN(x) Wu)) @ Wd      (generated by gen/gen13.py)
;
; @launch grid=(256,1,1) block=(448,1,1) lds={LDS_BYTES}
.amdgcn_target "amdgcn-amd-amdhsa--gfx950"
.text
.globl {NAME}
.p2align 8
.type {NAME},@function
{NAME}:
"""
    ftr = f"""
.section .rodata,"a"
.p2align 6
.amdhsa_kernel {NAME}
  .amdhsa_next_free_vgpr {NV}
  .amdhsa_next_free_sgpr 102
  .amdhsa_accum_offset {NV}
  .amdhsa_group_segment_fixed_size 0
  .amdhsa_kernarg_size 96
  .amdhsa_user_sgpr_count 2
  .amdhsa_user_sgpr_kernarg_segment_ptr 1
  .amdhsa_system_sgpr_workgroup_id_x 1
.end_amdhsa_kernel
"""
    return hdr + A.text() + ftr, (ts_map if TS else None)

if __name__ == "__main__":
    out = sys.argv[1]
    opt = {}
    for a in sys.argv[2:]:
        k, val = a.split("=")
        opt[k] = int(val)
    txt, slots = gen(opt)
    open(out, "w").write(txt)
    print("wrote", out, "ts slots:", slots)
```

```python
import sys

NAME = "parallel_sum__sliding_block_cached__glu_gated_glu__decode_kernel"
NWAVES = 6
NAWAVES = 4

class Asm:
    def __init__(self):
        self.lines = []
        self.uid = 0
    def __call__(self, s):
        for ln in s.strip("\n").split("\n"):
            t = ln.strip()
            if not t: continue
            self.lines.append(t if t.endswith(":") else "  " + t)
    def label(self, base):
        self.uid += 1
        return f"L{base}_{self.uid}"
    def nop(self, n):
        while n > 0:
            k = min(n, 16)
            self(f"s_nop {k-1}")
            n -= k
    def text(self):
        return "\n".join(self.lines) + "\n"

def v(i, n=1):
    return f"v{i}" if n == 1 else f"v[{i}:{i+n-1}]"
def s(i, n=1):
    return f"s{i}" if n == 1 else f"s[{i}:{i+n-1}]"

WS_EPOCH = 0
WS_XG = 0x8000
WS_SG = 0x10000
WS_QG = 0x40000
WS_GG = 0x80000
WS_OG = 0x100000
WS_RG = 0x200000
WS_FG = 0x300000
WS_TS = 0x800000
TAG_DELTA = 0x9E3779B9

L_XN = 0
L_TR = 8192
L_QB = 9216
L_MX = 10240
L_LS = 10304
L_FN = 10624
L_HV = 11264
L_OP = 12288
LDS_BYTES = 20480

def gen(opt):
    A = Asm()
    TS = opt.get("ts", 0)
    LTS = opt.get("lts", 0)
    NT = " nt" if opt.get("nt", 1) else ""
    WIN = opt.get("win", 8)
    NTH = opt.get("nth", 17)
    QPOS = opt.get("qpos", 0)
    SPIN = opt.get("spin", 2000000)
    CPF = opt.get("cpf", 1)
    FASTOK = opt.get("fast", 1)
    D1 = opt.get("d1", 1)
    D2 = opt.get("d2", 1)
    PGS = opt.get("pgs", 4352)
    role = ["A"]
    ts_map = {"A": ["start"], "X": ["start"]}
    SKIP = set(opt.get("_skip", ["issK", "q_done", "h_done", "issQ", "q_n"]))
    def slot(name):
        if name == "start": return 0
        if name == "end": return 18
        l = ts_map[role[0]]
        if name not in l: l.append(name)
        assert len(l) <= 18, l
        return l.index(name)
    def ts(name):
        if TS and not (role[0] == "A" and name in SKIP):
            A(f"s_memrealtime {s(64 + 2*slot(name), 2)}")

    sX, sK, sV, sWQ, sWO, sBX, sG, sU = 4, 6, 8, 10, 12, 14, 16, 18
    sWD, sOUT, sDBG, sWS = 20, 22, 24, 26
    sKVH, sA, sB, sTAG, sWAVE = 28, 29, 30, 31, 32
    sT0, sT1, sT2, sT3 = 33, 34, 35, 36
    sSPIN = 37
    sC0 = 38
    sEX = 40
    sXCC, sMODE = 42, 43
    sSRK = 44
    sSRV = 48
    sWb = 52
    sWDb = 54
    sSTR = 56
    sKS = 57
    sTILE = 58
    sROLE = 62
    vL, vN, vGq = 1, 2, 3
    vT0, vT1, vT2, vT3, vT4, vT5, vT6, vT7 = 4, 5, 6, 7, 8, 9, 10, 11
    vM0, vM1 = 12, 13
    vMK = 14
    vEP = 18
    vXR = 18
    vOA = 20
    vD3 = 28
    vQ = 32
    vS = 48
    vK = 64
    vV = 128
    vWO = 192
    vP = 216
    vU = 232
    vAX = 240
    NV = 256
    vAq, vAg, vAx, vAw0, vAw1, vAw2 = vAX, vAX+4, vAX+5, vAX+6, vAX+7, vAX+8
    vAo, vAr0, vAr1, vAog, vAst, vApo, vApg = vAX+9, vAX+10, vAX+11, vAX+12, vAX+13, vAX+14, vAX+15

    def xrow(r, t, op):
        for sw in ("v_permlane16_swap_b32", "v_permlane32_swap_b32"):
            A(f"v_mov_b32 {v(t)}, {v(r)}")
            A.nop(2)
            A(f"{sw} {v(r)}, {v(t)}")
            A(f"{op} {v(r)}, {v(r)}, {v(t)}")
    def rnd_pair(r, t):
        A(f"v_cvt_pk_bf16_f32 {v(t)}, {v(r)}, {v(r+1)}")
        A(f"v_lshlrev_b32 {v(r)}, 16, {v(t)}")
        A(f"v_and_b32 {v(r+1)}, 0xffff0000, {v(t)}")
    def check(regs):
        tmp = [vT6, vT7, vU+6]
        first = True
        i = 0
        regs = list(regs)
        A(f"v_xor_b32 {v(vT6)}, {s(sTAG)}, {v(regs[0])}")
        i = 1
        while i < len(regs):
            if i + 1 < len(regs):
                A(f"v_xor_b32 {v(vT7)}, {s(sTAG)}, {v(regs[i])}")
                A(f"v_xor_b32 {v(vU+6)}, {s(sTAG)}, {v(regs[i+1])}")
                A(f"v_or3_b32 {v(vT6)}, {v(vT6)}, {v(vT7)}, {v(vU+6)}")
                i += 2
            else:
                A(f"v_xor_b32 {v(vT7)}, {s(sTAG)}, {v(regs[i])}")
                A(f"v_or_b32 {v(vT6)}, {v(vT6)}, {v(vT7)}")
                i += 1
        A(f"v_cmp_ne_u32 vcc, 0, {v(vT6)}")
    def poll_simple(issue, tagregs, name, waitn):
        Lr = A.label(name + "_retry"); Lk = A.label(name + "_ok")
        if TS and name + "_n" not in SKIP: A(f"s_mov_b32 {s(64+2*slot(name + '_n'))}, 0")
        A(f"s_waitcnt vmcnt({waitn})")
        check(tagregs)
        A(f"s_cbranch_vccz {Lk}")
        A(f"s_mov_b32 {s(sSPIN)}, {SPIN}")
        A(f"{Lr}:")
        A("s_mov_b64 exec, vcc")
        issue()
        A("s_waitcnt vmcnt(0)")
        check(tagregs)
        A(f"s_cbranch_vccz {Lk}_x")
        A(f"s_sub_u32 {s(sSPIN)}, {s(sSPIN)}, 1")
        A(f"s_cmp_lg_u32 {s(sSPIN)}, 0")
        A(f"s_cbranch_scc1 {Lr}")
        A(f"{Lk}_x:")
        A("s_mov_b64 exec, -1")
        if TS and name + "_n" not in SKIP: A(f"s_sub_u32 {s(64+2*slot(name + '_n'))}, {SPIN+1}, {s(sSPIN)}")
        A(f"{Lk}:")
    def poll_pipe(issue, nld, tagregs, name, depth, primed, masked):
        Lr = A.label(name + "_loop"); Lk = A.label(name + "_ok"); Lf = A.label(name + "_first")
        A(f"s_mov_b32 {s(sSPIN)}, {SPIN}")
        if primed >= depth:
            A(f"s_branch {Lf}")
        else:
            for _ in range(depth - 1 - primed): issue()
        A(f"{Lr}:")
        issue()
        A(f"{Lf}:")
        A(f"s_waitcnt vmcnt({nld*(depth-1)})")
        check(tagregs)
        A(f"s_cbranch_vccz {Lk}")
        if masked: A("s_mov_b64 exec, vcc")
        A(f"s_sub_u32 {s(sSPIN)}, {s(sSPIN)}, 1")
        A(f"s_cmp_lg_u32 {s(sSPIN)}, 0")
        A(f"s_cbranch_scc1 {Lr}")
        A(f"{Lk}:")
        if masked: A("s_mov_b64 exec, -1")
        if TS: A(f"s_sub_u32 {s(64+2*slot(name + '_n'))}, {SPIN}, {s(sSPIN)}")
    def store_mode(txt):
        if not FASTOK:
            A(txt + " sc1"); return
        La = A.label("sts"); Lb = A.label("ste")
        A(f"s_cmp_eq_u32 {s(sMODE)}, 0")
        A(f"s_cbranch_scc1 {La}")
        A(txt)
        A(f"s_branch {Lb}")
        A(f"{La}:")
        A(txt + " sc1")
        A(f"{Lb}:")

    A("s_cmp_ge_u32 s2, 256")
    A("s_cbranch_scc1 Lexit")
    A(f"s_load_dwordx16 {s(4,16)}, s[0:1], 0")
    A(f"s_load_dwordx8 {s(20,8)}, s[0:1], 64")
    ts("start")
    if LTS: A("s_memrealtime s[64:65]")
    if CPF:
        A(f"""
          s_getpc_b64 {s(sC0,2)}
        Lpc:
          v_lshrrev_b32 {v(vT0)}, 6, v0
          s_bfe_u32 {s(sT0)}, s2, 0x10003
          s_mul_i32 {s(sT0)}, {s(sT0)}, 6
          v_add_u32 {v(vT0)}, {s(sT0)}, {v(vT0)}
          v_min_u32 {v(vT0)}, CODE_CHUNKS-1, {v(vT0)}
          v_lshlrev_b32 {v(vT0)}, 10, {v(vT0)}
          v_and_b32 {v(vT1)}, 63, v0
          v_lshl_add_u32 {v(vT0)}, {v(vT1)}, 4, {v(vT0)}
          s_sub_u32 {s(sC0)}, {s(sC0)}, Lpc-{NAME}
          s_subb_u32 {s(sC0+1)}, {s(sC0+1)}, 0
          global_load_dwordx4 {v(vWO+20,4)}, {v(vT0)}, {s(sC0,2)}
        """)
    A(f"""
      v_and_b32 {v(vL)}, 63, v0
      v_lshrrev_b32 {v(vT0)}, 6, v0
      v_and_b32 {v(vN)}, 15, v0
      v_bfe_u32 {v(vGq)}, v0, 4, 2
      v_readfirstlane_b32 {s(sWAVE)}, {v(vT0)}
      s_and_b32 {s(sKVH)}, s2, 7
      s_lshr_b32 {s(sA)}, s2, 3
      s_lshr_b32 {s(sB)}, {s(sA)}, 4
      s_getreg_b32 {s(sXCC)}, hwreg(HW_REG_XCC_ID)
      s_and_b32 {s(sXCC)}, {s(sXCC)}, 15
      v_mov_b32 {v(vT7)}, 0
      s_cmp_ge_u32 {s(sWAVE)}, 4
      s_cbranch_scc1 Laux
    """)
    A(f"""
      v_and_b32 {v(vT3)}, 3, {v(vN)}
      v_lshlrev_b32 {v(vT3)}, 10, {v(vT3)}
      v_lshrrev_b32 {v(vT4)}, 2, {v(vN)}
      v_lshl_add_u32 {v(vT3)}, {v(vT4)}, 8, {v(vT3)}
      v_lshl_add_u32 {v(vT3)}, {v(vGq)}, 4, {v(vT3)}
      v_lshlrev_b32 {v(vT2)}, 8, {v(vGq)}
      v_lshl_add_u32 {v(vT2)}, {v(vN)}, 4, {v(vT2)}
      v_lshlrev_b32 {v(vAw0)}, 10, {v(vGq)}
      v_lshl_add_u32 {v(vAw0)}, {v(vN)}, 4, {v(vAw0)}
      v_add_u32 {v(vAw1)}, 0x1000, {v(vAw0)}
    """)
    for tau in range(4):
        A(f"s_add_u32 {s(sT0)}, {s(sWAVE)}, {4*tau}")
        A(f"s_add_u32 {s(sT0)}, {s(sT0)}, {s(sA)}")
        A(f"s_and_b32 {s(sT0)}, {s(sT0)}, 15")
        A(f"s_lshl_b32 {s(sTILE+tau)}, {s(sT0)}, 12")
    A(f"""
      s_mov_b32 {s(sT0)}, 0xffff
      s_mov_b32 {s(sT1)}, 0xffff0000
      v_and_b32 {v(vT4)}, 1, {v(vL)}
      v_cmp_eq_u32 vcc, 1, {v(vT4)}
      v_mov_b32 {v(vT5)}, {s(sT0)}
      v_mov_b32 {v(vT6)}, {s(sT1)}
      v_cndmask_b32 {v(vT5)}, {v(vT5)}, {v(vT6)}, vcc
      v_and_b32 {v(vT4)}, 2, {v(vL)}
      v_cmp_eq_u32 vcc, 0, {v(vT4)}
      s_nop 1
      v_cndmask_b32 {v(vM0)}, 0, {v(vT5)}, vcc
      v_cmp_ne_u32 vcc, 0, {v(vT4)}
      s_nop 1
      v_cndmask_b32 {v(vM1)}, 0, {v(vT5)}, vcc
      v_bfe_u32 {v(vT4)}, {v(vL)}, 1, 2
    """)
    for i in range(4):
        A(f"v_cmp_eq_u32 vcc, {i}, {v(vT4)}")
        A("s_nop 1")
        A(f"v_cndmask_b32 {v(vMK+i)}, 0, {v(vT5)}, vcc")
    A(f"""
      s_lshl_b32 {s(sT0)}, {s(sKVH)}, 1
      s_add_u32 {s(sT0)}, {s(sT0)}, {s(sB)}
      s_lshl_b32 {s(sT0)}, {s(sT0)}, 14
      s_lshl_b32 {s(sT1)}, {s(sWAVE)}, 10
      s_add_u32 {s(sT0)}, {s(sT0)}, {s(sT1)}
      s_add_u32 {s(sT0)}, {s(sT0)}, {WS_QG}
      v_lshlrev_b32 {v(vT4)}, 4, {v(vL)}
      v_add_u32 {v(vAq)}, {s(sT0)}, {v(vT4)}
      s_cmp_lt_u32 s2, 224
      s_cselect_b32 {s(sT0)}, s2, 0
      s_lshl_b32 {s(sT0)}, {s(sT0)}, 10
      s_add_u32 {s(sT0)}, {s(sT0)}, {WS_GG}
      v_add_u32 {v(vAg)}, {s(sT0)}, {v(vT4)}
      v_add_u32 {v(vAq+1)}, 0x1000, {v(vAq)}
      v_add_u32 {v(vAq+2)}, 0x2000, {v(vAq)}
      v_add_u32 {v(vAq+3)}, 0x3000, {v(vAq)}
      s_lshl_b32 {s(sT0)}, {s(sKVH)}, 8
      s_add_u32 {s(sT0)}, {s(sT0)}, {WS_XG}
      v_and_b32 {v(vT4)}, 31, {v(vL)}
      v_lshlrev_b32 {v(vT4)}, 3, {v(vT4)}
      v_add_u32 {v(vAx)}, {s(sT0)}, {v(vT4)}
    """)
    A(f"""
      s_lshl_b32 {s(sT0)}, {s(sWAVE)}, 11
      s_add_u32 {s(sT0)}, {s(sT0)}, {L_OP}
      v_lshlrev_b32 {v(vAo)}, 9, {v(vGq)}
      v_lshl_add_u32 {v(vAo)}, {v(vN)}, 5, {v(vAo)}
      v_add_u32 {v(vAo)}, {s(sT0)}, {v(vAo)}
      v_lshrrev_b32 {v(vT4)}, 3, {v(vL)}
      v_lshlrev_b32 {v(vT4)}, 4, {v(vT4)}
      v_and_b32 {v(vT5)}, 1, {v(vL)}
      v_lshl_add_u32 {v(vT4)}, {v(vT5)}, 3, {v(vT4)}
      v_bfe_u32 {v(vT5)}, {v(vL)}, 1, 2
      v_add_u32 {v(vT4)}, {v(vT4)}, {v(vT5)}
      v_lshlrev_b32 {v(vT4)}, 2, {v(vT4)}
      s_lshl_b32 {s(sT0)}, {s(sWAVE)}, 9
      s_add_u32 {s(sT0)}, {s(sT0)}, {L_OP}
      v_add_u32 {v(vAr0)}, {s(sT0)}, {v(vT4)}
      v_add_u32 {v(vAr1)}, 16, {v(vAr0)}
      s_lshl_b32 {s(sT0)}, {s(sKVH)}, 16
      s_lshl_b32 {s(sT1)}, {s(sWAVE)}, 14
      s_add_u32 {s(sT0)}, {s(sT0)}, {s(sT1)}
      s_lshl_b32 {s(sT1)}, {s(sA)}, 6
      s_add_u32 {s(sT0)}, {s(sT0)}, {s(sT1)}
      s_add_u32 {s(sT0)}, {s(sT0)}, {WS_OG}
      v_lshrrev_b32 {v(vT4)}, 3, {v(vL)}
      v_lshlrev_b32 {v(vT4)}, 11, {v(vT4)}
      v_and_b32 {v(vT5)}, 7, {v(vL)}
      v_lshl_add_u32 {v(vT4)}, {v(vT5)}, 3, {v(vT4)}
      v_add_u32 {v(vAog)}, {s(sT0)}, {v(vT4)}
      s_lshl_b32 {s(sT0)}, {s(sKVH)}, 2
      s_lshr_b32 {s(sT1)}, {s(sA)}, 3
      s_add_u32 {s(sT0)}, {s(sT0)}, {s(sT1)}
      s_lshl_b32 {s(sT0)}, {s(sT0)}, 9
      s_add_u32 {s(sT0)}, {s(sT0)}, {WS_SG}
      v_bfe_u32 {v(vT4)}, {v(vL)}, 3, 1
      v_lshlrev_b32 {v(vAst)}, 8, {v(vT4)}
      v_lshl_add_u32 {v(vAst)}, {v(vT5)}, 4, {v(vAst)}
      v_add_u32 {v(vAst)}, {s(sT0)}, {v(vAst)}
      s_lshl_b32 {s(sT0)}, {s(sKVH)}, 5
      s_add_u32 {s(sT0)}, {s(sT0)}, {s(sA)}
      s_lshl_b32 {s(sT0)}, {s(sT0)}, 11
      s_add_u32 {s(sT0)}, {s(sT0)}, {WS_OG}
      v_lshlrev_b32 {v(vApo)}, 10, {v(vT4)}
      v_lshl_add_u32 {v(vApo)}, {v(vT5)}, 6, {v(vApo)}
      v_lshl_add_u32 {v(vApo)}, {v(vGq)}, 4, {v(vApo)}
      v_add_u32 {v(vApo)}, {s(sT0)}, {v(vApo)}
      s_lshl_b32 {s(sT0)}, {s(sKVH)}, 17
      s_lshl_b32 {s(sT1)}, {s(sWAVE)}, 14
      s_add_u32 {s(sT0)}, {s(sT0)}, {s(sT1)}
      s_lshl_b32 {s(sT1)}, {s(sA)}, 7
      s_add_u32 {s(sT0)}, {s(sT0)}, {s(sT1)}
      s_add_u32 {s(sT0)}, {s(sT0)}, {WS_RG}
      v_lshrrev_b32 {v(vT4)}, 1, {v(vGq)}
      v_lshlrev_b32 {v(vT4)}, 16, {v(vT4)}
      v_lshrrev_b32 {v(vT5)}, 2, {v(vN)}
      v_lshl_add_u32 {v(vT4)}, {v(vT5)}, 12, {v(vT4)}
      v_and_b32 {v(vT5)}, 3, {v(vN)}
      v_lshl_add_u32 {v(vT4)}, {v(vT5)}, 5, {v(vT4)}
      v_and_b32 {v(vT5)}, 1, {v(vGq)}
      v_lshl_add_u32 {v(vT4)}, {v(vT5)}, 4, {v(vT4)}
      v_add_u32 {v(vApg)}, {s(sT0)}, {v(vT4)}
      v_mov_b32 {v(vD3)}, 0
      v_mov_b32 {v(vD3+1)}, 0
      v_mov_b32 {v(vD3+2)}, 0
      v_mov_b32 {v(vD3+3)}, 0
    """)
    A(f"""
      s_lshl_b32 {s(sT0)}, {s(sB)}, 3
      s_add_u32 {s(sT0)}, {s(sT0)}, {s(sKVH)}
      s_lshl_b32 {s(sT0)}, {s(sT0)}, 23
      s_and_b32 {s(sT1)}, {s(sA)}, 15
      s_lshl_b32 {s(sT1)}, {s(sT1)}, 16
      s_add_u32 {s(sT0)}, {s(sT0)}, {s(sT1)}
      s_add_u32 {s(sT0)}, {s(sT0)}, 0x700000
      s_waitcnt lgkmcnt(0)
      s_add_u32 {s(sSRK)}, {s(sK)}, {s(sT0)}
      s_addc_u32 {s(sSRK+1)}, {s(sK+1)}, 0
      s_and_b32 {s(sSRK+1)}, {s(sSRK+1)}, 0xffff
      s_mov_b32 {s(sSRK+2)}, 0x10000
      s_mov_b32 {s(sSRK+3)}, 0x20000
      s_add_u32 {s(sSRV)}, {s(sV)}, {s(sT0)}
      s_addc_u32 {s(sSRV+1)}, {s(sV+1)}, 0
      s_and_b32 {s(sSRV+1)}, {s(sSRV+1)}, 0xffff
      s_mov_b32 {s(sSRV+2)}, 0x10000
      s_mov_b32 {s(sSRV+3)}, 0x20000
      s_lshl_b32 {s(sT0)}, {s(sKVH)}, 19
      s_lshl_b32 {s(sT1)}, {s(sA)}, 14
      s_add_u32 {s(sT0)}, {s(sT0)}, {s(sT1)}
      s_lshl_b32 {s(sT1)}, {s(sWAVE)}, 8
      s_add_u32 {s(sT0)}, {s(sT0)}, {s(sT1)}
      s_add_u32 {s(sWb)}, {s(sWO)}, {s(sT0)}
      s_addc_u32 {s(sWb+1)}, {s(sWO+1)}, 0
      s_cmp_lt_u32 s2, 224
      s_cselect_b32 {s(sT0)}, s2, 0
      s_lshl_b32 {s(sT0)}, {s(sT0)}, 13
      s_add_u32 {s(sT0)}, {s(sT0)}, {s(sT1)}
      s_add_u32 {s(sWDb)}, {s(sWD)}, {s(sT0)}
      s_addc_u32 {s(sWDb+1)}, {s(sWD+1)}, 0
      s_barrier
    """)
    nload = [0]
    def ld(txt):
        if WIN and WIN <= nload[0] < NTH:
            A(f"s_waitcnt vmcnt({WIN-1})")
        A(txt); nload[0] += 1
    vQP = vQ
    vGP = vOA
    vXP = vOA + 4
    def issue_q():
        for ks in range(4):
            A(f"global_load_dwordx4 {v(vQP+4*ks,4)}, {v(vAq+ks)}, {s(sWS,2)} sc1")
    def issue_x():
        A(f"global_load_dwordx2 {v(vXP,2)}, {v(vAx)}, {s(sWS,2)} sc1")
    def issue_qx():
        issue_q(); issue_x()
    def issue_g():
        A(f"global_load_dwordx4 {v(vGP,4)}, {v(vAg)}, {s(sWS,2)} sc1")
    ld(f"global_load_dword {v(vEP)}, {v(vT7)}, {s(sWS,2)} sc1")
    for tau in range(4):
        for jj in range(4):
            ld(f"buffer_load_dwordx4 {v(vK+16*tau+4*jj,4)}, {v(vT3)}, {s(sSRK,4)}, {s(sTILE+tau)} offen offset:{64*jj}{NT}")
    ts("issK")
    A("s_barrier")
    nv = 0
    for tau in range(4):
        for r in range(4):
            if nv == QPOS:
                if QPOS > 0: A("s_barrier")
                issue_qx(); issue_g(); ts("issQ")
                A("s_barrier")
            ld(f"buffer_load_dwordx4 {v(vV+16*tau+4*r,4)}, {v(vT2)}, {s(sSRV,4)}, {s(sTILE+tau)} offen offset:{1024*r}{NT}")
            nv += 1
    ts("issV")
    AFTER_Q = 16 - QPOS
    A(f"""
      s_waitcnt vmcnt({AFTER_Q + 6})
      v_readfirstlane_b32 {s(sTAG)}, {v(vEP)}
      s_add_u32 {s(sTAG)}, {s(sTAG)}, 0x{TAG_DELTA:x}
    """)
    poll_simple(issue_qx, [vQP+4*i+k for i in range(4) for k in (1, 3)] + [vXP+1], "q", AFTER_Q + 1)
    ts("q_done")
    A(f"""
      v_add_f32 {v(vQP)}, {v(vQP)}, {v(vQP+4)}
      v_add_f32 {v(vQP+2)}, {v(vQP+2)}, {v(vQP+6)}
      v_add_f32 {v(vQP+8)}, {v(vQP+8)}, {v(vQP+12)}
      v_add_f32 {v(vQP+10)}, {v(vQP+10)}, {v(vQP+14)}
      v_add_f32 {v(vQP)}, {v(vQP)}, {v(vQP+8)}
      v_add_f32 {v(vQP+2)}, {v(vQP+2)}, {v(vQP+10)}
      v_cvt_pk_bf16_f32 {v(vQP)}, {v(vQP)}, {v(vQP+2)}
      v_lshlrev_b32 {v(vT4)}, 2, v0
      ds_write_b32 {v(vT4)}, {v(vQP)} offset:{L_QB}
      v_lshrrev_b32 {v(vT4)}, 2, {v(vN)}
      v_lshlrev_b32 {v(vT4)}, 8, {v(vT4)}
      v_lshl_add_u32 {v(vT4)}, {v(vGq)}, 4, {v(vT4)}
      v_cmp_ne_u32 vcc, {s(sXCC)}, {v(vXP)}
      s_cmp_eq_u64 vcc, 0
      s_cselect_b32 {s(sMODE)}, 1, 0
      s_waitcnt lgkmcnt(0)
      s_barrier
    """)
    ts("barX")
    for jj in range(4):
        A(f"ds_read_b128 {v(vQ+4*jj,4)}, {v(vT4)} offset:{L_QB + 64*jj}")
    A("s_waitcnt lgkmcnt(0)")
    for jj in range(4):
        for t in range(4):
            c = "0" if jj == 0 else v(vS+4*t,4)
            A(f"v_mfma_f32_16x16x32_bf16 {v(vS+4*t,4)}, {v(vK+16*t+4*jj,4)}, {v(vQ+4*jj,4)}, {c}")
    A(f"s_mov_b32 {s(sC0)}, 0x3db504f3")
    A(f"s_mov_b32 {s(sC0+1)}, 0x3db504f3")
    A.nop(6)
    for i in range(8):
        r = vS + 2*i
        t = vU + (i & 3)
        A(f"v_cvt_pk_bf16_f32 {v(t)}, {v(r)}, {v(r+1)}")
        A(f"v_lshlrev_b32 {v(r)}, 16, {v(t)}")
        A(f"v_and_b32 {v(r+1)}, 0xffff0000, {v(t)}")
        A(f"v_pk_mul_f32 {v(r,2)}, {v(r,2)}, {s(sC0,2)}")
        A(f"v_cvt_pk_bf16_f32 {v(t)}, {v(r)}, {v(r+1)}")
        A(f"v_lshlrev_b32 {v(r)}, 16, {v(t)}")
        A(f"v_and_b32 {v(r+1)}, 0xffff0000, {v(t)}")
    A(f"v_max3_f32 {v(vT0)}, {v(vS)}, {v(vS+1)}, {v(vS+2)}")
    for i in range(3, 15, 2):
        A(f"v_max3_f32 {v(vT0)}, {v(vT0)}, {v(vS+i)}, {v(vS+i+1)}")
    A(f"v_max_f32 {v(vT0)}, {v(vT0)}, {v(vS+15)}")
    xrow(vT0, vT1, "v_max_f32")
    A(f"""
      v_lshrrev_b32 {v(vT2)}, 2, {v(vN)}
      v_lshlrev_b32 {v(vT2)}, 4, {v(vT2)}
      s_lshl_b32 {s(sT0)}, {s(sWAVE)}, 2
      v_add_u32 {v(vT3)}, {s(sT0)}, {v(vT2)}
      ds_write_b32 {v(vT3)}, {v(vT0)} offset:{L_MX}
      s_waitcnt lgkmcnt(0)
      s_barrier
      ds_read_b128 {v(vU,4)}, {v(vT2)} offset:{L_MX}
      s_mov_b32 {s(sC0)}, 0x3fb8aa3b
      s_waitcnt lgkmcnt(0)
      v_max3_f32 {v(vT0)}, {v(vU)}, {v(vU+1)}, {v(vU+2)}
      v_max_f32 {v(vT0)}, {v(vT0)}, {v(vU+3)}
      v_mul_f32 {v(vT0)}, {s(sC0)}, {v(vT0)}
    """)
    for i in range(16):
        A(f"v_fma_f32 {v(vS+i)}, {v(vS+i)}, {s(sC0)}, -{v(vT0)}")
    for i in range(16):
        A(f"v_exp_f32 {v(vS+i)}, {v(vS+i)}")
    A.nop(1)
    for i in range(8):
        A(f"v_add_f32 {v(vU + (i & 7))}, {v(vS+2*i)}, {v(vS+2*i+1)}")
    for i in range(4):
        A(f"v_add_f32 {v(vU+i)}, {v(vU+i)}, {v(vU+4+i)}")
    A(f"v_add_f32 {v(vU)}, {v(vU)}, {v(vU+2)}")
    A(f"v_add_f32 {v(vU+1)}, {v(vU+1)}, {v(vU+3)}")
    A(f"v_add_f32 {v(vT1)}, {v(vU)}, {v(vU+1)}")
    xrow(vT1, vT4, "v_add_f32")
    A(f"ds_write_b32 {v(vT3)}, {v(vT1)} offset:{L_LS}")
    for i in range(16):
        A(f"v_cvt_pk_bf16_f32 {v(vS+i)}, {v(vS+i)}, {v(vS+i)}")
    for i in range(16):
        A(f"v_and_b32 {v(vK+2*i)}, {v(vS+i)}, {v(vM0)}")
        A(f"v_and_b32 {v(vK+2*i+1)}, {v(vS+i)}, {v(vM1)}")
    A(f"""
      s_waitcnt lgkmcnt(0)
      s_barrier
      s_lshl_b32 {s(sT0)}, {s(sWAVE)}, 4
      v_mov_b32 {v(vT6)}, {s(sT0)}
      ds_read_b128 {v(vP+4,4)}, {v(vT6)} offset:{L_LS}
      s_lshl_b32 {s(sT0)}, {s(sKVH)}, 2
      s_add_u32 {s(sT0)}, {s(sT0)}, {s(sWAVE)}
      s_lshl_b32 {s(sT0)}, {s(sT0)}, 9
      s_lshl_b32 {s(sT1)}, {s(sA)}, 4
      s_add_u32 {s(sT0)}, {s(sT0)}, {s(sT1)}
      s_add_u32 {s(sT0)}, {s(sT0)}, {WS_SG}
      v_mov_b32 {v(vT5)}, {s(sT0)}
      ds_read_b128 {v(vP+8,4)}, {v(vT6)} offset:{L_MX}
      s_waitcnt lgkmcnt(0)
      v_add_f32 {v(vP+4)}, {v(vP+4)}, {v(vP+5)}
      v_add_f32 {v(vP+6)}, {v(vP+6)}, {v(vP+7)}
      v_add_f32 {v(vP+6)}, {v(vP+4)}, {v(vP+6)}
      v_max3_f32 {v(vP+4)}, {v(vP+8)}, {v(vP+9)}, {v(vP+10)}
      v_max_f32 {v(vP+4)}, {v(vP+4)}, {v(vP+11)}
      v_mul_f32 {v(vP+4)}, {s(sC0)}, {v(vP+4)}
      v_mov_b32 {v(vP+5)}, {s(sTAG)}
      v_mov_b32 {v(vP+7)}, {s(sTAG)}
      s_mov_b64 exec, 1
    """)
    store_mode(f"global_store_dwordx4 {v(vT5)}, {v(vP+4,4)}, {s(sWS,2)}")
    A("s_mov_b64 exec, -1")
    ts("p_done")
    A(f"global_load_dwordx4 {v(vWO+16,4)}, {v(vAw0)}, {s(sWDb,2)}{NT}")
    A(f"global_load_dwordx4 {v(vWO+20,4)}, {v(vAw1)}, {s(sWDb,2)}{NT}")
    A(f"global_load_dwordx4 {v(vWO,4)}, {v(vAw0)}, {s(sWb,2)}{NT}")
    A(f"global_load_dwordx4 {v(vWO+4,4)}, {v(vAw1)}, {s(sWb,2)}{NT}")
    A(f"v_add_u32 {v(vAw2)}, 0x2000, {v(vAw0)}")
    A(f"global_load_dwordx4 {v(vWO+8,4)}, {v(vAw2)}, {s(sWb,2)}{NT}")
    A(f"v_add_u32 {v(vAw2)}, 0x3000, {v(vAw0)}")
    A(f"global_load_dwordx4 {v(vWO+12,4)}, {v(vAw2)}, {s(sWb,2)}{NT}")
    LnoG = A.label("noG")
    A(f"s_cmp_ge_u32 s2, 224")
    A(f"s_cbranch_scc1 {LnoG}")
    SKIP.add("g_n")
    poll_simple(issue_g, [vGP+1, vGP+3], "g", AFTER_Q + 7)
    for r in (vGP, vGP+2):
        A.nop(2)
        A(f"v_add_f32_dpp {v(r)}, {v(r)}, {v(r)} row_ror:8 row_mask:0xf bank_mask:0xf")
        A(f"v_mov_b32 {v(vT0)}, {v(r)}")
        A.nop(2)
        A(f"v_permlane16_swap_b32 {v(r)}, {v(vT0)}")
        A(f"v_add_f32 {v(r)}, {v(r)}, {v(vT0)}")
    for r, tt in ((vGP, vGP+1), (vGP+2, vGP+3)):
        A(f"v_mov_b32 {v(tt)}, {v(r)}")
        A.nop(2)
        A(f"v_permlane32_swap_b32 {v(r)}, {v(tt)}")
    A(f"""
      v_cvt_pk_bf16_f32 {v(vT6)}, {v(vGP)}, {v(vGP+2)}
      v_cvt_pk_bf16_f32 {v(vT7)}, {v(vGP+1)}, {v(vGP+3)}
      v_lshlrev_b32 {v(vS+8)}, 16, {v(vT6)}
      v_and_b32 {v(vS+9)}, 0xffff0000, {v(vT6)}
      v_lshlrev_b32 {v(vS+10)}, 16, {v(vT7)}
      v_and_b32 {v(vS+11)}, 0xffff0000, {v(vT7)}
      s_mov_b32 {s(sC0)}, 0xbfb8aa3b
      v_mul_f32 {v(vS+8)}, {s(sC0)}, {v(vS+8)}
      v_mul_f32 {v(vS+9)}, {s(sC0)}, {v(vS+9)}
      v_exp_f32 {v(vS+8)}, {v(vS+8)}
      v_exp_f32 {v(vS+9)}, {v(vS+9)}
      s_nop 0
      v_add_f32 {v(vS+8)}, 1.0, {v(vS+8)}
      v_add_f32 {v(vS+9)}, 1.0, {v(vS+9)}
      v_rcp_f32 {v(vS+8)}, {v(vS+8)}
      v_rcp_f32 {v(vS+9)}, {v(vS+9)}
      s_nop 0
      v_cvt_pk_bf16_f32 {v(vT6)}, {v(vS+8)}, {v(vS+9)}
      v_lshlrev_b32 {v(vS+8)}, 16, {v(vT6)}
      v_and_b32 {v(vS+9)}, 0xffff0000, {v(vT6)}
      v_pk_mul_f32 {v(vS+8,2)}, {v(vS+8,2)}, {v(vS+10,2)}
      v_cvt_pk_bf16_f32 {v(vS+12)}, {v(vS+8)}, {v(vS+8)}
      v_cvt_pk_bf16_f32 {v(vS+13)}, {v(vS+9)}, {v(vS+9)}
      s_lshl_b32 {s(sT0)}, {s(sWAVE)}, 7
      v_bfe_u32 {v(vT4)}, {v(vL)}, 2, 1
      v_lshlrev_b32 {v(vT4)}, 6, {v(vT4)}
      v_and_b32 {v(vT5)}, 1, {v(vL)}
      v_lshl_add_u32 {v(vT4)}, {v(vT5)}, 5, {v(vT4)}
      v_bfe_u32 {v(vT5)}, {v(vL)}, 1, 1
      v_lshl_add_u32 {v(vT4)}, {v(vT5)}, 2, {v(vT4)}
      v_add_u32 {v(vT4)}, {s(sT0)}, {v(vT4)}
      ds_write_b32 {v(vT4)}, {v(vS+12)} offset:{L_HV}
      ds_write_b32 {v(vT4)}, {v(vS+13)} offset:{L_HV+16}
      v_bfe_u32 {v(vT5)}, {v(vL)}, 3, 1
      v_lshlrev_b32 {v(vT5)}, 6, {v(vT5)}
      v_lshl_add_u32 {v(vT5)}, {v(vGq)}, 4, {v(vT5)}
      v_add_u32 {v(vT5)}, {s(sT0)}, {v(vT5)}
      ds_read_b64 {v(vP,2)}, {v(vT5)} offset:{L_HV}
      s_waitcnt lgkmcnt(0)
    """)
    for i in range(2):
        for k in range(4):
            A(f"v_and_b32 {v(vP+4+4*i+k)}, {v(vP+i)}, {v(vMK+k)}")
    A(f"{LnoG}:")
    A(f"v_mov_b32 {v(vT1)}, {s(sTAG)}")
    ts("h_done")
    for i in range(16):
        A(f"s_waitcnt vmcnt({(15 - i) + 7})")
        c0 = "0" if i == 0 else v(vOA,4)
        c1 = "0" if i == 0 else v(vOA+4,4)
        A(f"v_mfma_f32_16x16x16_bf16 {v(vOA,4)}, {v(vK+2*i,2)}, {v(vV+4*i,2)}, {c0}")
        A(f"v_mfma_f32_16x16x16_bf16 {v(vOA+4,4)}, {v(vK+2*i,2)}, {v(vV+4*i+2,2)}, {c1}")
    ts("pv_done")
    A.nop(8)
    A(f"""
      ds_write_b128 {v(vAo)}, {v(vOA,4)}
      ds_write_b128 {v(vAo)}, {v(vOA+4,4)} offset:16
      s_waitcnt lgkmcnt(0)
      s_barrier
      ds_read2st64_b32 {v(vU,2)}, {v(vAr0)} offset0:0 offset1:8
      ds_read2st64_b32 {v(vU+2,2)}, {v(vAr0)} offset0:16 offset1:24
      ds_read2st64_b32 {v(vU+4,2)}, {v(vAr1)} offset0:0 offset1:8
      ds_read2st64_b32 {v(vU+6,2)}, {v(vAr1)} offset0:16 offset1:24
      s_waitcnt lgkmcnt(2)
      v_pk_add_f32 {v(vU,2)}, {v(vU,2)}, {v(vU+2,2)}
      s_waitcnt lgkmcnt(0)
      v_pk_add_f32 {v(vU+4,2)}, {v(vU+4,2)}, {v(vU+6,2)}
      v_add_f32 {v(vU)}, {v(vU)}, {v(vU+1)}
      v_add_f32 {v(vU+4)}, {v(vU+4)}, {v(vU+5)}
      v_cvt_pk_bf16_f32 {v(vT0)}, {v(vU)}, {v(vU+4)}
    """)
    store_mode(f"global_store_dwordx2 {v(vAog)}, {v(vT0,2)}, {s(sWS,2)}")
    ts("o_published")
    vST = vV
    vOO = vV + 8
    def issue_st():
        A(f"global_load_dwordx4 {v(vST,4)}, {v(vAst)}, {s(sWS,2)} sc1")
        A(f"global_load_dwordx4 {v(vST+4,4)}, {v(vAst)}, {s(sWS,2)} offset:128 sc1")
    def issue_o():
        A(f"global_load_dwordx4 {v(vOO,4)}, {v(vApo)}, {s(sWS,2)} sc1")
        A(f"global_load_dwordx4 {v(vOO+4,4)}, {v(vApo)}, {s(sWS,2)} offset:512 sc1")
    issue_st()
    issue_o()
    poll_simple(issue_st, [vST+1, vST+3, vST+5, vST+7], "st", 2)
    ts("st_done")
    LskipB = A.label("skipB")
    A(f"s_cmp_ge_u32 s2, 224")
    A(f"s_cbranch_scc1 {LskipB}")
    for i in range(2):
        A(f"v_mfma_f32_16x16x32_bf16 {v(vD3,4)}, {v(vP+4+4*i,4)}, {v(vWO+16+4*i,4)}, {v(vD3,4)}")
    A(f"{LskipB}:")
    def red8(regs, op):
        n = len(regs)
        for ctrl in ("quad_perm:[1,0,3,2]", "quad_perm:[2,3,0,1]", "row_half_mirror"):
            if n < 3: A.nop(3 - n)
            for r in regs:
                A(f"{op}_dpp {v(r)}, {v(r)}, {v(r)} {ctrl} row_mask:0xf bank_mask:0xf")
    A(f"v_max_f32 {v(vT2)}, {v(vST)}, {v(vST+4)}")
    red8([vT2], "v_max_f32")
    A(f"""
      v_sub_f32 {v(vT3)}, {v(vST)}, {v(vT2)}
      v_sub_f32 {v(vT4)}, {v(vST+4)}, {v(vT2)}
      v_exp_f32 {v(vT3)}, {v(vT3)}
      v_exp_f32 {v(vT4)}, {v(vT4)}
      s_nop 0
      v_mul_f32 {v(vT2)}, {v(vT3)}, {v(vST+2)}
      v_fma_f32 {v(vT2)}, {v(vT4)}, {v(vST+6)}, {v(vT2)}
    """)
    red8([vT2], "v_add_f32")
    A(f"""
      v_rcp_f32 {v(vT2)}, {v(vT2)}
      s_nop 0
      v_mul_f32 {v(vT3)}, {v(vT3)}, {v(vT2)}
      v_mul_f32 {v(vT4)}, {v(vT4)}, {v(vT2)}
    """)
    poll_pipe(issue_o, 2, [vOO+1, vOO+3, vOO+5, vOO+7], "h1", D1, 1, True)
    ts("h1_done")
    A(f"""
      v_lshlrev_b32 {v(vU)}, 16, {v(vOO)}
      v_and_b32 {v(vU+1)}, 0xffff0000, {v(vOO)}
      v_lshlrev_b32 {v(vU+2)}, 16, {v(vOO+2)}
      v_and_b32 {v(vU+3)}, 0xffff0000, {v(vOO+2)}
      v_lshlrev_b32 {v(vU+4)}, 16, {v(vOO+4)}
      v_and_b32 {v(vU+5)}, 0xffff0000, {v(vOO+4)}
      v_lshlrev_b32 {v(vU+6)}, 16, {v(vOO+6)}
      v_and_b32 {v(vU+7)}, 0xffff0000, {v(vOO+6)}
      v_pk_mul_f32 {v(vU,2)}, {v(vU,2)}, {v(vT3,2)} op_sel:[0,0] op_sel_hi:[1,0]
      v_pk_mul_f32 {v(vU+2,2)}, {v(vU+2,2)}, {v(vT3,2)} op_sel:[0,0] op_sel_hi:[1,0]
    """.replace(v(vT3,2), "XX")) if False else None
    A(f"""
      v_lshlrev_b32 {v(vU)}, 16, {v(vOO)}
      v_and_b32 {v(vU+1)}, 0xffff0000, {v(vOO)}
      v_lshlrev_b32 {v(vU+2)}, 16, {v(vOO+2)}
      v_and_b32 {v(vU+3)}, 0xffff0000, {v(vOO+2)}
      v_lshlrev_b32 {v(vU+4)}, 16, {v(vOO+4)}
      v_and_b32 {v(vU+5)}, 0xffff0000, {v(vOO+4)}
      v_lshlrev_b32 {v(vU+6)}, 16, {v(vOO+6)}
      v_and_b32 {v(vU+7)}, 0xffff0000, {v(vOO+6)}
    """)
    for i in range(4):
        A(f"v_mul_f32 {v(vU+i)}, {v(vU+i)}, {v(vT3)}")
    for i in range(4):
        A(f"v_fma_f32 {v(vU+i)}, {v(vU+4+i)}, {v(vT4)}, {v(vU+i)}")
    red8([vU, vU+1, vU+2, vU+3], "v_add_f32")
    for i in range(4):
        A(f"v_cvt_pk_bf16_f32 {v(vU+i)}, {v(vU+i)}, {v(vU+i)}")
    for i in range(4):
        for k in range(4):
            A(f"v_and_b32 {v(vQ+4*i+k)}, {v(vU+i)}, {v(vMK+k)}")
    A(f"v_mov_b32 {v(vU+5)}, {s(sTAG)}")
    A(f"v_mov_b32 {v(vU+7)}, {s(sTAG)}")
    for i in range(4):
        A(f"v_mfma_f32_16x16x32_bf16 {v(vD3,4)}, {v(vQ+4*i,4)}, {v(vWO+4*i,4)}, {v(vD3,4)}")
    A.nop(8)
    A(f"""
      v_cvt_pk_bf16_f32 {v(vU+4)}, {v(vD3)}, {v(vD3+1)}
      v_cvt_pk_bf16_f32 {v(vU+6)}, {v(vD3+2)}, {v(vD3+3)}
    """)
    store_mode(f"global_store_dwordx4 {v(vApg)}, {v(vU+4,4)}, {s(sWS,2)}")
    ts("p_published")
    A(f"""
      s_lshl_b32 {s(sT0)}, {s(sKVH)}, 5
      s_add_u32 {s(sT0)}, {s(sT0)}, {s(sA)}
      s_lshl_b32 {s(sT0)}, {s(sT0)}, 12
      s_lshl_b32 {s(sT1)}, {s(sWAVE)}, 5
      s_add_u32 {s(sT0)}, {s(sT0)}, {s(sT1)}
      s_add_u32 {s(sT0)}, {s(sT0)}, {WS_RG}
      v_lshrrev_b32 {v(vT5)}, 1, {v(vL)}
      v_lshlrev_b32 {v(vT5)}, 7, {v(vT5)}
      v_and_b32 {v(vT0)}, 1, {v(vL)}
      v_lshl_add_u32 {v(vT5)}, {v(vT0)}, 4, {v(vT5)}
      v_add_u32 {v(vT5)}, {s(sT0)}, {v(vT5)}
    """)
    def issue_r():
        A(f"global_load_dwordx4 {v(vK,4)}, {v(vT5)}, {s(sWS,2)} sc1")
    issue_r()
    A(f"""
      s_lshl_b32 {s(sT0)}, {s(sA)}, 11
      s_lshl_b32 {s(sT1)}, {s(sKVH)}, 8
      s_add_u32 {s(sT0)}, {s(sT0)}, {s(sT1)}
      s_lshl_b32 {s(sT1)}, {s(sWAVE)}, 6
      s_add_u32 {s(sT0)}, {s(sT0)}, {s(sT1)}
      s_add_u32 {s(sT0)}, {s(sT0)}, {WS_FG}
      v_lshlrev_b32 {v(vT1)}, 5, {v(vT0)}
      v_lshl_add_u32 {v(vT1)}, {v(vGq)}, 3, {v(vT1)}
      v_add_u32 {v(vT1)}, {s(sT0)}, {v(vT1)}
      v_mov_b32 {v(vT3)}, {s(sTAG)}
    """)
    poll_pipe(issue_r, 1, [vK+1, vK+3], "h2", 1, 1, True)
    ts("h2_done")
    A(f"""
      v_lshlrev_b32 {v(vS)}, 16, {v(vK)}
      v_and_b32 {v(vS+1)}, 0xffff0000, {v(vK)}
      v_lshlrev_b32 {v(vS+2)}, 16, {v(vK+2)}
      v_and_b32 {v(vS+3)}, 0xffff0000, {v(vK+2)}
      s_nop 1
      v_permlane32_swap_b32 {v(vS)}, {v(vS+2)}
      v_permlane32_swap_b32 {v(vS+1)}, {v(vS+3)}
      v_add_f32 {v(vS)}, {v(vS)}, {v(vS+2)}
      v_add_f32 {v(vS+1)}, {v(vS+1)}, {v(vS+3)}
      s_nop 1
      v_permlane16_swap_b32 {v(vS)}, {v(vS+1)}
      v_add_f32 {v(vS)}, {v(vS)}, {v(vS+1)}
      s_nop 1
      v_add_f32_dpp {v(vS)}, {v(vS)}, {v(vS)} row_ror:8 row_mask:0xf bank_mask:0xf
      s_nop 1
      v_add_f32_dpp {v(vS)}, {v(vS)}, {v(vS)} row_ror:4 row_mask:0xf bank_mask:0xf
      s_nop 1
      v_add_f32_dpp {v(vT2)}, {v(vS)}, {v(vS)} quad_perm:[2,3,0,1] row_mask:0xf bank_mask:0xf
      s_mov_b64 exec, 0x0003000300030003
      global_store_dwordx2 {v(vT1)}, {v(vT2,2)}, {s(sWS,2)} sc1
      s_mov_b64 exec, -1
    """.replace("s_mov_b64 exec, 0x0003000300030003", f"s_mov_b32 exec_lo, 0x00030003\n      s_mov_b32 exec_hi, 0x00030003".replace("\\n", "\n")))
    ts("f_published")
    A(f"""
      s_and_b32 {s(sT0)}, {s(sA)}, 7
      s_cmp_lg_u32 {s(sT0)}, {s(sKVH)}
      s_cbranch_scc1 Lend
      s_cmp_lg_u32 {s(sWAVE)}, 0
      s_cbranch_scc1 Lend
      s_lshl_b32 {s(sT0)}, {s(sA)}, 11
      s_add_u32 {s(sT0)}, {s(sT0)}, {WS_FG}
      v_lshrrev_b32 {v(vT5)}, 3, {v(vL)}
      v_lshlrev_b32 {v(vT5)}, 8, {v(vT5)}
      v_and_b32 {v(vT0)}, 7, {v(vL)}
      v_lshl_add_u32 {v(vT5)}, {v(vT0)}, 4, {v(vT5)}
      v_add_u32 {v(vT5)}, {s(sT0)}, {v(vT5)}
      s_lshl_b32 {s(sT0)}, {s(sA)}, 6
      v_lshlrev_b32 {v(vT4)}, 2, {v(vT0)}
      v_add_u32 {v(vT4)}, {s(sT0)}, {v(vT4)}
      global_load_dword {v(vXR)}, {v(vT4)}, {s(sX,2)}
      global_load_dword {v(vXR+1)}, {v(vT4)}, {s(sX,2)} offset:32
    """)
    def issue_f():
        A(f"global_load_dwordx4 {v(vK+4,4)}, {v(vT5)}, {s(sWS,2)} sc1")
        A(f"global_load_dwordx4 {v(vK+8,4)}, {v(vT5)}, {s(sWS,2)} offset:128 sc1")
    poll_pipe(issue_f, 2, [vK+5, vK+7, vK+9, vK+11], "h3", 1, 0, True)
    ts("h3_done")
    A(f"""
      v_add_f32_dpp {v(vK+4)}, {v(vK+4)}, {v(vK+4)} row_ror:8 row_mask:0xf bank_mask:0xf
      v_add_f32_dpp {v(vK+6)}, {v(vK+6)}, {v(vK+6)} row_ror:8 row_mask:0xf bank_mask:0xf
      v_add_f32_dpp {v(vK+8)}, {v(vK+8)}, {v(vK+8)} row_ror:8 row_mask:0xf bank_mask:0xf
      v_add_f32_dpp {v(vK+10)}, {v(vK+10)}, {v(vK+10)} row_ror:8 row_mask:0xf bank_mask:0xf
      v_mov_b32 {v(vS)}, {v(vK+4)}
      v_mov_b32 {v(vS+1)}, {v(vK+6)}
      v_mov_b32 {v(vS+2)}, {v(vK+8)}
      v_mov_b32 {v(vS+3)}, {v(vK+10)}
      v_mov_b32 {v(vS+4)}, {v(vK+4)}
      v_mov_b32 {v(vS+5)}, {v(vK+6)}
      v_mov_b32 {v(vS+6)}, {v(vK+8)}
      v_mov_b32 {v(vS+7)}, {v(vK+10)}
      s_nop 1
    """)
    for sw in ("v_permlane16_swap_b32", "v_permlane32_swap_b32"):
        for i in range(4):
            A(f"{sw} {v(vS+i)}, {v(vS+4+i)}")
        for i in range(4):
            A(f"v_add_f32 {v(vS+i)}, {v(vS+i)}, {v(vS+4+i)}")
        if sw.startswith("v_permlane16"):
            for i in range(4):
                A(f"v_mov_b32 {v(vS+4+i)}, {v(vS+i)}")
            A.nop(1)
    A(f"""
      v_lshlrev_b32 {v(vS+8)}, 16, {v(vXR)}
      v_and_b32 {v(vS+9)}, 0xffff0000, {v(vXR)}
      v_lshlrev_b32 {v(vS+10)}, 16, {v(vXR+1)}
      v_and_b32 {v(vS+11)}, 0xffff0000, {v(vXR+1)}
      v_pk_add_f32 {v(vS,2)}, {v(vS,2)}, {v(vS+8,2)}
      v_pk_add_f32 {v(vS+2,2)}, {v(vS+2,2)}, {v(vS+10,2)}
      v_cvt_pk_bf16_f32 {v(vS)}, {v(vS)}, {v(vS+1)}
      v_cvt_pk_bf16_f32 {v(vS+2)}, {v(vS+2)}, {v(vS+3)}
      s_mov_b64 exec, 0xff
      global_store_dword {v(vT4)}, {v(vS)}, {s(sOUT,2)}
      global_store_dword {v(vT4)}, {v(vS+2)}, {s(sOUT,2)} offset:32
      s_cmp_lg_u32 {s(sA)}, 0
      s_cbranch_scc1 Lend
      v_mov_b32 {v(vT4)}, 0
      v_mov_b32 {v(vT5)}, {s(sTAG)}
      s_mov_b64 exec, 1
      global_store_dword {v(vT4)}, {v(vT5)}, {s(sWS,2)} sc1
      s_branch Lend
    """)
    A("Laux:")
    role[0] = "X"
    A("s_setprio 3")
    A(f"""
      s_sub_u32 {s(sROLE)}, {s(sWAVE)}, 4
      v_lshlrev_b32 {v(vT1)}, 4, {v(vL)}
      v_lshrrev_b32 {v(vT2)}, 3, {v(vL)}
      v_and_b32 {v(vT3)}, 7, {v(vL)}
      s_and_b32 {s(sKS)}, {s(sA)}, 3
      s_lshr_b32 {s(sT0)}, {s(sA)}, 2
      s_lshl_b32 {s(sT1)}, {s(sKVH)}, 3
      s_add_u32 {s(sT0)}, {s(sT0)}, {s(sT1)}
      s_lshl_b32 {s(sT0)}, {s(sT0)}, 7
      s_lshl_b32 {s(sT1)}, {s(sKS)}, 20
      s_add_u32 {s(sT2)}, {s(sT0)}, {s(sT1)}
      s_movk_i32 {s(sSTR)}, 0x2000
      s_cmp_eq_u32 {s(sROLE)}, 0
      s_cbranch_scc1 Laux_w
      s_and_b32 {s(sKS)}, s2, 3
      s_lshr_b32 {s(sT0)}, s2, 2
      s_cmp_ge_u32 {s(sT0)}, 28
      s_cselect_b32 {s(sT3)}, 1, 0
      s_cselect_b32 {s(sT1)}, 28, 0
      s_sub_u32 {s(sT0)}, {s(sT0)}, {s(sT1)}
      s_cmp_ge_u32 s2, 224
      s_cselect_b32 {s(sT0)}, 0, {s(sT0)}
      s_lshl_b32 {s(sT2)}, {s(sT0)}, 7
      s_mul_i32 {s(sT1)}, {s(sKS)}, {128*3584}
      s_add_u32 {s(sT2)}, {s(sT2)}, {s(sT1)}
      s_movk_i32 {s(sSTR)}, 3584
      s_mov_b32 {s(sTILE)}, {s(sT0)}
      s_mov_b32 {s(sTILE+1)}, {s(sT3)}
      s_waitcnt lgkmcnt(0)
      s_cmp_eq_u32 {s(sT3)}, 0
      s_cselect_b32 {s(sWQ)}, {s(sG)}, {s(sU)}
      s_cselect_b32 {s(sWQ+1)}, {s(sG+1)}, {s(sU+1)}
    """)
    A("Laux_w:")
    A(f"""
      s_waitcnt lgkmcnt(0)
      s_add_u32 {s(sWb)}, {s(sWQ)}, {s(sT2)}
      s_addc_u32 {s(sWb+1)}, {s(sWQ+1)}, 0
      v_mul_lo_u32 {v(vT2)}, {v(vT2)}, {s(sSTR)}
      v_lshl_add_u32 {v(vT2)}, {v(vT3)}, 4, {v(vT2)}
      s_lshl_b32 {s(sT0)}, {s(sSTR)}, 3
      global_load_dword {v(vEP)}, {v(vT7)}, {s(sWS,2)} sc1
      global_load_dwordx4 {v(vU,4)}, {v(vT1)}, {s(sX,2)}
      global_load_dwordx4 {v(vU+4,4)}, {v(vT1)}, {s(sX,2)} offset:1024
    """)
    for i in range(16):
        A(f"global_load_dwordx4 {v(vK+4*i,4)}, {v(vT2)}, {s(sWb,2)}{NT}")
        if i < 15:
            A(f"v_add_u32 {v(vT2)}, {s(sT0)}, {v(vT2)}")
    ts("issK")
    A("s_barrier")
    A("s_waitcnt vmcnt(16)")
    ts("issV")
    A(f"v_readfirstlane_b32 {s(sTAG)}, {v(vEP)}")
    for k in range(4):
        A(f"v_lshlrev_b32 {v(vP+4*k)}, 16, {v(vU+k)}")
        A(f"v_lshlrev_b32 {v(vP+4*k+1)}, 16, {v(vU+4+k)}")
        A(f"v_and_b32 {v(vP+4*k+2)}, 0xffff0000, {v(vU+k)}")
        A(f"v_and_b32 {v(vP+4*k+3)}, 0xffff0000, {v(vU+4+k)}")
    A(f"s_add_u32 {s(sTAG)}, {s(sTAG)}, 0x{TAG_DELTA:x}")
    def allreduce2(r0, r1, t0, t1, op="v_add_f32"):
        for sh in (8, 4, 2, 1):
            A.nop(1)
            A(f"{op}_dpp {v(r0)}, {v(r0)}, {v(r0)} row_ror:{sh} row_mask:0xf bank_mask:0xf")
            A(f"{op}_dpp {v(r1)}, {v(r1)}, {v(r1)} row_ror:{sh} row_mask:0xf bank_mask:0xf")
        for sw in ("v_permlane16_swap_b32", "v_permlane32_swap_b32"):
            A(f"v_mov_b32 {v(t0)}, {v(r0)}")
            A(f"v_mov_b32 {v(t1)}, {v(r1)}")
            A.nop(1)
            A(f"{sw} {v(r0)}, {v(t0)}")
            A(f"{sw} {v(r1)}, {v(t1)}")
            A(f"{op} {v(r0)}, {v(r0)}, {v(t0)}")
            A(f"{op} {v(r1)}, {v(r1)}, {v(t1)}")
    A(f"v_pk_add_f32 {v(vT0,2)}, {v(vP,2)}, {v(vP+2,2)}")
    for i in range(2, 8):
        A(f"v_pk_add_f32 {v(vT0,2)}, {v(vT0,2)}, {v(vP+2*i,2)}")
    A.nop(1)
    allreduce2(vT0, vT0+1, vT2, vT3)
    A(f"v_mul_f32 {v(vT0)}, 0x3b000000, {v(vT0)}")
    A(f"v_mul_f32 {v(vT0+1)}, 0x3b000000, {v(vT0+1)}")
    A(f"v_pk_add_f32 {v(vT4,2)}, {v(vP,2)}, {v(vT0,2)} neg_lo:[0,1] neg_hi:[0,1]")
    A(f"v_pk_mul_f32 {v(vT2,2)}, {v(vT4,2)}, {v(vT4,2)}")
    for i in range(1, 8):
        A(f"v_pk_add_f32 {v(vT4,2)}, {v(vP+2*i,2)}, {v(vT0,2)} neg_lo:[0,1] neg_hi:[0,1]")
        A(f"v_pk_fma_f32 {v(vT2,2)}, {v(vT4,2)}, {v(vT4,2)}, {v(vT2,2)}")
    A.nop(1)
    allreduce2(vT2, vT3, vT4, vT5)
    A(f"v_mul_f32 {v(vT2)}, 0x3b000000, {v(vT2)}")
    A(f"v_mul_f32 {v(vT3)}, 0x3b000000, {v(vT3)}")
    rnd_pair(vT0, vT6)
    rnd_pair(vT2, vT6)
    A(f"v_add_f32 {v(vT2)}, 0x3727c5ac, {v(vT2)}")
    A(f"v_add_f32 {v(vT3)}, 0x3727c5ac, {v(vT3)}")
    rnd_pair(vT2, vT6)
    A(f"v_sqrt_f32 {v(vT2)}, {v(vT2)}")
    A(f"v_sqrt_f32 {v(vT3)}, {v(vT3)}")
    A.nop(1)
    rnd_pair(vT2, vT6)
    A(f"v_rcp_f32 {v(vT2)}, {v(vT2)}")
    A(f"v_rcp_f32 {v(vT3)}, {v(vT3)}")
    A.nop(1)
    for i in range(8):
        r = vP + 2*i
        A(f"v_pk_add_f32 {v(r,2)}, {v(r,2)}, {v(vT0,2)} neg_lo:[0,1] neg_hi:[0,1]")
        rnd_pair(r, vT6)
        A(f"v_pk_mul_f32 {v(r,2)}, {v(r,2)}, {v(vT2,2)}")
        rnd_pair(r, vT6)
    A(f"""
      s_lshl_b32 {s(sT0)}, {s(sROLE)}, 12
      v_lshlrev_b32 {v(vT4)}, 6, {v(vL)}
      v_add_u32 {v(vT4)}, {s(sT0)}, {v(vT4)}
    """)
    for k in range(4):
        A(f"ds_write_b128 {v(vT4)}, {v(vP+4*k,4)} offset:{L_XN + 16*k}")
    A(f"""
      s_lshl_b32 {s(sT1)}, {s(sKS)}, 10
      s_add_u32 {s(sT0)}, {s(sT0)}, {s(sT1)}
      v_lshrrev_b32 {v(vT4)}, 3, {v(vL)}
      v_lshlrev_b32 {v(vT4)}, 3, {v(vT4)}
      v_add_u32 {v(vT4)}, {s(sT0)}, {v(vT4)}
    """)
    for i in range(16):
        A(f"ds_read_b64 {v(vV+2*i,2)}, {v(vT4)} offset:{L_XN + 64*i}")
    ts("issW")
    def gemv_piece(acc, wreg, xn, first):
        for k in range(4):
            u = vU + 2*(k & 1)
            A(f"v_lshlrev_b32 {v(u)}, 16, {v(wreg+k)}")
            A(f"v_and_b32 {v(u+1)}, 0xffff0000, {v(wreg+k)}")
            if first:
                A(f"v_pk_mul_f32 {v(acc+4*k,2)}, {v(xn,2)}, {v(u,2)} op_sel:[0,0] op_sel_hi:[1,0]")
                A(f"v_pk_mul_f32 {v(acc+4*k+2,2)}, {v(xn,2)}, {v(u,2)} op_sel:[0,1] op_sel_hi:[1,1]")
            else:
                A(f"v_pk_fma_f32 {v(acc+4*k,2)}, {v(xn,2)}, {v(u,2)}, {v(acc+4*k,2)} op_sel:[0,0,0] op_sel_hi:[1,0,1]")
                A(f"v_pk_fma_f32 {v(acc+4*k+2,2)}, {v(xn,2)}, {v(u,2)}, {v(acc+4*k+2,2)} op_sel:[0,1,0] op_sel_hi:[1,1,1]")
    A("s_waitcnt lgkmcnt(0)")
    for i in range(16):
        A(f"s_waitcnt vmcnt({15 - i + 0})" if True else "")
        gemv_piece(vS, vK+4*i, vV+2*i, i == 0)
    ts("Kdone")
    acc = vS
    A.nop(1)
    for i in range(8):
        A(f"v_permlane32_swap_b32 {v(acc+i)}, {v(acc+i+8)}")
    for i in range(8):
        A(f"v_add_f32 {v(acc+i)}, {v(acc+i)}, {v(acc+i+8)}")
    A.nop(1)
    for i in range(4):
        A(f"v_permlane16_swap_b32 {v(acc+i)}, {v(acc+i+4)}")
    for i in range(4):
        A(f"v_add_f32 {v(acc+i)}, {v(acc+i)}, {v(acc+i+4)}")
    A.nop(1)
    for i in range(2):
        A(f"v_add_f32_dpp {v(acc+4+i)}, {v(acc+i)}, {v(acc+i)} row_ror:8 row_mask:0xf bank_mask:0x3")
        A(f"v_add_f32_dpp {v(acc+4+i)}, {v(acc+i+2)}, {v(acc+i+2)} row_ror:8 row_mask:0xf bank_mask:0xc")
    A(f"""
      s_lshl_b32 {s(sT0)}, {s(sROLE)}, 9
      v_and_b32 {v(vT4)}, 7, {v(vL)}
      v_lshlrev_b32 {v(vT4)}, 3, {v(vT4)}
      v_lshrrev_b32 {v(vT5)}, 3, {v(vL)}
      v_add_u32 {v(vT4)}, {v(vT4)}, {v(vT5)}
      v_lshlrev_b32 {v(vT4)}, 3, {v(vT4)}
      v_add_u32 {v(vT4)}, {s(sT0)}, {v(vT4)}
      ds_write_b64 {v(vT4)}, {v(acc+4,2)} offset:{L_TR}
      s_cmp_eq_u32 {s(sROLE)}, 0
      s_cbranch_scc0 Laux_gst
      v_and_b32 {v(vT5)}, 31, {v(vL)}
      v_lshrrev_b32 {v(vT6)}, 5, {v(vL)}
      v_lshlrev_b32 {v(vT4)}, 4, {v(vT5)}
      v_lshl_add_u32 {v(vT4)}, {v(vT6)}, 2, {v(vT4)}
      s_lshl_b32 {s(sT1)}, {s(sKVH)}, 15
      s_lshl_b32 {s(sT2)}, {s(sKS)}, 12
      s_add_u32 {s(sT1)}, {s(sT1)}, {s(sT2)}
      s_lshr_b32 {s(sT2)}, {s(sA)}, 2
      s_lshl_b32 {s(sT2)}, {s(sT2)}, 9
      s_add_u32 {s(sT1)}, {s(sT1)}, {s(sT2)}
      s_add_u32 {s(sT1)}, {s(sT1)}, {WS_QG}
      v_lshlrev_b32 {v(vT6)}, 14, {v(vT6)}
      v_lshl_add_u32 {v(vT5)}, {v(vT5)}, 4, {v(vT6)}
      v_add_u32 {v(vT5)}, {s(sT1)}, {v(vT5)}
      s_branch Laux_st
    """)
    A("Laux_gst:")
    A(f"""
      v_lshrrev_b32 {v(vT5)}, 3, {v(vL)}
      v_and_b32 {v(vT6)}, 3, {v(vL)}
      v_lshl_add_u32 {v(vT4)}, {v(vT5)}, 2, {v(vT6)}
      v_lshlrev_b32 {v(vT4)}, 4, {v(vT4)}
      v_bfe_u32 {v(vT6)}, {v(vL)}, 2, 1
      v_lshl_add_u32 {v(vT4)}, {v(vT6)}, 2, {v(vT4)}
      v_add_u32 {v(vT4)}, 512, {v(vT4)}
      s_lshl_b32 {s(sT1)}, {s(sTILE)}, 13
      s_lshl_b32 {s(sT2)}, {s(sTILE+1)}, 2
      s_add_u32 {s(sT2)}, {s(sT2)}, {s(sKS)}
      s_lshl_b32 {s(sT2)}, {s(sT2)}, 7
      s_add_u32 {s(sT1)}, {s(sT1)}, {s(sT2)}
      s_add_u32 {s(sT1)}, {s(sT1)}, {WS_GG}
      v_lshlrev_b32 {v(vT5)}, 10, {v(vT5)}
      v_and_b32 {v(vT6)}, 7, {v(vL)}
      v_lshl_add_u32 {v(vT5)}, {v(vT6)}, 4, {v(vT5)}
      v_add_u32 {v(vT5)}, {s(sT1)}, {v(vT5)}
    """)
    A("Laux_st:")
    A(f"""
      ds_read_b32 {v(vU)}, {v(vT4)} offset:{L_TR}
      ds_read_b32 {v(vU+2)}, {v(vT4)} offset:{L_TR+8}
      v_mov_b32 {v(vU+1)}, {s(sTAG)}
      v_mov_b32 {v(vU+3)}, {s(sTAG)}
      s_waitcnt lgkmcnt(0)
      s_cmp_eq_u32 {s(sROLE)}, 0
      s_cselect_b32 {s(sT0)}, 0, s2
      s_cmp_ge_u32 {s(sT0)}, 224
      s_cbranch_scc1 Lend
      global_store_dwordx4 {v(vT5)}, {v(vU,4)}, {s(sWS,2)} sc1
      s_cmp_lg_u32 {s(sROLE)}, 0
      s_cbranch_scc1 Lend
      s_lshl_b32 {s(sT0)}, {s(sKVH)}, 8
      s_lshl_b32 {s(sT1)}, {s(sA)}, 3
      s_add_u32 {s(sT0)}, {s(sT0)}, {s(sT1)}
      s_add_u32 {s(sT0)}, {s(sT0)}, {WS_XG}
      v_mov_b32 {v(vT0)}, {s(sT0)}
      v_mov_b32 {v(vT2)}, {s(sXCC)}
      v_mov_b32 {v(vT3)}, {s(sTAG)}
      s_mov_b64 exec, 1
      global_store_dwordx2 {v(vT0)}, {v(vT2,2)}, {s(sWS,2)} sc1
    """)
    ts("p_done")
    A("Lend:")
    if TS:
        ts("end")
        A("s_waitcnt lgkmcnt(0)")
        A(f"""
          s_mov_b64 exec, 1
          s_mul_i32 {s(sT0)}, s2, 6
          s_add_u32 {s(sT0)}, {s(sT0)}, {s(sWAVE)}
          s_lshl_b32 {s(sT0)}, {s(sT0)}, 7
          s_add_u32 {s(sT0)}, {s(sT0)}, {WS_TS}
          v_mov_b32 {v(vT4)}, {s(sT0)}
        """)
        for k in range(19):
            A(f"v_mov_b32 {v(vT5)}, {s(64+2*k)}")
            A(f"global_store_dword {v(vT4)}, {v(vT5)}, {s(sWS,2)} offset:{4*k}")
    if LTS:
        Ll = A.label("lts")
        A(f"""
          s_cmp_lg_u32 {s(sWAVE)}, 0
          s_cbranch_scc1 {Ll}
          s_memrealtime s[66:67]
          s_lshl_b32 {s(sT0)}, s2, 3
          s_add_u32 {s(sT0)}, {s(sT0)}, {WS_TS}
          v_mov_b32 {v(vT4)}, {s(sT0)}
          s_waitcnt lgkmcnt(0)
          v_mov_b32 {v(vT0)}, s64
          v_mov_b32 {v(vT1)}, s66
          s_mov_b64 exec, 1
          global_store_dwordx2 {v(vT4)}, {v(vT0,2)}, {s(sWS,2)}
        """)
        A(f"{Ll}:")
    A("Lexit:")
    A("s_endpgm")
    A("Lcode_end:")
    A(f".set CODE_CHUNKS, (Lcode_end-{NAME})/1024")
    hdr = f"""; fused decode kernel: layernorm -> {{windowed GQA attention + out proj}} + {{sigmoid GLU}} + residual
; @launch grid=(256,1,1) block=(384,1,1) lds={LDS_BYTES}
.amdgcn_target "amdgcn-amd-amdhsa--gfx950"
.text
.globl {NAME}
.p2align 8
.type {NAME},@function
{NAME}:
"""
    ftr = f"""
.section .rodata,"a"
.p2align 6
.amdhsa_kernel {NAME}
  .amdhsa_next_free_vgpr {NV}
  .amdhsa_next_free_sgpr 102
  .amdhsa_accum_offset {NV}
  .amdhsa_group_segment_fixed_size 0
  .amdhsa_kernarg_size 96
  .amdhsa_user_sgpr_count 2
  .amdhsa_user_sgpr_kernarg_segment_ptr 1
  .amdhsa_system_sgpr_workgroup_id_x 1
.end_amdhsa_kernel
"""
    return hdr + A.text() + ftr, (ts_map if TS else None)

if __name__ == "__main__":
    out = sys.argv[1]
    opt = {}
    for a in sys.argv[2:]:
        k, val = a.split("=")
        opt[k] = int(val)
    txt, slots = gen(opt)
    open(out, "w").write(txt)
    print("wrote", out, "ts slots:", slots)
```
